```python
import torch

def _softmax(x, axis=-1):
    return torch.softmax(x, dim=axis)
def _gelu(x):
    return torch.nn.functional.gelu(x, approximate="tanh")
def _silu(x):
    return torch.nn.functional.silu(x)
def _sigmoid(x):
    return torch.sigmoid(x)
def _layernorm(x, axis=-1, eps=1e-5):
    m = x.mean(dim=axis, keepdim=True)
    v = x.var(dim=axis, keepdim=True, unbiased=False)
    return (x - m) / torch.sqrt(v + eps)
def _scatter_add(tgt, idx, src, axis=0):
    return tgt.clone().index_add_(axis, idx, src)
def _segment_sum(src, seg, n):
    out = torch.zeros((n,) + src.shape[1:], dtype=src.dtype)
    return out.index_add_(0, seg, src)
def _pad(x, pw):
    flat = tuple(v for pair in reversed(pw) for v in pair)
    return torch.nn.functional.pad(x, flat)

kernel_name = 'sequential_preLN__sliding_block__mixer_s_mlp__prompt'

def setup_inputs():

    _w = (lambda a: (lambda t: t.to(torch.bfloat16) if t.is_floating_point() else t)(torch.as_tensor(a)))
    def _A_setup():
        B, S, D = 1, 2048, 448
        return {
            "x": _w((lambda *s: torch.randn(*s, dtype=torch.bfloat16) * 0.05)(B, S, D)),
            "wqkv": _w((lambda *s: torch.randn(*s, dtype=torch.bfloat16) * 0.05)(D, 3 * D)),
            "wo": _w((lambda *s: torch.randn(*s, dtype=torch.bfloat16) * 0.05)(D, D)),
        }
    _A_in = _A_setup()

    def _B_setup():
        B, S, D, F = 1, 2048, 448, 1792
        return {
            "x":  _w((lambda *s: torch.randn(*s, dtype=torch.bfloat16) * 0.05)(B, S, D)),
            "w1": _w((lambda *s: torch.randn(*s, dtype=torch.bfloat16) * 3.2)(D, D) * (D ** -0.5)),
            "w2": _w((lambda *s: torch.randn(*s, dtype=torch.bfloat16) * 3.2)(D, D) * (D ** -0.5)),
            "w3": _w((lambda *s: torch.randn(*s, dtype=torch.bfloat16) * 3.2)(D, F) * (D ** -0.5)),
            "w4": _w((lambda *s: torch.randn(*s, dtype=torch.bfloat16) * 3.2)(F, D) * (F ** -0.5)),
        }
    _B_in = _B_setup()

    return {
        "A_x": _A_in["x"],
        "A_wqkv": _A_in["wqkv"],
        "A_wo": _A_in["wo"],
        "B_x": _B_in["x"],
        "B_w1": _B_in["w1"],
        "B_w2": _B_in["w2"],
        "B_w3": _B_in["w3"],
        "B_w4": _B_in["w4"],
    }

def reference(A_x, A_wqkv, A_wo, B_x, B_w1, B_w2, B_w3, B_w4):
    def _A_ref(x, wqkv, wo):
        B, S, D = x.shape
        H = 16; Dh = D // H; W = 256
        qkv = (lambda x, *d: x.permute(*d))((x @ wqkv).reshape(B, S, 3, H, Dh), 2, 0, 3, 1, 4)
        q, k, v = qkv[0], qkv[1], qkv[2]
        scores = torch.einsum("bhqd,bhkd->bhqk", q, k) * (Dh ** -0.5)
        idx = torch.arange(S)
        mask = (idx[:, None] - idx[None, :] >= 0) & (idx[:, None] - idx[None, :] < W)
        scores = torch.where(mask[None, None], scores, -1e9)
        p = _softmax(scores, axis=-1)
        o = torch.einsum("bhqk,bhkd->bhqd", p, v)
        return (lambda x, *d: x.permute(*d))(o, 0, 2, 1, 3).reshape(B, S, D) @ wo

    def _B_ref(x, w1, w2, w3, w4):
        B, S, D = x.shape
        h = _gelu(_layernorm(x, axis=-1) @ w1)
        c = D // 4
        g0 = _pad(h[:, :, 0*c:1*c], ((0, 0), (1, 0), (0, 0)))[:, :S, :]
        g1 = _pad(h[:, :, 1*c:2*c], ((0, 0), (0, 1), (0, 0)))[:, 1:, :]
        g2 = _pad(h[:, :, 2*c:3*c], ((0, 0), (2, 0), (0, 0)))[:, :S, :]
        g3 = _pad(h[:, :, 3*c:   ], ((0, 0), (0, 2), (0, 0)))[:, 2:, :]
        hs = torch.concatenate([g0, g1, g2, g3], axis=-1) @ w2
        x1 = x + hs
        h2 = _gelu(_layernorm(x1, axis=-1) @ w3) @ w4
        return x1 + h2

    x = A_x
    h = x + _A_ref(_layernorm(x, axis=-1), A_wqkv, A_wo)
    h2 = h + _B_ref(_layernorm(h, axis=-1), B_w1, B_w2, B_w3, B_w4)
    return h2
```

```python
import re

REG = re.compile(r'(?<![\w.])([vas])(?:\[(\d+):(\d+)\]|(\d+))(?![\w])')
TRANS = ('v_exp_f32', 'v_log_f32', 'v_rcp_f32', 'v_rsq_f32', 'v_sqrt_f32', 'v_sin_f32', 'v_cos_f32')

def regs_of(op):
    out = set()
    for m in REG.finditer(op):
        k = m.group(1)
        if m.group(4) is not None:
            out.add((k, int(m.group(4))))
        else:
            for i in range(int(m.group(2)), int(m.group(3)) + 1):
                out.add((k, i))
    if re.search(r'\bvcc\b', op): out |= {('s', 'vcc')}
    if re.search(r'\bm0\b', op): out |= {('s', 'm0')}
    if re.search(r'\bexec\b', op): out |= {('s', 'exec')}
    return out

def split_ops(s):
    ops, depth, cur = [], 0, ''
    for ch in s:
        if ch in '[(': depth += 1
        if ch in '])': depth -= 1
        if ch == ',' and depth == 0:
            ops.append(cur.strip()); cur = ''
        else:
            cur += ch
    if cur.strip(): ops.append(cur.strip())
    return ops

class Ins:
    def __init__(self, text):
        self.text = text
        t = text.split(';')[0].strip()
        self.label = t.endswith(':')
        parts = t.split(None, 1)
        self.mn = parts[0] if parts else ''
        mn = self.mn
        for suf in ('_e32', '_e64', '_dpp', '_sdwa'):
            if mn.endswith(suf): mn = mn[:-len(suf)]
        self.base = mn
        ops = split_ops(parts[1]) if len(parts) > 1 else []
        self.ops = ops
        self.kind = 'other'
        self.w = set(); self.r = set()
        self.srcC = set(); self.srcAB = set(); self.passes = 0
        self.dpp = ('_dpp' in self.mn) or ('row_' in t) or ('quad_perm' in t)
        self.states = 1
        self.sdata = set()
        if self.label or not mn or mn.startswith('.'):
            self.kind = 'label' if self.label else 'dir'; self.states = 0; return
        if mn == 's_nop':
            self.kind = 'salu'; self.states = int(ops[0], 0) + 1; return
        if mn.startswith('v_mfma'):
            self.kind = 'mfma'
            self.w = regs_of(ops[0]); self.srcAB = regs_of(ops[1]) | regs_of(ops[2]); self.srcC = regs_of(ops[3])
            self.r = self.srcAB | self.srcC
            self.passes = 8 if '32x32x16' in mn else 4
            return
        if mn.startswith('v_'):
            self.kind = 'valu'
            if mn.startswith('v_cmp'):
                self.w = regs_of(ops[0]);
                for o in ops[1:]: self.r |= regs_of(o)
            elif 'permlane' in mn and 'swap' in mn:
                self.w = regs_of(ops[0]) | regs_of(ops[1]); self.r = set(self.w)
            elif mn in ('v_add_co_u32', 'v_sub_co_u32', 'v_addc_co_u32'):
                self.w = regs_of(ops[0]) | regs_of(ops[1])
                for o in ops[2:]: self.r |= regs_of(o)
            else:
                self.w = regs_of(ops[0])
                for o in ops[1:]: self.r |= regs_of(o)
                if mn in ('v_fmac_f32', 'v_dot2c_f32_bf16', 'v_pk_fmac_f16'): self.r |= self.w
            return
        if mn.startswith('buffer_') or mn.startswith('global_'):
            self.kind = 'vmem'
            lds = re.search(r'\blds\b', t) is not None or '_lds_' in mn
            self.lds = lds
            if 'load' in mn and not lds:
                self.w = regs_of(ops[0])
                for o in ops[1:]: self.r |= regs_of(o)
            else:
                for o in ops: self.r |= regs_of(o)
                if 'store' in mn and ('x4' in mn or 'x3' in mn):
                    self.sdata = regs_of(ops[0] if mn.startswith('buffer_') else ops[1])
                if lds: self.r.add(('s', 'm0'))
            return
        if mn.startswith('ds_'):
            self.kind = 'ds'
            if mn.startswith('ds_read') or 'permute' in mn or 'swizzle' in mn:
                self.w = regs_of(ops[0])
                for o in ops[1:]: self.r |= regs_of(o)
            else:
                for o in ops: self.r |= regs_of(o)
            return
        if mn.startswith('s_'):
            self.kind = 'salu'
            if mn.startswith(('s_cmp', 's_cbranch', 's_branch', 's_waitcnt', 's_barrier', 's_sleep', 's_endpgm', 's_setprio', 's_bitcmp', 's_setpc')):
                for o in ops: self.r |= regs_of(o)
            else:
                if ops: self.w = regs_of(ops[0])
                for o in ops[1:]: self.r |= regs_of(o)
            return

def vec(s): return {x for x in s if x[0] in 'va'}
def sca(s): return {x for x in s if x[0] == 's'}

def need(p, c):
    n = 0
    if p.kind == 'valu':
        pw = vec(p.w); psw = sca(p.w)
        isdot = p.base.startswith('v_dot')
        if c.kind == 'mfma' and pw & c.r: n = max(n, 3 if isdot else 2)
        if c.kind == 'valu':
            if p.base in TRANS and c.base not in TRANS and pw & c.r: n = max(n, 1)
            if ('permlane' in c.base or c.dpp) and pw & c.r: n = max(n, 2)
            if c.base in ('v_readfirstlane_b32', 'v_readlane_b32') and pw & c.r: n = max(n, 1)
            if psw & c.r: n = max(n, 4 if c.base in ('v_readlane_b32', 'v_writelane_b32') else 2)
            if isdot and pw & (c.r | c.w):
                if c.base == p.base:
                    ab = regs_of(c.ops[1]) | regs_of(c.ops[2])
                    if pw & ab: n = max(n, 3)
                else:
                    n = max(n, 3)
        if isdot and c.kind in ('vmem', 'ds') and pw & (c.r | c.w): n = max(n, 3)
        if c.kind == 'vmem' and psw & c.r: n = max(n, 5)
        if c.kind == 'salu' and psw & c.r: n = max(n, 1)
    if p.kind == 'mfma':
        big = {4: 8, 8: 12}[p.passes]
        if c.kind == 'mfma':
            if p.w & c.srcAB: n = max(n, big)
            if p.w & c.srcC and not (p.w == c.srcC and p.passes == c.passes): n = max(n, big - 2)
            if p.w & c.w and not (p.w == c.srcC): n = max(n, big - 2)
        elif c.kind in ('valu', 'vmem', 'ds'):
            if p.w & (c.r | c.w): n = max(n, big)
            if c.kind == 'valu' and p.srcC & c.w: n = max(n, {4: 3, 8: 7}[p.passes])
    if p.kind == 'vmem' and p.sdata:
        if p.sdata & c.w: n = max(n, 2 if c.kind == 'valu' else 1)
    if p.kind == 'salu' and ('s', 'm0') in p.w and c.kind == 'vmem' and getattr(c, 'lds', False): n = max(n, 1)
    return n

class Asm:
    def __init__(self):
        self.ins = []
        self.vm = []
        self.lg = []
        self.nops = 0
        self.uid = 0
        self.cnt = {}

    def raw(self, text):
        for line in text.split('\n'):
            line = line.strip()
            if line: self._emit(line)

    def _emit(self, line):
        c = Ins(line)
        if c.kind not in ('label', 'dir'):
            dist = 0; req = 0
            for p in reversed(self.ins):
                if p.kind == 'dir': continue
                if p.kind == 'label': continue
                k = need(p, c) - dist
                if k > req: req = k
                dist += p.states
                if dist >= 20: break
            while req > 0:
                k = min(req, 16)
                self.ins.append(Ins(f's_nop {k-1}')); self.nops += 1
                req -= k
        self.ins.append(c)

    def __call__(self, text, tag=None):
        for line in text.split('\n'):
            line = line.strip()
            if not line: continue
            self._emit(line)
            c = self.ins[-1]
            self.cnt[tag] = self.cnt.get(tag, 0) + 1
            if c.kind == 'vmem': self.vm.append(tag)
            elif c.kind == 'ds': self.lg.append(tag)

    def _n_after(self, lst, tags):
        if not isinstance(tags, (list, tuple, set)): tags = [tags]
        last = -1
        for i, t in enumerate(lst):
            if t in tags: last = i
        return None if last < 0 else len(lst) - 1 - last

    def wait(self, vm=None, lg=None):
        s = []
        if vm is not None:
            n = 0 if vm == 'all' else self._n_after(self.vm, vm)
            if n is not None and (vm != 'all' or True):
                n = min(n, 63); s.append(f'vmcnt({n})')
                self.vm = self.vm[len(self.vm) - n:] if n else []
        if lg is not None:
            n = 0 if lg == 'all' else self._n_after(self.lg, lg)
            if n is not None:
                n = min(n, 15); s.append(f'lgkmcnt({n})')
                self.lg = self.lg[len(self.lg) - n:] if n else []
        if s: self._emit('s_waitcnt ' + ' '.join(s))

    def label(self, base):
        self.uid += 1
        return f'L_{base}_{self.uid}'

    def text(self):
        out = []
        for i in self.ins:
            out.append(i.text if i.kind in ('label', 'dir') else '    ' + i.text)
        return '\n'.join(out)

def vr(a, n=1, k='v'):
    return f'{k}{a}' if n == 1 else f'{k}[{a}:{a+n-1}]'
```

```python
import sys, struct, math
sys.path.insert(0, 'gen')
from asm import Asm, vr

NAME = 'sequential_preLN__sliding_block__mixer_s_mlp__prompt'
def f2u(x): return struct.unpack('<I', struct.pack('<f', x))[0]
def hx(x): return '0x%08x' % (x & 0xffffffff)

FLAGS = 0x10000
QKV, O_, H_, G_, X1_, U_ = 0x100000, 0x700000, 0x900000, 0xB00000, 0xD00000, 0xF00000
STAMPS = 0x2000000
OOB = 0x40000000
S0, S1, S2 = 0, 57344, 114688
KP = 3104
KB, VB = S1, S1 + 8 * KP
CS = S2 + 49152 - 512
WS, XS, WQ, WO, W1, W2, W3, W4, OUT = 's[4:7]', 's[8:11]', 's[12:15]', 's[16:19]', 's[20:23]', 's[24:27]', 's[28:31]', 's[32:35]', 's[36:39]'
TEAM, MEM, RB, CG, WAVE, TAG, RH, SLOTA, SLOTB = 's40', 's41', 's42', 's43', 's44', 's45', 's46', 's47', 's3'
ONES, LO1, HI1 = 's48', 's49', 's50'
T0, T1, T2, T3, T4, T5 = 's52', 's53', 's54', 's55', 's56', 's57'
NBIG = f2u(-1e30)
EPS = 1e-5
QSCALE = (28 ** -0.5) * math.log2(math.e)
K1 = -2 * math.sqrt(2 / math.pi) * math.log2(math.e)
K2 = K1 * 0.044715
LANE, VA16, V32 = 'v1', 'v2', 'v3'
HPK = 8
RES = 16

class Gen:
    def __init__(self, stop=99, stamps=False):
        self.a = Asm()
        self.stop = stop
        self.stamps = stamps
        self.nstamp = 0
        self.stamp_names = []

    def stamp(self, name):
        if not self.stamps: return
        i = self.nstamp; self.nstamp += 1
        assert i < 21
        self.stamp_names.append(name)
        self.a(f's_memtime s[{100-2*i}:{101-2*i}]')

    def run(self, items):
        for it in items:
            if callable(it): it()
            elif isinstance(it, tuple): self.a(it[0], it[1])
            else: self.a(it)

    def zipper(self, main, fill):
        n = len(main); out = []; k = 0
        for i, g in enumerate(main):
            out += g
            upto = (len(fill) * (i + 1)) // n
            out += fill[k:upto]; k = upto
        return out

    def W(self, vm=None, lg=None): return lambda: self.a.wait(vm=vm, lg=lg)

    def dma(self, voff, srd, soff, m0, tag, fl=''):
        self.a(m0)
        self.a(f'buffer_load_dwordx4 {voff}, {srd}, {soff} offen {fl} lds', tag)

    def signal(self, phase, slot, tag):
        a = self.a
        a.wait(vm=tag, lg='all')
        a('s_barrier')
        L = a.label('sig')
        a(f's_cmp_lg_u32 {WAVE}, 0\ns_cbranch_scc1 {L}')
        a(f's_lshl_b32 {T0}, {slot}, 8\ns_add_u32 {T0}, {T0}, {FLAGS + phase * 65536}')
        a(f'v_mov_b32 v254, {TAG}\nv_mov_b32 v255, 0\ns_mov_b64 exec, 1')
        a.raw(f'buffer_store_dword v254, v255, {WS}, {T0} offen sc1')
        a('s_mov_b64 exec, -1')
        a(f'{L}:')

    def poll(self, phase, base, mask):
        a = self.a
        L = a.label('pskip'); P = a.label('poll'); K = a.label('pok')
        a(f's_cmp_lg_u32 {WAVE}, 0\ns_cbranch_scc1 {L}')
        a(f'v_add_u32 v254, {base}, {LANE}\nv_and_b32 v254, 255, v254\nv_lshlrev_b32 v254, 8, v254')
        a(f's_mov_b32 {T0}, {FLAGS + phase * 65536}\ns_mov_b32 {T1}, 300000')
        a(f's_mov_b64 exec, {mask}')
        a(f'{P}:')
        a.raw(f'buffer_load_dword v255, v254, {WS}, {T0} offen sc1')
        a.raw('s_waitcnt vmcnt(0)')
        a(f'v_cmp_ne_u32 vcc, {TAG}, v255')
        a(f's_sub_u32 {T1}, {T1}, 1')
        a(f's_cbranch_vccz {K}')
        a(f's_cmp_lg_u32 {T1}, 0\ns_cbranch_scc1 {P}')
        a(f'{K}:')
        a('s_mov_b64 exec, -1')
        a(f'{L}:')
        a('s_barrier')

    def wdma_voff(self, v, pitch, typ):
        a = self.a
        a(f'v_lshrrev_b32 v250, 3, {LANE}\nv_mul_u32_u24 {v}, {pitch}, v250')
        if typ == 'A': a(f'v_lshrrev_b32 v250, 4, {LANE}\nv_lshlrev_b32 v250, 1, v250')
        else: a(f'v_bfe_u32 v250, {LANE}, 4, 1\nv_lshlrev_b32 v250, 2, v250')
        a(f'v_and_b32 v251, 7, {LANE}\nv_xor_b32 v250, v250, v251\nv_lshl_add_u32 {v}, v250, 4, {v}')

    def load_image(self, srd, pitch, colbyte_sgpr, base, typ, tag):
        a = self.a
        self.wdma_voff('v249', pitch, typ)
        a(f's_mul_i32 {T0}, {WAVE}, {112 * pitch}\ns_add_u32 {T0}, {T0}, {colbyte_sgpr}')
        a(f's_mul_i32 {T1}, {WAVE}, 14336\ns_add_u32 {T1}, {T1}, {base}')
        for i in range(14):
            self.dma('v249', srd, T0, f's_add_u32 m0, {T1}, {i * 1024}', tag)
            if i < 13: a(f's_add_u32 {T0}, {T0}, {8 * pitch}')

    def prologue(self):
        a = self.a
        a('s_cmp_ge_u32 s2, 256\ns_cbranch_scc1 L_end')
        self.stamp('start')
        a('s_load_dwordx16 s[48:63], s[0:1], 0\ns_load_dwordx2 s[36:37], s[0:1], 64\ns_load_dwordx2 s[4:5], s[0:1], 80')
        a(f'v_and_b32 {LANE}, 63, v0\nv_lshrrev_b32 v0, 6, v0')
        a(f's_and_b32 {TEAM}, s2, 7\ns_lshl_b32 {TEAM}, {TEAM}, 1\ns_lshr_b32 {MEM}, s2, 7\ns_add_u32 {TEAM}, {TEAM}, {MEM}')
        a(f's_bfe_u32 {MEM}, s2, 0x40003')
        a(f'v_readfirstlane_b32 {WAVE}, v0')
        a(f's_cmp_ge_u32 {MEM}, 7\ns_cselect_b32 {RH}, 1, 0\ns_mul_i32 {CG}, {RH}, 7\ns_sub_u32 {CG}, {MEM}, {CG}')
        a(f's_lshl_b32 {RB}, {TEAM}, 1\ns_add_u32 {RB}, {RB}, {RH}')
        a(f's_lshl_b32 {SLOTA}, {RB}, 3\ns_add_u32 {SLOTA}, {SLOTA}, {CG}')
        a(f's_lshl_b32 {SLOTB}, {TEAM}, 4\ns_add_u32 {SLOTB}, {SLOTB}, {MEM}')
        for i in range(14):
            a(f'v_add_u32 v{128+i}, {64*i}, {LANE}\nv_mul_u32_u24 v250, 9363, v{128+i}\nv_lshrrev_b32 v250, 20, v250')
            a(f'v_xor_b32 v{128+i}, v{128+i}, v250\nv_lshlrev_b32 v{128+i}, 4, v{128+i}')
        self.wdma_voff('v248', 2688, 'B')
        a(f'v_lshrrev_b32 v250, 4, {LANE}\nv_and_b32 v251, 15, {LANE}\nv_lshlrev_b32 v251, 4, v251\nv_lshl_add_u32 {VA16}, v250, 10, v251')
        a(f'v_lshl_add_u32 {VA16}, v0, 8, {VA16}')
        a(f'v_lshrrev_b32 v250, 5, {LANE}\nv_and_b32 v251, 31, {LANE}\nv_lshlrev_b32 v251, 4, v251\nv_lshl_add_u32 {V32}, v250, 10, v251')
        a.raw('s_waitcnt lgkmcnt(0)')
        a('s_mov_b32 s6, 0x10000000\ns_mov_b32 s7, 0x20000')
        for base, src, size in [(8, 48, 2048*896), (12, 50, 448*2688), (16, 52, 448*896), (20, 56, 448*896), (24, 58, 448*896), (28, 60, 448*3584), (32, 62, 1792*896)]:
            a(f's_mov_b32 s{base}, s{src}\ns_mov_b32 s{base+1}, s{src+1}\ns_mov_b32 s{base+2}, {size}\ns_mov_b32 s{base+3}, 0x20000')
        a(f's_mov_b32 s38, {2048*896}\ns_mov_b32 s39, 0x20000')
        a(f's_mov_b32 {ONES}, 0x3f803f80\ns_mov_b32 {LO1}, 0x00003f80\ns_mov_b32 {HI1}, 0x3f800000')
        a('v_mov_b32 v255, 0')
        a(f'buffer_load_dword v4, v255, {WS}, 0 offen sc1', 'epoch')
        self.stamp('kernarg')

    def get_tag(self):
        a = self.a
        a.wait(vm='epoch')
        a(f'v_readfirstlane_b32 {TAG}, v4')
        a(f's_mul_i32 {TAG}, {TAG}, 0x9E3779B1\ns_add_u32 {TAG}, {TAG}, 0x7F4A7C15')

    def p1(self):
        a = self.a
        ACC, WB, TMP, XF = 32, 80, 116, 128
        XA, WA = 240, 244
        slot = [57344, 81920, 106496, 131072, 0, 24576, 57344]
        a(f's_lshl_b32 {T0}, {RB}, 2\ns_add_u32 {T0}, {T0}, {WAVE}\ns_mul_i32 {T0}, {T0}, {16*896}')
        a(f's_mul_i32 {T1}, {WAVE}, 14336')
        for i in range(14):
            self.dma(f'v{128+i}', XS, T0, f's_add_u32 m0, {T1}, {i*1024}', 'x')
        a(f's_mul_i32 {T2}, {WAVE}, {16*2688}\ns_mul_i32 {T3}, {CG}, 384\ns_add_u32 {T2}, {T2}, {T3}\ns_lshl_b32 {T3}, {WAVE}, 11')
        def wchunk(c):
            for e in range(2):
                a(f's_add_u32 {T0}, {T2}, {(64*c + 8*e)*2688}')
                for i in range(3):
                    a(f's_add_u32 m0, {T3}, {slot[c] + i*8192 + e*1024 - i*128}')
                    a(f'buffer_load_dwordx4 v248, {WQ}, {T0} offen offset:{i*128} lds', f'w{c}')
        for c in range(4): wchunk(c)
        a(f's_and_b32 {T4}, {WAVE}, 1\ns_lshr_b32 {T5}, {WAVE}, 1')
        a(f'v_and_b32 v250, 31, {LANE}\nv_bfe_u32 v251, {LANE}, 1, 3\nv_lshrrev_b32 v252, 5, {LANE}')
        a(f's_mul_i32 {T0}, {T4}, {32*896}\nv_mul_u32_u24 v250, 896, v250\nv_add_u32 v250, {T0}, v250')
        for e in range(4):
            a(f'v_add_u32 v253, {2*e}, v252\nv_xor_b32 v253, v253, v251\nv_lshl_add_u32 v{XA+e}, v253, 4, v250')
        a(f'v_and_b32 v250, 15, {LANE}\nv_mul_u32_u24 v250, 896, v250')
        a(f's_mul_i32 {T0}, {WAVE}, {16*896}\ns_lshl_b32 {T1}, {CG}, 7\ns_add_u32 {T0}, {T0}, {T1}\nv_add_u32 v250, {T0}, v250')
        a(f'v_bfe_u32 v253, {LANE}, 4, 1\nv_lshl_add_u32 v250, v253, 3, v250')
        for j in range(4):
            a(f'v_add_u32 v253, {2*j}, v252\nv_xor_b32 v253, v253, v251\nv_lshl_add_u32 v{116+j}, v253, 4, v250')
        self.trB_addr('v250', 8)
        a(f's_mul_i32 {T0}, {T5}, 3')
        for i in range(3):
            a(f's_add_u32 {T1}, {T0}, {i}\ns_and_b32 s58, {T1}, 1\ns_lshl_b32 s58, s58, 6\ns_lshr_b32 {T1}, {T1}, 1\ns_lshl_b32 {T1}, {T1}, 13')
            a(f'v_xor_b32 v{WA+i}, s58, v250\nv_add_u32 v{WA+i}, {T1}, v{WA+i}')
            a(f'v_add_u32 v{120+i}, 81920, v{WA+i}')
        a.wait(vm='x')
        a('s_barrier')
        self.stamp('x_in')
        for s in range(28):
            a(f'ds_read_b128 {vr(XF+4*s,4)}, v{XA+(s&3)} offset:{(s>>2)*128}', f'xf{s}')
        for j in range(4):
            a(f'ds_read_b64 {vr(HPK+2*j,2)}, v{116+j}', 'xt')
        for i in range(4): a(f'v_mov_b32 v{124+i}, 0')
        for s in range(28):
            a.wait(lg=f'xf{s}')
            for d in range(4): a(f'v_dot2c_f32_bf16 v{124+d}, {ONES}, v{XF+4*s+d}')
        a.wait(lg='all')
        a('s_barrier')
        wchunk(4); wchunk(5)
        a('v_add_f32 v124, v124, v125\nv_add_f32 v126, v126, v127\nv_add_f32 v124, v124, v126\nv_mov_b32 v125, v124')
        a('v_permlane32_swap_b32 v124, v125\nv_add_f32 v124, v124, v125')
        a(f'v_mul_f32 v123, {hx(f2u(-1.0/448))}, v124')
        for i in range(4): a(f'v_mov_b32 v{124+i}, 0')
        NM = 'v123'
        TM = 252
        def center(s):
            L = []
            for d in range(4):
                L.append(f'v_dot2_f32_bf16 v{112+2*d}, v{XF+4*s+d}, {LO1}, {NM}')
                L.append(f'v_dot2_f32_bf16 v{113+2*d}, v{XF+4*s+d}, {HI1}, {NM}')
            for d in range(4): L.append(f'v_cvt_pk_bf16_f32 v{XF+4*s+d}, v{112+2*d}, v{113+2*d}')
            for d in range(4): L.append(f'v_dot2c_f32_bf16 v{124+d}, v{XF+4*s+d}, v{XF+4*s+d}')
            return L
        NB = 2; WBUF = [80, 92]
        WBUF = [80, 92, 236 + 0]
        WBUF = [80, 92]
        def wreg(s, i): return f'a[{(s%3)*12+4*i}:{(s%3)*12+4*i+3}]'
        def reads(s):
            c, k = s >> 2, s & 3
            L = []
            if k == 0:
                L.append(self.W(vm=f'w{c}')); L.append('s_barrier')
                if c == 2: L.append(lambda: wchunk(6))
            base = slot[c]
            for i in range(3):
                ar, off = (WA + i, base) if base < 81920 else (120 + i, base - 81920)
                r0 = (s % 3) * 12 + 4 * i
                L.append((f'ds_read_b64_tr_b16 a[{r0}:{r0+1}], v{ar} offset:{off + k*2048}', f'wf{s}'))
                L.append((f'ds_read_b64_tr_b16 a[{r0+2}:{r0+3}], v{ar} offset:{off + k*2048 + 512}', f'wf{s}'))
            return L
        self.run(reads(0)); self.run(reads(1)); self.run(center(0))
        for s in range(28):
            if s + 2 < 28: self.run(reads(s + 2))
            a.wait(lg=f'wf{s}')
            mm = [[f'v_mfma_f32_32x32x16_bf16 {vr(ACC+16*i,16)}, {wreg(s,i)}, {vr(XF+4*s,4)}, {vr(ACC+16*i,16) if s else 0}'] for i in range(3)]
            self.run(self.zipper(mm, center(s + 1) if s + 1 < 28 else []))
        self.stamp('p1_mm')
        a('v_add_f32 v124, v124, v125\nv_add_f32 v126, v126, v127\nv_add_f32 v124, v124, v126\nv_mov_b32 v125, v124')
        a('v_permlane32_swap_b32 v124, v125\nv_add_f32 v124, v124, v125')
        a(f'v_mov_b32 v125, {hx(f2u(EPS))}\nv_fmac_f32 v125, {hx(f2u(1.0/448))}, v124\nv_rsq_f32 v124, v125')
        a(f's_mul_i32 {T0}, {CG}, 6\ns_mul_i32 {T1}, {T5}, 3\ns_add_u32 {T0}, {T0}, {T1}')
        a(f's_mul_i32 {T1}, {TEAM}, {336*1024}\ns_lshl_b32 {T2}, {T0}, 13\ns_add_u32 {T1}, {T1}, {T2}')
        a(f's_lshl_b32 {T2}, {RH}, 9\ns_add_u32 {T1}, {T1}, {T2}\ns_lshl_b32 {T2}, {T4}, 8\ns_add_u32 {T1}, {T1}, {T2}\ns_add_u32 {T1}, {T1}, {QKV}')
        a(f'v_and_b32 v250, 31, {LANE}\nv_lshlrev_b32 v250, 3, v250\nv_lshrrev_b32 v251, 5, {LANE}\nv_lshl_add_u32 v250, v251, 10, v250')
        for i in range(3):
            a(f's_add_u32 {T2}, {T0}, {i}\ns_cmp_lt_u32 {T2}, 14\ns_cselect_b32 {T2}, {hx(f2u(QSCALE))}, 1.0')
            a(f'v_mul_f32 v126, {T2}, v124')
            for k in range(8):
                r = ACC + 16*i + 2*k
                a(f'v_pk_mul_f32 {vr(r,2)}, {vr(r,2)}, v[126:127] op_sel_hi:[1,0]')
            for k in range(8):
                r = ACC + 16*i + 2*k
                a(f'v_cvt_pk_bf16_f32 v{XF+8*i+k}, v{r}, v{r+1}')
            for q in range(4):
                if q % 2 == 0: a(f's_add_u32 {T3}, {T1}, {i*8192 + q*2048}')
                a(f'buffer_store_dwordx2 {vr(XF+8*i+2*q,2)}, v250, {WS}, {T3} offen offset:{(q%2)*2048} sc1', 'st')
        self.get_tag()
        self.signal(0, SLOTA, 'st')
        self.stamp('p1_sig')

    def trB_addr(self, v, hrows):
        a = self.a
        a(f'v_lshrrev_b32 v252, 5, {LANE}\nv_mul_u32_u24 {v}, {hrows*128}, v252')
        a(f'v_bfe_u32 v252, {LANE}, 2, 2\nv_lshl_add_u32 {v}, v252, 7, {v}')
        a(f'v_bfe_u32 v252, {LANE}, 4, 1\nv_lshl_add_u32 {v}, v252, 5, {v}')
        a(f'v_and_b32 v252, 3, {LANE}\nv_lshl_add_u32 {v}, v252, 3, {v}')
        a(f'v_bfe_u32 v252, {LANE}, 3, 1\nv_lshl_add_u32 {v}, v252, 6, {v}')

    def p2(self):
        a = self.a
        S, MD, MO, Q, OA = 32, 176, 192, 208, 216
        KA, VA = 'v232', 'v233'
        a(f'v_lshl_add_u32 v240, {WAVE}, 6, {LANE}')
        a(f's_sub_u32 {T0}, 2, {TEAM}\ns_max_i32 {T0}, {T0}, 0')
        a(f's_cmp_lt_u32 {WAVE}, {T0}\ns_cselect_b32 {T1}, {hx(NBIG >> 16)}, 0')
        a(f'v_mov_b32 v244, {T1}\nv_mov_b32 v245, 0\nv_mov_b32 v246, {T1}\nv_mov_b32 v247, 0')
        a(f'v_mov_b32 v248, 0x3f80\nv_mov_b32 v249, 0\nv_mov_b32 v250, 0x3f80\nv_mov_b32 v251, 0')
        a(f'v_lshlrev_b32 v240, 4, v240\nv_add_u32 v240, {KB + 7*KP}, v240')
        L = a.label('cr')
        a(f's_cmp_ge_u32 {WAVE}, 3\ns_cbranch_scc1 {L}')
        a.raw(f'ds_write_b128 v240, v[244:247]\nds_write_b128 v240, v[248:251] offset:{8*KP}')
        a(f'{L}:')
        a(f'v_and_b32 v240, 31, {LANE}\nv_lshrrev_b32 v241, 5, {LANE}\nv_lshlrev_b32 v242, 2, v241\nv_sub_u32 v240, v240, v242')
        a(f'v_mov_b32 v242, {hx(NBIG)}')
        for r in range(16):
            kk = 8*(r >> 2) + (r & 3)
            a(f'v_cmp_le_i32 vcc, {kk}, v240')
            a(f'v_cndmask_b32 v{MO+r}, 0, v242, vcc')
            a(f'v_sub_f32 v{MD+r}, v242, v{MO+r}')
        a(f'v_and_b32 v240, 31, {LANE}\nv_lshlrev_b32 v240, 3, v240\nv_mul_u32_u24 {KA}, {KP}, v241\nv_add_u32 {KA}, {KA}, v240')
        a(f's_lshl_b32 {T1}, {WAVE}, 8\ns_add_u32 {T2}, {T1}, {KB}\nv_add_u32 {KA}, {T2}, {KA}')
        a(f'v_bfe_u32 v240, {LANE}, 4, 1\nv_and_b32 v242, 3, {LANE}\nv_lshl_add_u32 v240, v240, 2, v242\nv_mul_u32_u24 {VA}, {KP}, v240')
        a(f'v_lshl_add_u32 {VA}, v241, 5, {VA}\nv_bfe_u32 v240, {LANE}, 2, 2\nv_lshl_add_u32 {VA}, v240, 3, {VA}')
        a(f's_add_u32 {T2}, {T1}, {VB}\nv_add_u32 {VA}, {T2}, {VA}')
        a(f'v_and_b32 v234, 31, {LANE}\nv_lshlrev_b32 v234, 3, v234\nv_lshl_add_u32 v234, v241, 10, v234')
        a(f'v_lshlrev_b32 v235, 4, {LANE}')
        a(f's_mov_b32 s58, 0x7f7f7f7f\ns_mov_b32 s59, 0x7f7f\ns_lshl_b32 {T1}, {T0}, 4\ns_lshr_b64 s[58:59], s[58:59], {T1}\ns_lshl_b64 s[58:59], s[58:59], {T1}')
        a(f's_lshl_b32 {T2}, {TEAM}, 4\ns_sub_u32 {T2}, {T2}, 32')
        a(f's_mov_b32 {T5}, {T0}')
        a.raw('s_waitcnt lgkmcnt(0)')
        self.poll(0, T2, 's[58:59]')
        self.stamp('p2_poll')
        a(f's_mul_i32 {T0}, {TEAM}, {336*1024}\ns_mul_i32 {T1}, {MEM}, 7168\ns_add_u32 {T0}, {T0}, {T1}\ns_add_u32 {T0}, {T0}, {QKV}')
        a(f's_lshl_b32 {T1}, {WAVE}, 8\ns_add_u32 {T1}, {T1}, {T0}\ns_add_u32 {T2}, {T1}, 4096')
        for q in range(4):
            a(f'buffer_load_dwordx2 {vr(Q+2*q,2)}, v234, {WS}, {T1 if q < 2 else T2} offen offset:{(q%2)*2048} sc1', 'q')
        L = a.label('kv')
        a(f's_cmp_ge_u32 {WAVE}, 3\ns_cbranch_scc1 {L}')
        a(f's_sub_u32 {T1}, 2, {WAVE}\ns_mul_i32 {T1}, {T1}, {336*1024}\ns_sub_u32 {T1}, {T0}, {T1}')
        a(f's_cmp_lt_u32 {WAVE}, {T5}\ns_cselect_b32 {T1}, {OOB}, {T1}')
        a(f's_lshl_b32 {T2}, {WAVE}, 10')
        for part, lb in ((1, KB), (2, VB)):
            for q in range(7):
                a(f's_add_u32 {T3}, {T1}, {part*112*1024 + q*1024}\ns_add_u32 m0, {T2}, {lb + q*KP}')
                a.raw(f'buffer_load_dwordx4 v235, {WS}, {T3} offen sc1 lds')
        a(f'{L}:')
        self.p2_extra_loads()
        nx = len(a.vm) - (len(a.vm) - 0)
        ex = self.n_extra
        a.raw(f's_waitcnt vmcnt({7 + ex})')
        L = a.label('q3')
        a(f's_cmp_lt_u32 {WAVE}, 3\ns_cbranch_scc1 {L}')
        a.raw(f's_waitcnt vmcnt({ex})')
        a(f'{L}:')
        a('s_barrier')
        self.stamp('p2_k')
        a(f's_mov_b32 exec_lo, 0\nv_mov_b32 v{Q+6}, 0x3f80\nv_mov_b32 v{Q+7}, 0\ns_mov_b32 exec_lo, -1')
        def kread(i):
            b = (i % 3) * 8
            return [(f'ds_read_b64 a[{b+4*p+2*s}:{b+4*p+2*s+1}], {KA} offset:{(4*p+2*s)*KP + 256*i}', f'k{i}') for p in range(2) for s in range(2)]
        self.run(kread(0)); self.run(kread(1))
        MX = 236
        def maxes(i):
            L = []
            r = S + 16*i
            for k in range(8):
                if i == 0 and k < 2: L.append(f'v_max_f32 v{MX+k}, v{r+2*k}, v{r+2*k+1}')
                else: L.append(f'v_max3_f32 v{MX+(k&1)}, v{r+2*k}, v{r+2*k+1}, v{MX+(k&1)}')
            return L
        for i in range(9):
            if i + 2 < 9: self.run(kread(i + 2))
            a.wait(lg=f'k{i}')
            b = (i % 3) * 8
            c0 = vr(MO, 16) if i == 0 else (vr(MD, 16) if i == 8 else '0')
            mm = [[f'v_mfma_f32_32x32x16_bf16 {vr(S+16*i,16)}, a[{b}:{b+3}], {vr(Q,4)}, {c0}'],
                  [f'v_mfma_f32_32x32x16_bf16 {vr(S+16*i,16)}, a[{b+4}:{b+7}], {vr(Q+4,4)}, {vr(S+16*i,16)}']]
            self.run(self.zipper(mm, maxes(i - 2) if i >= 2 else []))
        a.raw(f's_waitcnt vmcnt({ex})')
        a('s_barrier')
        def vread(i):
            b = 24 + (i % 3) * 8
            return [(f'ds_read_b64_tr_b16 a[{b+4*m+2*e}:{b+4*m+2*e+1}], {VA} offset:{256*i + 128*m + 64*e}', f'v{i}') for m in range(2) for e in range(2)]
        self.run(vread(0)); self.run(vread(1))
        self.run(maxes(7)); self.run(maxes(8))
        a(f'v_max_f32 v{MX}, v{MX}, v{MX+1}\nv_mov_b32 v{MX+1}, v{MX}\nv_permlane32_swap_b32 v{MX}, v{MX+1}\nv_max_f32 v{MX}, v{MX}, v{MX+1}')
        def soft(i):
            r = S + 16*i
            L = [f'v_pk_add_f32 {vr(r+2*k,2)}, {vr(r+2*k,2)}, {vr(MX,2)} op_sel_hi:[1,0] neg_lo:[0,1] neg_hi:[0,1]' for k in range(8)]
            L += [f'v_exp_f32 v{r+k}, v{r+k}' for k in range(16)]
            L += [f'v_cvt_pk_bf16_f32 v{r+k}, v{r+2*k}, v{r+2*k+1}' for k in range(8)]
            return L
        self.run(soft(0))
        for i in range(9):
            if i + 2 < 9: self.run(vread(i + 2))
            a.wait(lg=f'v{i}')
            b = 24 + (i % 3) * 8
            r = S + 16*i
            mm = [[f'v_mfma_f32_32x32x16_bf16 {vr(OA,16)}, a[{b}:{b+3}], {vr(r,4)}, {vr(OA,16) if i else 0}'],
                  [f'v_mfma_f32_32x32x16_bf16 {vr(OA,16)}, a[{b+4}:{b+7}], {vr(r+4,4)}, {vr(OA,16)}']]
            self.run(self.zipper(mm, soft(i + 1) if i + 1 < 9 else []))
        a(f's_lshl_b32 {T0}, {TEAM}, 1\ns_lshr_b32 {T1}, {WAVE}, 1\ns_add_u32 {T0}, {T0}, {T1}\ns_lshl_b32 {T0}, {T0}, 16')
        a(f's_lshl_b32 {T1}, {MEM}, 12\ns_add_u32 {T0}, {T0}, {T1}\ns_and_b32 {T1}, {WAVE}, 1\ns_lshl_b32 {T1}, {T1}, 9\ns_add_u32 {T0}, {T0}, {T1}\ns_add_u32 {T0}, {T0}, {O_}')
        a(f'v_mov_b32 v{MX}, v{OA+12}\nv_mov_b32 v{MX+1}, v{OA+12}\nv_permlane32_swap_b32 v{MX}, v{MX+1}\nv_rcp_f32 v{MX}, v{MX+1}')
        for k in range(8):
            a(f'v_pk_mul_f32 {vr(OA+2*k,2)}, {vr(OA+2*k,2)}, {vr(MX,2)} op_sel_hi:[1,0]')
        for k in range(8):
            a(f'v_cvt_pk_bf16_f32 v{S+k}, v{OA+2*k}, v{OA+2*k+1}')
        a(f's_mov_b32 exec_lo, 0\nv_mov_b32 v{S+6}, 0\nv_mov_b32 v{S+7}, 0\ns_mov_b32 exec_lo, -1')
        for p in range(2):
            a(f'buffer_store_dwordx4 {vr(S+4*p,4)}, {V32}, {WS}, {T0} offen offset:{p*2048} sc1', 'st')
        self.stamp('p2_done')
        self.signal(1, SLOTB, 'st')

    def p2_extra_loads(self):
        self.n_extra = 0

    def trA_addr(self, base, omap):
        a = self.a
        a(f'v_bfe_u32 v250, {LANE}, 2, 3')
        a(f'v_lshrrev_b32 v251, 5, {LANE}\nv_lshl_add_u32 v251, v251, {4 if omap else 3}, v250\nv_lshlrev_b32 v251, 7, v251')
        a(f'v_and_b32 v252, 1, {LANE}\nv_lshl_add_u32 v251, v252, 3, v251\nv_add_u32 v251, {base}, v251')
        a(f'v_and_b32 v250, 6, v250\nv_bfe_u32 v252, {LANE}, 1, 1\nv_or_b32 v250, v250, v252')
        for j in range(4):
            a(f'v_xor_b32 v252, {2*j}, v250\nv_lshl_add_u32 v{4+j}, v252, 4, v251')

    def breads(self, s, omap, NBUF, BB):
        L = []
        b = BB + 16 * (s % NBUF)
        for j in range(4):
            if omap:
                ar = 4 + (j ^ (2 if s & 1 else 0)); off = 28 * s * 128; d2 = 8 * 128
            else:
                ar = 4 + j; off = 32 * s * 128; d2 = 16 * 128
            L.append((f'ds_read_b64_tr_b16 {vr(b+4*j,2)}, v{ar} offset:{off}', f'b{s}'))
            L.append((f'ds_read_b64_tr_b16 {vr(b+4*j+2,2)}, v{ar} offset:{off+d2}', f'b{s}'))
        return L

    def small_gemm(self, nsteps, omap, abase, ACC, stats, pollargs, cinit=True, pre=None, post_loads=None):
        a = self.a
        AF, BB, NBUF = 32, 112, 8
        for s in range(NBUF): self.run(self.breads(s, omap, NBUF, BB))
        if pre: pre()
        self.poll(*pollargs)
        self.stamp('poll')
        nch = 64 if omap else 56
        a(f's_mul_i32 {T0}, {RB}, {nch*1024}\ns_add_u32 {T0}, {T0}, {abase}')
        for s in range(nsteps):
            a(f'buffer_load_dwordx4 {vr(AF+4*s,4)}, {VA16}, {WS}, {T0} offen sc1', f'a{s}')
            if s + 1 < nsteps: a(f's_add_u32 {T0}, {T0}, 4096')
        if post_loads: post_loads()
        if stats:
            for i in range(4): a(f'v_mov_b32 v{240+i}, 0')
        for s in range(nsteps):
            a.wait(vm=f'a{s}', lg=f'b{s}')
            b = BB + 16 * (s % NBUF)
            mm = [[f'v_mfma_f32_16x16x32_bf16 {vr(ACC+4*j,4)}, {vr(b+4*j,4)}, {vr(AF+4*s,4)}, {vr(ACC+4*j,4) if (s or cinit) else 0}'] for j in range(4)]
            fill = []
            if stats:
                for d in range(4):
                    fill.append(f'v_dot2c_f32_bf16 v{240+(d&1)}, {ONES}, v{AF+4*s+d}')
                    fill.append(f'v_dot2c_f32_bf16 v{242+(d&1)}, v{AF+4*s+d}, v{AF+4*s+d}')
            self.run(self.zipper(mm, fill))
            if s + NBUF < nsteps: self.run(self.breads(s + NBUF, omap, NBUF, BB))

    def unpack(self, dst, src, n):
        for k in range(n):
            self.a(f'v_lshlrev_b32 v{dst+2*k}, 16, v{src+k}\nv_and_b32 v{dst+2*k+1}, 0xffff0000, v{src+k}')

    def store_tile16(self, r, base):
        a = self.a
        a(f's_mul_i32 {T0}, {RB}, {56*1024}\ns_lshl_b32 {T1}, {CG}, 13\ns_add_u32 {T0}, {T0}, {T1}\ns_add_u32 {T0}, {T0}, {base}\ns_add_u32 {T1}, {T0}, 4096')
        a(f'buffer_store_dwordx4 {vr(r,4)}, {VA16}, {WS}, {T0} offen sc1', 'st')
        a(f'buffer_store_dwordx4 {vr(r+4,4)}, {VA16}, {WS}, {T1} offen sc1', 'st')

    def p3(self):
        a = self.a
        ACC = 96
        a(f's_lshl_b32 {T4}, {CG}, 7')
        self.load_image(W1, 896, T4, S1, 'A', 'w1')
        a.wait(vm='wo')
        a('s_barrier')
        self.trA_addr(S0, True)
        self.unpack(ACC, HPK, 8)
        a(f's_lshl_b32 {T2}, {TEAM}, 4')
        self.small_gemm(16, True, O_, ACC, False, (1, T2, '0xffff'))
        for k in range(8): a(f'v_cvt_pk_bf16_f32 v{HPK+k}, v{ACC+2*k}, v{ACC+2*k+1}')
        self.store_tile16(HPK, H_)
        self.signal(2, SLOTA, 'st')
        self.stamp('p3_sig')

    def ln_stats(self, red16):
        a = self.a
        a('v_add_f32 v240, v240, v241\nv_add_f32 v242, v242, v243')
        for sw in (['16', '32'] if red16 else ['32']):
            a('v_mov_b32 v241, v240\nv_mov_b32 v243, v242')
            a(f'v_permlane{sw}_swap_b32 v240, v241\nv_permlane{sw}_swap_b32 v242, v243')
            a('v_add_f32 v240, v240, v241\nv_add_f32 v242, v242, v243')
        a(f'v_mul_f32 v240, {hx(f2u(1/448))}, v240\nv_mul_f32 v242, {hx(f2u(1/448))}, v242')
        a('v_fma_f32 v242, -v240, v240, v242\nv_max_f32 v242, 0, v242')

    def gelu_consts(self, s):
        a = self.a
        a(f'v_mul_f32 v244, {hx(f2u(K1))}, v{s}\nv_mul_f32 v245, v{s}, v{s}\nv_mul_f32 v245, v245, v{s}\nv_mul_f32 v245, {hx(f2u(K2))}, v245\nv_rcp_f32 v246, v{s}')

    def gelu_items(self, acc, c, n, dst, tmp):
        L = []
        for g0 in range(0, n, 4):
            ks = range(g0, min(g0 + 4, n))
            for k in ks: L.append(f'v_pk_fma_f32 {vr(acc+2*k,2)}, {vr(c+2*k,2)}, v[240:241], {vr(acc+2*k,2)} op_sel_hi:[1,0,1] neg_lo:[0,1,0] neg_hi:[0,1,0]')
            for k in ks: L.append(f'v_pk_mul_f32 {vr(tmp+2*(k-g0),2)}, {vr(acc+2*k,2)}, {vr(acc+2*k,2)}')
            for k in ks: L.append(f'v_pk_fma_f32 {vr(tmp+2*(k-g0),2)}, {vr(tmp+2*(k-g0),2)}, v[244:245], v[244:245] op_sel:[0,1,0] op_sel_hi:[1,1,0]')
            for k in ks: L.append(f'v_pk_mul_f32 {vr(tmp+2*(k-g0),2)}, {vr(tmp+2*(k-g0),2)}, {vr(acc+2*k,2)}')
            for k in ks:
                L.append(f'v_exp_f32 v{tmp+2*(k-g0)}, v{tmp+2*(k-g0)}'); L.append(f'v_exp_f32 v{tmp+2*(k-g0)+1}, v{tmp+2*(k-g0)+1}')
            for k in ks: L.append(f'v_pk_fma_f32 {vr(tmp+2*(k-g0),2)}, {vr(tmp+2*(k-g0),2)}, v[246:247], v[246:247] op_sel_hi:[1,0,0]')
            for k in ks:
                L.append(f'v_rcp_f32 v{tmp+2*(k-g0)}, v{tmp+2*(k-g0)}'); L.append(f'v_rcp_f32 v{tmp+2*(k-g0)+1}, v{tmp+2*(k-g0)+1}')
            for k in ks: L.append(f'v_pk_mul_f32 {vr(acc+2*k,2)}, {vr(acc+2*k,2)}, {vr(tmp+2*(k-g0),2)}')
            for k in ks: L.append(f'v_cvt_pk_bf16_f32 v{dst+k}, v{acc+2*k}, v{acc+2*k+1}')
        return L

    def p4(self):
        a = self.a
        ACC = 96
        a(f's_lshl_b32 {T4}, {CG}, 7')
        self.load_image(W2, 896, T4, S0, 'A', 'w2')
        self.trA_addr(S1, False)
        for d in range(4): a(f'v_mov_b32 v{244+d}, {ONES}')
        NB = 4
        for s in range(NB): self.run(self.breads(s, False, NB, 112))
        for s in range(14):
            a.wait(lg=f'b{s}')
            b = 112 + 16 * (s % NB)
            for j in range(4):
                a(f'v_mfma_f32_16x16x32_bf16 {vr(RES+4*j,4)}, {vr(b+4*j,4)}, v[244:247], {vr(RES+4*j,4) if s else 0}')
            if s + NB < 14: self.run(self.breads(s + NB, False, NB, 112))
        a(f's_lshl_b32 {T2}, {RB}, 3')
        self.small_gemm(14, False, H_, ACC, True, (2, T2, '0x7f'), cinit=False)
        self.ln_stats(True)
        a(f'v_add_f32 v243, {hx(f2u(EPS))}, v242\nv_rsq_f32 v248, v243')
        a(f'v_mul_f32 v243, v248, v248\nv_mov_b32 v249, {hx(f2u(EPS))}\nv_fmac_f32 v249, v243, v242\nv_rsq_f32 v249, v249\nv_mul_f32 v249, v249, v248')
        self.gelu_consts(249)
        self.run(self.gelu_items(ACC, RES, 8, 32, 48))
        a(f'v_and_b32 v250, 15, {LANE}\ns_lshl_b32 {T0}, {RB}, 6\ns_lshl_b32 {T1}, {WAVE}, 4\ns_add_u32 {T0}, {T0}, {T1}\nv_add_u32 v250, {T0}, v250')
        a(f'v_lshrrev_b32 v251, 4, {LANE}\nv_lshlrev_b32 v251, 10, v251')
        a(f's_lshl_b32 {T3}, {CG}, 13\ns_add_u32 {T3}, {T3}, {G_}\ns_add_u32 {T4}, {T3}, 4096')
        for j in range(4):
            a(f's_lshl_b32 {T0}, {CG}, 2\ns_add_u32 {T0}, {T0}, {j}\ns_mov_b32 {T1}, 1')
            a(f's_cmp_ge_u32 {T0}, 7\ns_cselect_b32 {T1}, -1, {T1}\ns_cmp_ge_u32 {T0}, 14\ns_cselect_b32 {T1}, 2, {T1}\ns_cmp_ge_u32 {T0}, 21\ns_cselect_b32 {T1}, -2, {T1}')
            a(f'v_add_u32 v252, {T1}, v250\nv_cmp_gt_u32 vcc, 2048, v252\nv_and_b32 v252, 2047, v252')
            a(f'v_lshrrev_b32 v253, 6, v252\nv_mul_u32_u24 v253, {56*1024}, v253\nv_and_b32 v252, 63, v252\nv_lshl_add_u32 v253, v252, 4, v253\nv_add_u32 v{60+j}, v253, v251')
            a(f'v_cndmask_b32 v{32+2*j}, 0, v{32+2*j}, vcc\nv_cndmask_b32 v{33+2*j}, 0, v{33+2*j}, vcc')
            a(f'buffer_store_dwordx2 {vr(32+2*j,2)}, v{60+j}, {WS}, {T3 if j < 2 else T4} offen offset:{(j&1)*8} sc1', 'st')
        self.unpack(RES, HPK, 8)
        for k in range(8):
            a(f'v_pk_add_f32 {vr(RES+2*k,2)}, {vr(RES+2*k,2)}, v[240:241] op_sel_hi:[1,0] neg_lo:[0,1] neg_hi:[0,1]')
            a(f'v_pk_mul_f32 {vr(RES+2*k,2)}, {vr(RES+2*k,2)}, v[248:249] op_sel_hi:[1,0]')
        self.signal(3, SLOTA, 'st')
        self.stamp('p4_sig')

    def p5(self):
        a = self.a
        a(f's_lshl_b32 {T4}, {MEM}, 8')
        self.load_image(W3, 3584, T4, S1, 'B', 'w3a')
        self.trA_addr(S0, False)
        a(f's_lshl_b32 {T2}, {RB}, 3\ns_sub_u32 {T2}, {T2}, 8')
        self.small_gemm(14, False, G_, RES, False, (3, T2, '0x7f7f7f'))
        for k in range(8): a(f'v_cvt_pk_bf16_f32 v{32+k}, v{RES+2*k}, v{RES+2*k+1}')
        self.store_tile16(32, X1_)
        self.unpack(48, HPK, 8)
        for k in range(8): a(f'v_pk_add_f32 {vr(RES+2*k,2)}, {vr(RES+2*k,2)}, {vr(48+2*k,2)}')
        self.signal(4, SLOTA, 'st')
        self.stamp('p5_sig')

    def p6(self):
        a = self.a
        AF, ACC, WBF, CT, TMP, PK = 32, 144, 208, 224, 248, 8
        a(f's_lshl_b32 {T4}, {MEM}, 8\ns_add_u32 {T4}, {T4}, 128')
        self.load_image(W3, 3584, T4, S0, 'B', 'w3b')
        self.trB_addr('v4', 4)
        a(f'v_xor_b32 v5, 64, v4\nv_add_u32 v6, {S1}, v4\nv_add_u32 v7, {S1}, v5')
        areg = [6, 7, 4, 5]
        def wread(t, i, slot, tag):
            off = (32 * (i >> 1) + 8 * (i & 1)) * 128
            b = 224 + 4 * slot
            return [(f'ds_read_b64_tr_b16 a[{b}:{b+1}], v{areg[t]} offset:{off}', tag), (f'ds_read_b64_tr_b16 a[{b+2}:{b+3}], v{areg[t]} offset:{off+2048}', tag)]
        a.wait(vm='w3b')
        a('s_barrier')
        a(f's_and_b32 {T0}, {WAVE}, 1\ns_lshl_b32 {T0}, {T0}, 6\ns_cmp_lt_u32 {WAVE}, 2\ns_cselect_b32 {T1}, {S1}, 0')
        a(f'v_xor_b32 v250, {T0}, v4\nv_add_u32 v250, {T1}, v250')
        for d in range(4): a(f'v_mov_b32 v{244+d}, {ONES}')
        def cread(i):
            off = (32 * (i >> 1) + 8 * (i & 1)) * 128; b = 224 + 4 * (i % 8)
            return [(f'ds_read_b64_tr_b16 a[{b}:{b+1}], v250 offset:{off}', f'c{i}'), (f'ds_read_b64_tr_b16 a[{b+2}:{b+3}], v250 offset:{off+2048}', f'c{i}')]
        for i in range(6): self.run(cread(i))
        for i in range(28):
            a.wait(lg=f'c{i}')
            b = 224 + 4 * (i % 8)
            a(f'v_mfma_f32_32x32x16_bf16 {vr(ACC,16)}, a[{b}:{b+3}], v[244:247], {vr(ACC,16) if i else 0}')
            if i + 6 < 28: self.run(cread(i + 6))
        a(f'v_lshrrev_b32 v251, 5, {LANE}\nv_lshlrev_b32 v251, 6, v251\nv_add_u32 v251, {CS}, v251')
        a(f's_lshl_b32 {T0}, {WAVE}, 7\nv_add_u32 v252, {T0}, v251')
        a('s_mov_b32 exec_lo, 1\ns_mov_b32 exec_hi, 1')
        for q in range(4): a(f'ds_write_b128 v252, {vr(ACC+4*q,4)} offset:{16*q}', 'cs')
        a('s_mov_b64 exec, -1')
        a('v_mov_b32 v0, v251')
        for i in range(4): self.run(wread(0, i, 2*i, f'w{i}') + wread(1, i, 2*i+1, f'w{i}'))
        a.wait(lg='cs')
        a(f's_lshl_b32 {T2}, {TEAM}, 4')
        self.poll(4, T2, '0x7f7f')
        self.stamp('p6_poll')
        a(f's_lshl_b32 {T4}, {TEAM}, 1\ns_lshr_b32 {T1}, {WAVE}, 1\ns_add_u32 {T4}, {T4}, {T1}')
        a(f's_and_b32 {T5}, {WAVE}, 1\ns_lshl_b32 {T5}, {T5}, 9')
        a(f's_mul_i32 {T0}, {T4}, {56*1024}\ns_add_u32 {T0}, {T0}, {T5}\ns_add_u32 {T0}, {T0}, {X1_}')
        for i in range(28):
            a(f'buffer_load_dwordx4 {vr(AF+4*i,4)}, {V32}, {WS}, {T0} offen offset:{(i&1)*2048} sc1', f'a{i}')
            if i & 1 and i < 27: a(f's_add_u32 {T0}, {T0}, 4096')
        for i in range(4): a(f'v_mov_b32 v{240+i}, 0')
        a(f's_mul_i32 {T3}, {T4}, {224*1024}\ns_add_u32 {T3}, {T3}, {T5}\ns_lshl_b32 {T1}, {MEM}, 14\ns_add_u32 {T3}, {T3}, {T1}\ns_add_u32 {T3}, {T3}, {U_}')
        p2 = [(2, i) for i in range(28)] + [(3, i) for i in range(28)]
        for i in range(28):
            a.wait(vm=f'a{i}', lg=f'w{i}')
            sl = 2 * (i % 4)
            mm = [[f'v_mfma_f32_32x32x16_bf16 {vr(ACC+16*t,16)}, a[{224+4*(sl+t)}:{227+4*(sl+t)}], {vr(AF+4*i,4)}, {vr(ACC+16*t,16) if i else 0}'] for t in range(2)]
            fill = []
            for d in range(4):
                fill.append(f'v_dot2c_f32_bf16 v{240+(d&1)}, {ONES}, v{AF+4*i+d}')
                fill.append(f'v_dot2c_f32_bf16 v{242+(d&1)}, v{AF+4*i+d}, v{AF+4*i+d}')
            self.run(self.zipper(mm, fill))
            if i + 4 < 28: self.run(wread(0, i + 4, sl, f'w{i+4}') + wread(1, i + 4, sl + 1, f'w{i+4}'))
            else:
                n = 2 * (i - 24)
                for q in range(2): self.run(wread(p2[n+q][0], p2[n+q][1], (n + q) % 8, f'y{n+q}'))
        self.stamp('p6_pass1')
        def ctile(t, dst): return [(f'ds_read_b128 {vr(dst+4*q,4)}, v0 offset:{t*128+16*q}', f'ct{t}') for q in range(4)]
        CTS = [208, 224]
        def epi(t):
            c = CTS[t & 1]
            L = [self.W(lg=f'ct{t}')]
            L += self.gelu_items(ACC + 16*t, c, 8, PK, TMP)
            if t + 2 < 4: L += ctile(t + 2, c)
            L.append(f's_add_u32 {T0}, {T3}, {t*4096}')
            for p in range(2): L.append((f'buffer_store_dwordx4 {vr(PK+4*p,4)}, {V32}, {WS}, {T0} offen offset:{p*2048} sc1', 'st'))
            return L
        self.run(ctile(0, CTS[0]) + ctile(1, CTS[1]))
        def stats():
            self.ln_stats(False)
            a(f'v_add_f32 v243, {hx(f2u(EPS))}, v242\nv_rsq_f32 v243, v243')
            self.gelu_consts(243)
        mm = []
        for n, (t, i) in enumerate(p2):
            b = 224 + 4 * (n % 8)
            g = [self.W(lg=f'y{n}'), f'v_mfma_f32_32x32x16_bf16 {vr(ACC+16*t,16)}, a[{b}:{b+3}], {vr(AF+4*i,4)}, {vr(ACC+16*t,16) if i else 0}']
            if n + 8 < 56: g += wread(p2[n+8][0], p2[n+8][1], n % 8, f'y{n+8}')
            mm.append(g)
        fill1 = [stats] + epi(0) + epi(1)
        e2 = epi(2)
        self.run(self.zipper(mm[:40], fill1))
        self.run(self.zipper(mm[40:], e2))
        self.run(epi(3))
        self.stamp('p6_done')
        self.signal(5, SLOTB, 'st')

    def w4_issue(self, steps):
        a = self.a
        self.wdma_voff('v249', 896, 'B')
        a(f's_mul_i32 {T0}, {WAVE}, {448*896}\ns_lshl_b32 {T1}, {CG}, 7\ns_add_u32 {T0}, {T0}, {T1}')
        a(f's_mul_i32 {T1}, {WAVE}, {self.w4_wstride}\ns_add_u32 {T1}, {T1}, {self.w4_base}')
        for n, t in enumerate(steps):
            for e in range(4):
                a(f's_add_u32 {T2}, {T0}, {(32*t + 8*e)*896}')
                self.dma('v249', W4, T2, f's_add_u32 m0, {T1}, {n*4096 + e*1024}', 'w4')
    def w4_read(self, steps):
        a = self.a
        a.wait(vm='w4')
        self.trB_addr('v250', 4)
        a(f's_mul_i32 {T1}, {WAVE}, {self.w4_wstride}\ns_add_u32 {T1}, {T1}, {self.w4_base}\nv_add_u32 v250, {T1}, v250\nv_xor_b32 v251, 64, v250')
        for n, t in enumerate(steps):
            for p in range(2):
                for tn in range(2):
                    b = ((2*t + p) * 2 + tn) * 4
                    off = n*4096 + p*2048
                    a(f'ds_read_b64_tr_b16 a[{b}:{b+1}], v{250+tn} offset:{off}', 'w4r')
                    a(f'ds_read_b64_tr_b16 a[{b+2}:{b+3}], v{250+tn} offset:{off+1024}', 'w4r')
        a.wait(lg='w4r')

    def p7(self):
        a = self.a
        ACC, AF, NS = 32, 96, 18
        self.w4_base, self.w4_wstride = 0, 28672
        self.w4_issue(range(0, 7)); self.w4_read(range(0, 7))
        self.w4_issue(range(7, 14)); self.w4_read(range(7, 14))
        RP = 16 * 1040
        a('s_barrier')
        a(f'v_lshrrev_b32 v250, 4, {LANE}\nv_mul_u32_u24 v250, 1040, v250\nv_and_b32 v251, 15, {LANE}\nv_lshl_add_u32 v250, v251, 4, v250')
        a(f's_lshl_b32 {T0}, {WAVE}, 8\ns_add_u32 {T0}, {T0}, {4*RP}\nv_add_u32 v250, {T0}, v250')
        for j in range(4): a(f'ds_write_b128 v250, {vr(RES+4*j,4)} offset:{4*j*1040}', 'rs')
        a(f's_lshl_b32 {T2}, {TEAM}, 4')
        self.poll(5, T2, '0x3fff')
        self.stamp('p7_poll')
        a(f's_mul_i32 {T0}, {RB}, {224*1024}\ns_mul_i32 {T1}, {WAVE}, {56*1024}\ns_add_u32 {T0}, {T0}, {T1}\ns_add_u32 {T0}, {T0}, {U_}')
        def aload(i):
            L = []
            if i and i % 2 == 0: L.append(f's_add_u32 {T0}, {T0}, 4096')
            for tm in range(2):
                r = AF + 8 * (i % NS) + 4 * tm
                L.append((f'buffer_load_dwordx4 {vr(r,4)}, {V32}, {WS}, {T0} offen offset:{(i&1)*2048 + tm*512} sc1', f'a{i}'))
            return L
        for i in range(NS): self.run(aload(i))
        a(f'v_lshrrev_b32 v250, 5, {LANE}\nv_mul_u32_u24 v250, 1040, v250\nv_and_b32 v251, 31, {LANE}\nv_lshl_add_u32 v250, v251, 4, v250')
        a(f's_mul_i32 {T1}, {WAVE}, {RP}\nv_add_u32 v250, {T1}, v250')
        a(f'v_and_b32 v251, 7, {LANE}\nv_mul_u32_u24 v252, 2080, v251\nv_lshrrev_b32 v253, 3, {LANE}\nv_lshl_add_u32 v252, v253, 4, v252')
        a(f's_lshl_b32 {T1}, {WAVE}, 8\nv_add_u32 v252, {T1}, v252\nv_add_u32 v249, {3*RP}, v252')
        a(f'v_mul_u32_u24 v253, 896, v253\nv_lshl_add_u32 v253, v251, 4, v253')
        for i in range(28):
            a.wait(vm=f'a{i}')
            for tm in range(2):
                for tn in range(2):
                    b = (i * 2 + tn) * 4; r = AF + 8 * (i % NS) + 4 * tm; c = ACC + 16 * (2*tm + tn)
                    a(f'v_mfma_f32_32x32x16_bf16 {vr(c,16)}, a[{b}:{b+3}], {vr(r,4)}, {vr(c,16) if i else 0}')
            if i + NS < 28: self.run(aload(i + NS))
        self.stamp('p7_mm')
        for tm in range(2):
            for tn in range(2):
                for q in range(4):
                    a(f'ds_write_b128 v250, {vr(ACC+16*(2*tm+tn)+4*q,4)} offset:{(8*tn+2*q)*1040 + tm*512}', 'rd')
        a.wait(lg='all')
        a('s_barrier')
        R = 96
        for tg in range(2):
            for e in range(2):
                for w in range(5):
                    ar, off = ('v252', w * RP) if w < 3 else ('v249', (w - 3) * RP)
                    a(f'ds_read_b128 {vr(R+((tg*2+e)*5+w)*4,4)}, {ar} offset:{off + e*1040 + tg*128}', f'r{tg}')
        a(f's_lshl_b32 {T0}, {RB}, 2\ns_add_u32 {T0}, {T0}, {WAVE}\ns_mul_i32 {T0}, {T0}, {16*896}\ns_lshl_b32 {T1}, {CG}, 7\ns_add_u32 {T0}, {T0}, {T1}\ns_add_u32 {T1}, {T0}, {8*896}')
        for tg in range(2):
            a.wait(lg=f'r{tg}')
            for e in range(2):
                b = R + (tg*2+e)*20
                for hh in range(2):
                    a(f'v_pk_add_f32 {vr(b+2*hh,2)}, {vr(b+2*hh,2)}, {vr(b+4+2*hh,2)}\nv_pk_add_f32 {vr(b+8+2*hh,2)}, {vr(b+8+2*hh,2)}, {vr(b+12+2*hh,2)}')
                for hh in range(2):
                    a(f'v_pk_add_f32 {vr(b+2*hh,2)}, {vr(b+2*hh,2)}, {vr(b+16+2*hh,2)}')
                for hh in range(2):
                    a(f'v_pk_add_f32 {vr(b+2*hh,2)}, {vr(b+2*hh,2)}, {vr(b+8+2*hh,2)}')
                for hh in range(2):
                    a(f'v_cvt_pk_bf16_f32 v{32+4*tg+2*e+hh}, v{b+2*hh}, v{b+2*hh+1}')
            a(f'buffer_store_dwordx4 {vr(32+4*tg,4)}, v253, {OUT}, {T0 if tg == 0 else T1} offen', 'st')
        self.stamp('p7_done')

    def helper_tail(self):
        a = self.a
        a(f's_cmp_lg_u32 {SLOTB}, 15\ns_cbranch_scc1 L_fin')
        for q in range(4):
            a(f's_mov_b32 {T2}, {64*q}')
            self.poll(1, T2, '-1')
        a(f's_cmp_lg_u32 {WAVE}, 0\ns_cbranch_scc1 L_fin')
        a(f'v_mov_b32 v254, {TAG}\nv_mov_b32 v255, 0\ns_mov_b64 exec, 1')
        a.raw(f'buffer_store_dword v254, v255, {WS}, 0 offen sc1')
        a('s_mov_b64 exec, -1')
        a('s_branch L_fin')

    def build(self):
        a = self.a
        self.prologue()
        a(f's_cmp_ge_u32 {MEM}, 14\ns_cbranch_scc1 L_helper1')
        vm0 = list(a.vm)
        self.p1()
        a(f's_lshl_b32 {T4}, {CG}, 7')
        self.load_image(WO, 896, T4, S0, 'A', 'wo')
        a('s_branch L_att')
        a('L_helper1:')
        vm1 = list(a.vm); a.vm = vm0
        self.get_tag()
        a.vm = vm1
        a('L_att:')
        if self.stop >= 2:
            self.p2()
            a(f's_cmp_ge_u32 {MEM}, 14\ns_cbranch_scc1 L_helper2')
            for n, f in ((3, self.p3), (4, self.p4), (5, self.p5), (6, self.p6), (7, self.p7)):
                if self.stop >= n: f()
            a('s_branch L_fin')
            a('L_helper2:')
            self.helper_tail()
        a('L_fin:')
        if self.stamps:
            a.raw('s_waitcnt lgkmcnt(0)')
            a(f's_cmp_lg_u32 {WAVE}, 0\ns_cbranch_scc1 L_end')
            a(f's_lshl_b32 {T0}, s2, 8\ns_add_u32 {T0}, {T0}, {STAMPS}\ns_mov_b64 exec, 1\nv_mov_b32 v255, 0')
            for i in range(self.nstamp):
                a(f'v_mov_b32 v254, s{100-2*i}')
                a.raw(f'buffer_store_dword v254, v255, {WS}, {T0} offen offset:{4*i}')
        a('L_end:')
        a('s_endpgm')
        hdr = open('cdna_kernels/' + NAME + '.s.ref').read().split('; Override')[0]
        hdr += '; Generated by a hand-written generator script (persistent fused kernel, one workgroup per CU).\n'
        hdr += '; @launch grid=(256,1,1) block=(256,1,1) lds=163840\n'
        hdr += f'.amdgcn_target "amdgcn-amd-amdhsa--gfx950"\n.text\n.globl {NAME}_kernel\n.p2align 8\n.type {NAME}_kernel,@function\n{NAME}_kernel:\n'
        kd = f'''
.section .rodata,"a"
.p2align 6
.amdhsa_kernel {NAME}_kernel
  .amdhsa_next_free_vgpr 512
  .amdhsa_next_free_sgpr 102
  .amdhsa_accum_offset 256
  .amdhsa_group_segment_fixed_size 0
  .amdhsa_kernarg_size 88
  .amdhsa_user_sgpr_count 2
  .amdhsa_user_sgpr_kernarg_segment_ptr 1
  .amdhsa_system_sgpr_workgroup_id_x 1
.end_amdhsa_kernel
'''
        return hdr + a.text() + kd

if __name__ == '__main__':
    import argparse
    ap = argparse.ArgumentParser()
    ap.add_argument('-o', default='cdna_kernels/' + NAME + '.s')
    ap.add_argument('--stop', type=int, default=99)
    ap.add_argument('--stamps', action='store_true')
    args = ap.parse_args()
    g = Gen(args.stop, args.stamps)
    txt = g.build()
    open(args.o, 'w').write(txt)
    if args.stamps: open(args.o + '.stamps', 'w').write('\n'.join(g.stamp_names))
    print('instructions', len(g.a.ins), 'auto nops', g.a.nops, file=sys.stderr)
```

```python
import sys, struct, math
sys.path.insert(0, 'gen')
from asm import Asm, vr

NAME = 'sequential_preLN__sliding_block__mixer_s_mlp__prompt'
def f2u(x): return struct.unpack('<I', struct.pack('<f', x))[0]
def hx(x): return '0x%08x' % (x & 0xffffffff)
def hf(x): return hx(f2u(x))

FLAGS = 0x10000
QKV, O_, H_, G_, X1_, U_ = 0x100000, 0x700000, 0x900000, 0xB00000, 0xD00000, 0xF00000
STH, STX = 0x80000, 0xA0000
STAMPS = 0x2000000
OOB = 0x40000000
S0, S1, S2 = 0, 57344, 114688
KP = 3104
KB, VB = S1, S1 + 8 * KP
CS = S2 + 49152 - 1024
XP = 912
WSL = 64 * XP
RSD = WSL + 4 * 24576
WS, XS, WQ, WO, W1, W2, W3, W4, OUT = 's[4:7]', 's[8:11]', 's[12:15]', 's[16:19]', 's[20:23]', 's[24:27]', 's[28:31]', 's[32:35]', 's[36:39]'
TEAM, MEM, RB, CG, WAVE, TAG, RH, SLOTA, SLOTB = 's40', 's41', 's42', 's43', 's44', 's45', 's46', 's47', 's3'
ONES, LO1, HI1, FL0 = 's48', 's49', 's50', 's51'
T0, T1, T2, T3, T4, T5, T6, T7 = 's52', 's53', 's54', 's55', 's56', 's57', 's58', 's59'
D0, D1 = 's64', 's65'
WV14, WV12, IMG9, W4O, IMG3, TB16, STO, RB57 = 's66', 's67', 's68', 's69', 's70', 's71', 's72', 's73'
NSTAMP = 14
VO = 248
aA0, aB0, aVA, aVB, aVC = 'a248', 'a249', 'a250', 'a251', 'a252'
NBIG = f2u(-1e30)
EPS = 1e-5
QSCALE = (28 ** -0.5) * math.log2(math.e)
K1 = -2 * math.sqrt(2 / math.pi) * math.log2(math.e)
K2 = K1 * 0.044715
LANE, VA16, V32 = 'v1', 'v2', 'v3'
HPK = 8
RES = 16

def S(text): return [l.strip() for l in text.split('\n') if l.strip()]
def flat(G): return [x for g in G for x in g]
def cost(it):
    if callable(it): return 4
    t = it[0] if isinstance(it, tuple) else it
    if t.startswith('v_mfma'): return 24 if '32x32' in t else 10
    if t.startswith(('v_exp', 'v_rcp', 'v_rsq')): return 8
    if t.startswith('ds_read_b128') or t.startswith('ds_write_b128'): return 16
    if t.startswith('ds_'): return 8
    return 4
def weave(main, units, gap=64, first=0):
    out = []; acc = gap - first; units = list(units)
    for it in main:
        if units and acc >= gap:
            out += units.pop(0); acc = 0
        out.append(it); acc += cost(it)
    return out, units

class Gen:
    def __init__(self):
        self.a = Asm()
        self.stamps = False
        self.nstamp = 0
        self.stamp_names = []
        self.ph = 'p0'
        self.sel = []
        self.opt = {}

    def stamp(self, name):
        name = self.ph + '.' + name
        if not self.stamps: return
        if name != 'p0.start' and not any(name.startswith(p) for p in self.sel): return
        i = self.nstamp; self.nstamp += 1
        assert i < NSTAMP
        self.stamp_names.append(name)
        self.a(f's_memtime s[{100-2*i}:{101-2*i}]')
    def ST(self, name): return lambda: self.stamp(name)

    def run(self, items):
        for it in items:
            if callable(it): it()
            elif isinstance(it, tuple): self.a(it[0], it[1])
            else: self.a(it)

    def zipper(self, main, fill):
        n = len(main); out = []; k = 0
        for i, g in enumerate(main):
            out += g
            upto = (len(fill) * (i + 1)) // n
            out += fill[k:upto]; k = upto
        return out

    def W(self, vm=None, lg=None): return lambda: self.a.wait(vm=vm, lg=lg)

    def WN(self, tag, n, lg=None):
        def f():
            assert self.a.cnt.get(tag, 0) == n, (tag, self.a.cnt.get(tag, 0), n)
            self.a.wait(vm=tag, lg=lg)
        return f

    def finish(self, phase, slot, work=[], units=[], split=800, post=[]):
        a = self.a
        self.stamp('st')
        if work or units:
            a.wait(lg='all')
            a('s_barrier')
        L, left = weave(work, units)
        L += flat(left)
        acc = 0; cut = len(L); nd = 0
        for i, it in enumerate(L):
            t = it[0] if isinstance(it, tuple) else (it if isinstance(it, str) else '')
            if t.startswith('buffer_load'): nd += 1
            acc += cost(it)
            if acc >= split or nd > 9: cut = i; break
        self.run(L[:cut])
        self.stamp('bg1')
        a(f's_lshl_b32 {FL0}, {slot}, 8\ns_add_u32 {FL0}, {FL0}, {FLAGS + phase * 65536}')
        a(f'v_mov_b32 v254, {TAG}\nv_lshlrev_b32 v255, 2, {LANE}')
        a.wait(vm='st', lg=(None if (work or units) else 'all'))
        self.stamp('drain')
        a('s_barrier')
        self.stamp('zflag')
        Lb = a.label('sig')
        a(f's_cmp_lg_u32 {WAVE}, 0\ns_cbranch_scc1 {Lb}')
        a('s_mov_b32 exec_hi, 0')
        a.raw(f'buffer_store_dword v254, v255, {WS}, {FL0} offen sc1')
        a('s_mov_b32 exec_hi, -1')
        a(f'{Lb}:')
        self.run(L[cut:])
        self.run(post)
        self.stamp('bg2')

    def poll(self, phase, base, mask):
        a = self.a
        self.stamp('prepoll')
        L = a.label('pskip'); P = a.label('poll'); K = a.label('pok')
        a(f's_cmp_lg_u32 {WAVE}, 0\ns_cbranch_scc1 {L}')
        a(f'v_add_u32 v254, {base}, {LANE}\nv_and_b32 v254, 255, v254\nv_lshlrev_b32 v254, 8, v254')
        a(f's_mov_b32 {T0}, {FLAGS + phase * 65536}\ns_mov_b32 {T1}, 300000')
        a(f's_mov_b64 exec, {mask}')
        a(f'{P}:')
        a.raw(f'buffer_load_dword v255, v254, {WS}, {T0} offen sc1')
        a.raw('s_waitcnt vmcnt(0)')
        a(f'v_cmp_ne_u32 vcc, {TAG}, v255')
        a(f's_sub_u32 {T1}, {T1}, 1')
        a(f's_cbranch_vccz {K}')
        a(f's_cmp_lg_u32 {T1}, 0\ns_cbranch_scc1 {P}')
        a(f'{K}:')
        a('s_mov_b64 exec, -1')
        a(f'{L}:')
        a('s_barrier')
        self.stamp('zpoll')

    def voff_calc(self, v, pitch, typ):
        L = [f'v_lshrrev_b32 v252, 3, {LANE}', f'v_mul_u32_u24 {v}, {pitch}, v252']
        if typ == 'A': L += [f'v_lshrrev_b32 v252, 4, {LANE}', 'v_lshlrev_b32 v252, 1, v252']
        else: L += [f'v_bfe_u32 v252, {LANE}, 4, 1', 'v_lshlrev_b32 v252, 2, v252']
        L += [f'v_and_b32 v253, 7, {LANE}', 'v_xor_b32 v252, v252, v253', f'v_lshl_add_u32 {v}, v252, 4, {v}']
        return L
    def dma_units(self, srd, pitch, stash, src, srcadd, dst, dstadd, n, tag, pre=[]):
        U = []
        for i in range(n):
            u = []
            if i == 0:
                u += pre + [f'v_accvgpr_read_b32 v{VO}, {stash}', f's_add_u32 {D0}, {src}, {srcadd}']
                u += [f'v_add_u32 v{VO+k}, {k*(8*pitch-1024)}, v{VO}' for k in range(1, 4)]
            if i % 4 == 0:
                u.append(f's_add_u32 m0, {dst}, {dstadd + i*1024}')
                if i: u.append(f's_add_u32 {D0}, {D0}, {32*pitch}')
            u.append((f'buffer_load_dwordx4 v{VO+(i&3)}, {srd}, {D0} offen offset:{(i&3)*1024} lds', tag))
            U.append(u)
        return U
    def img9(self, srd, base, tag): return self.dma_units(srd, 896, aVA, IMG9, 0, WV14, base, 14, tag)
    def img3(self, col, base, tag): return self.dma_units(W3, 3584, aVC, IMG3, col, WV14, base, 14, tag)
    W4R = [(0, 1, 2), (3, 4, 5), (6, 7, 8), (9, 10, 11), (12, 13)]
    def w4_units(self, rnd):
        t = self.W4R[rnd]
        return self.dma_units(W4, 896, aVB, W4O, 32*t[0]*896, WV12, 0, 4*len(t), f'w4_{rnd}', pre=[self.W(lg='w4r')])
    def w4_read(self, rnd):
        L = [f'v_accvgpr_read_b32 v253, {aB0}', f'v_add_u32 v253, {WV12}, v253', 'v_xor_b32 v252, 64, v253', self.WN(f'w4_{rnd}', 4*len(self.W4R[rnd]))]
        for n, t in enumerate(self.W4R[rnd]):
            for p in range(2):
                for tn in range(2):
                    b = ((2*t + p) * 2 + tn) * 4
                    off = n*4096 + p*2048
                    L.append((f'ds_read_b64_tr_b16 a[{b}:{b+1}], v{253-tn} offset:{off}', 'w4r'))
                    L.append((f'ds_read_b64_tr_b16 a[{b+2}:{b+3}], v{253-tn} offset:{off+1024}', 'w4r'))
        return L

    def prologue(self):
        a = self.a
        a('s_load_dwordx16 s[48:63], s[0:1], 0\ns_load_dwordx2 s[36:37], s[0:1], 64\ns_load_dwordx2 s[4:5], s[0:1], 80')
        a('s_cmp_ge_u32 s2, 256\ns_cbranch_scc1 L_end')
        self.stamp('start')
        if self.stamps: a('s_memrealtime vcc')
        a(f'v_and_b32 {LANE}, 63, v0\nv_lshlrev_b32 v40, 7, v0\nv_lshrrev_b32 v0, 6, v0')
        a(f's_and_b32 {TEAM}, s2, 7\ns_lshl_b32 {TEAM}, {TEAM}, 1\ns_lshr_b32 {MEM}, s2, 7\ns_add_u32 {TEAM}, {TEAM}, {MEM}')
        a(f's_bfe_u32 {MEM}, s2, 0x40003')
        a(f'v_readfirstlane_b32 {WAVE}, v0')
        a(f's_cmp_ge_u32 {MEM}, 7\ns_cselect_b32 {RH}, 1, 0\ns_mul_i32 {CG}, {RH}, 7\ns_sub_u32 {CG}, {MEM}, {CG}')
        a(f's_lshl_b32 {RB}, {TEAM}, 1\ns_add_u32 {RB}, {RB}, {RH}')
        a(f'v_lshrrev_b32 v250, 3, {LANE}\nv_and_b32 v251, 7, {LANE}\nv_mul_u32_u24 v239, 896, v250\nv_lshl_add_u32 v239, v251, 4, v239')
        a(f's_lshl_b32 {D0}, {RB}, 2\ns_add_u32 {D0}, {D0}, {WAVE}\ns_mul_i32 {D0}, {D0}, {16*896}\ns_add_u32 {D1}, {D0}, {8*896}')
        a(f's_lshl_b32 s66, {CG}, 7\ns_add_u32 s67, s66, {D1}\ns_add_u32 s66, s66, {D0}')
        a(f's_mov_b32 s10, {2048*896}\ns_mov_b32 s11, 0x20000\ns_mov_b32 s14, {448*2688}\ns_mov_b32 s15, 0x20000')
        a('s_mov_b32 s6, 0x10000000\ns_mov_b32 s7, 0x20000\nv_mov_b32 v255, 0')
        a(f's_lshl_b32 s68, {TEAM}, 1\ns_add_u32 s68, s68, {MEM}\ns_sub_u32 s68, s68, 14\ns_mul_i32 s68, s68, {294*128}')
        a(f's_cmp_ge_u32 {MEM}, 14')
        a.raw('s_waitcnt lgkmcnt(0)')
        a('s_mov_b32 s8, s48\ns_mov_b32 s9, s49\ns_mov_b32 s12, s50\ns_mov_b32 s13, s51')
        if self.stamps: a('s_mov_b32 s101, vcc_lo')

    def common_setup(self):
        L = []
        for base, src, size in [(16, 52, 448*896), (20, 56, 448*896), (24, 58, 448*896), (28, 60, 448*3584), (32, 62, 1792*896)]:
            L += S(f's_mov_b32 s{base}, s{src}\ns_mov_b32 s{base+1}, s{src+1}\ns_mov_b32 s{base+2}, {size}\ns_mov_b32 s{base+3}, 0x20000')
        L += S(f"""s_mov_b32 s38, {2048*896}
            s_mov_b32 s39, 0x20000
            s_mov_b32 {ONES}, 0x3f803f80
            s_mov_b32 {LO1}, 0x00003f80
            s_mov_b32 {HI1}, 0x3f800000
            s_lshl_b32 {SLOTA}, {RB}, 3
            s_add_u32 {SLOTA}, {SLOTA}, {CG}
            s_lshl_b32 {SLOTB}, {TEAM}, 4
            s_add_u32 {SLOTB}, {SLOTB}, {MEM}
            s_mul_i32 {WV14}, {WAVE}, 14336
            s_mul_i32 {WV12}, {WAVE}, 12288
            s_add_u32 {WV12}, {WV12}, {S2}
            s_lshl_b32 {T0}, {CG}, 7""")
        L.append(f's_cmp_ge_u32 {MEM}, 14\ns_cselect_b32 {T0}, {OOB}, {T0}')
        L += S(f"""s_mul_i32 {IMG9}, {WAVE}, {112*896}
            s_add_u32 {IMG9}, {IMG9}, {T0}
            s_mul_i32 {W4O}, {WAVE}, {448*896}
            s_add_u32 {W4O}, {W4O}, {T0}
            s_mul_i32 {IMG3}, {WAVE}, {112*3584}
            s_lshl_b32 {T0}, {MEM}, 8
            s_add_u32 {IMG3}, {IMG3}, {T0}
            s_mul_i32 {RB57}, {RB}, 57344
            s_lshl_b32 {TB16}, {CG}, 13
            s_add_u32 {TB16}, {TB16}, {RB57}
            s_lshl_b32 {STO}, {SLOTA}, 9
            s_lshl_b32 {T0}, {WAVE}, 7
            s_add_u32 {STO}, {STO}, {T0}
            v_lshrrev_b32 v250, 4, {LANE}
            v_and_b32 v251, 15, {LANE}
            v_lshlrev_b32 v251, 4, v251
            v_lshl_add_u32 {VA16}, v250, 10, v251
            v_lshl_add_u32 {VA16}, v0, 8, {VA16}
            v_lshrrev_b32 v250, 5, {LANE}
            v_and_b32 v251, 31, {LANE}
            v_lshlrev_b32 v251, 4, v251
            v_lshl_add_u32 {V32}, v250, 10, v251
            v_lshrrev_b32 v250, 2, {LANE}
            v_lshlrev_b32 v251, 7, v250
            v_and_b32 v250, 6, v250
            v_lshl_add_u32 v251, v250, 4, v251
            v_and_b32 v250, 3, {LANE}
            v_lshl_add_u32 v251, v250, 3, v251
            v_accvgpr_write_b32 {aA0}, v251
            v_lshrrev_b32 v252, 5, {LANE}
            v_lshlrev_b32 v251, 9, v252
            v_bfe_u32 v252, {LANE}, 2, 2
            v_lshl_add_u32 v251, v252, 7, v251
            v_bfe_u32 v252, {LANE}, 4, 1
            v_lshl_add_u32 v251, v252, 5, v251
            v_lshl_add_u32 v251, v250, 3, v251
            v_bfe_u32 v252, {LANE}, 3, 1
            v_lshl_add_u32 v251, v252, 6, v251
            v_accvgpr_write_b32 {aB0}, v251""")
        for st, pitch, typ in ((aVA, 896, 'A'), (aVB, 896, 'B'), (aVC, 3584, 'B')):
            L += self.voff_calc('v251', pitch, typ) + [f'v_accvgpr_write_b32 {st}, v251']
        return L

    def gaddr_setup(self):
        L = S(f"""v_and_b32 v104, 15, {LANE}
            s_lshl_b32 {T0}, {RB}, 6
            s_lshl_b32 {T1}, {WAVE}, 4
            s_add_u32 {T0}, {T0}, {T1}
            v_add_u32 v104, {T0}, v104
            v_and_b32 v105, 48, {LANE}
            v_lshlrev_b32 v105, 2, v105""")
        for j in range(4):
            mixcg = 5 if j < 2 else 1
            L.append(f's_lshl_b32 {T0}, {CG}, 2\ns_add_u32 {T0}, {T0}, {j}\ns_cmp_ge_u32 {T0}, 7\ns_cselect_b32 {T1}, -1, 1\ns_cmp_ge_u32 {T0}, 14\ns_cselect_b32 {T1}, 2, {T1}\n'
                     f's_cmp_ge_u32 {T0}, 21\ns_cselect_b32 {T1}, -2, {T1}\ns_cmp_eq_u32 {CG}, {mixcg}\ns_cselect_b32 {T0}, 3, 4')
            L += S(f"""v_add_u32 v106, {T1}, v104
                v_bfe_i32 v108, v106, 11, 1
                v_bfe_u32 v107, v106, 6, 5
                v_mul_u32_u24 v107, 57344, v107
                v_and_or_b32 v106, v106, 63, v105
                v_lshl_add_u32 v106, v106, {T0}, v107
                v_not_b32 v108, v108
                v_accvgpr_write_b32 a{240+j}, v106
                v_accvgpr_write_b32 a{244+j}, v108""")
        return L

    def burst(self, srd, start, k, idx, wstride, vreg):
        def f():
            a = self.a
            a(f's_mul_i32 {T0}, {idx}, {k*128 * (4 if wstride is None else 1)}\ns_mul_i32 {T1}, {WAVE}, {k*128 if wstride is None else wstride}\ns_add_u32 {T0}, {T0}, {T1}')
            if start: a(f's_add_u32 {T0}, {T0}, {start}')
            a(f'v_lshlrev_b32 v{vreg}, 7, {LANE}\ns_mov_b64 exec, {hx((1 << k) - 1)}')
            a(f'buffer_load_dword v{vreg}, v{vreg}, {srd}, {T0} offen', 'pf')
            a('s_mov_b64 exec, -1')
        return f

    def get_tag(self):
        return [self.W(vm='epoch'), f'v_readfirstlane_b32 {TAG}, v4', f's_mul_i32 {TAG}, {TAG}, 0x9E3779B1', f's_add_u32 {TAG}, {TAG}, 0x7F4A7C15']

    def p1(self):
        a = self.a
        ACC, XR, XF = 32, 128, 80
        WA, WB, XW, XA = 240, 243, 246, 247
        slot = [WSL + 24576 * (c & 3) for c in range(7)]
        XL = [[(f'buffer_load_dwordx4 v[184:187], v239, {XS}, s66 offen', 'xt')], [(f'buffer_load_dwordx4 v[188:191], v239, {XS}, s67 offen', 'xt')]]
        XL += [[(f'buffer_load_dwordx4 {vr(128+4*n,4)}, v239, {XS}, {D1 if n >= 7 else D0} offen offset:{128*(n%7)}', f'x{n}')] for n in range(14)]
        XL.insert(2, [(f'buffer_load_dword v4, v255, {WS}, 0 offen sc1', 'epoch')])
        self.run(flat(XL[:4]))
        NX = self.opt.get('p1nx', 11)
        L, left = weave(self.common_setup(), XL[4:NX], gap=48, first=48)
        self.run(L); self.run(flat(left))
        self.run(self.gaddr_setup())
        self.run(self.voff_calc(f'v{VO}', 2688, 'B') + [f'v_add_u32 v{VO+1}, {8*2688-1024}, v{VO}'])
        def wunits(c):
            U = []
            for i in range(3):
                U.append([f's_add_u32 m0, {D1}, {slot[c] + i*8192}', f's_add_u32 {T7}, {D0}, {64*c*2688 + i*128}', (f'buffer_load_dwordx4 v{VO}, {WQ}, {T7} offen lds', f'wq{c}')])
                U.append([(f'buffer_load_dwordx4 v{VO+1}, {WQ}, {T7} offen offset:1024 lds', f'wq{c}')])
            return U
        a(f's_and_b32 {T4}, {WAVE}, 1\ns_lshr_b32 {T5}, {WAVE}, 1')
        a(f's_mul_i32 {T0}, {WAVE}, {16*XP}\nv_lshrrev_b32 v250, 3, {LANE}\nv_and_b32 v251, 7, {LANE}\nv_mul_u32_u24 v{XW}, {XP}, v250')
        a(f'v_lshl_add_u32 v{XW}, v251, 4, v{XW}\nv_add_u32 v{XW}, {T0}, v{XW}')
        a(f's_lshl_b32 {T1}, {WAVE}, 6\ns_add_u32 {T1}, {T1}, {RSD}\nv_lshl_add_u32 v92, v250, 2, {T1}')
        a(f'v_and_b32 v250, 15, {LANE}\nv_lshrrev_b32 v251, 4, {LANE}\nv_mul_u32_u24 v93, {XP}, v250\nv_lshl_add_u32 v93, v251, 3, v93\nv_add_u32 v93, {T0}, v93')
        a(f's_mul_i32 {T0}, {T4}, {32*XP}\nv_and_b32 v250, 31, {LANE}\nv_lshrrev_b32 v251, 5, {LANE}\nv_mul_u32_u24 v{XA}, {XP}, v250')
        a(f'v_lshl_add_u32 v{XA}, v251, 4, v{XA}\nv_add_u32 v{XA}, {T0}, v{XA}')
        a(f's_lshl_b32 {T1}, {T4}, 7\ns_add_u32 {T1}, {T1}, {RSD}\nv_lshl_add_u32 v94, v250, 2, {T1}')
        a(f'v_lshlrev_b32 v95, 3, v250\nv_lshl_add_u32 v95, v251, 10, v95')
        a(f'v_accvgpr_read_b32 v250, {aB0}\nv_lshl_add_u32 v250, v251, 9, v250')
        a(f's_mul_i32 {T0}, {T5}, 3')
        for i in range(3):
            a(f's_add_u32 {T1}, {T0}, {i}\ns_and_b32 {T2}, {T1}, 1\ns_lshl_b32 {T2}, {T2}, 6\ns_lshr_b32 {T1}, {T1}, 1\ns_lshl_b32 {T1}, {T1}, 13\ns_add_u32 {T1}, {T1}, {WSL}')
            a(f'v_xor_b32 v{WA+i}, {T2}, v250\nv_add_u32 v{WA+i}, {T1}, v{WA+i}\nv_add_u32 v{WB+i}, 49152, v{WA+i}')
        a(f's_mul_i32 {T6}, {CG}, 6\ns_add_u32 {T6}, {T6}, {T0}')
        a(f's_mul_i32 {T3}, {TEAM}, {336*1024}\ns_lshl_b32 {T2}, {T6}, 13\ns_add_u32 {T3}, {T3}, {T2}')
        a(f's_lshl_b32 {T2}, {RH}, 9\ns_add_u32 {T3}, {T3}, {T2}\ns_lshl_b32 {T2}, {T4}, 8\ns_add_u32 {T3}, {T3}, {T2}\ns_add_u32 {T3}, {T3}, {QKV}')
        for i in range(8): a(f'v_mov_b32 v{96+i}, 0')
        self.stamp('setup')
        self.run(flat(XL[NX:]))
        a(f's_mul_i32 {D0}, {WAVE}, {16*2688}\ns_mul_i32 {D1}, {CG}, 384\ns_add_u32 {D0}, {D0}, {D1}\ns_lshl_b32 {D1}, {WAVE}, 11')
        WU = wunits(0) + wunits(1) + wunits(2) + wunits(3)
        M = [self.W(vm='xt'), self.ST('x0'), (f'ds_write_b128 v{XW}, v[184:187]', 'xw'), (f'ds_write_b128 v{XW}, v[188:191] offset:{8*XP}', 'xw'), self.W(lg='xw')]
        M += [(f'ds_read_b64 {vr(HPK+2*j,2)}, v93 offset:{32*j}', 'xtr') for j in range(4)]
        for n in range(14):
            e = n // 7
            M.append(self.W(vm=f'x{n}'))
            for d in range(4):
                M.append(f'v_dot2c_f32_bf16 v{96+4*e+(d&1)}, {ONES}, v{XR+4*n+d}')
                M.append(f'v_dot2c_f32_bf16 v{98+4*e+(d&1)}, v{XR+4*n+d}, v{XR+4*n+d}')
        M.append(self.ST('x_in'))
        M += [f'v_add_f32 v{96+2*k}, v{96+2*k}, v{97+2*k}' for k in range(4)]
        for dpp in ('quad_perm:[1,0,3,2]', 'quad_perm:[2,3,0,1]', 'row_half_mirror'):
            M += [f'v_add_f32_dpp v{96+2*k}, v{96+2*k}, v{96+2*k} {dpp} row_mask:0xf bank_mask:0xf' for k in range(4)]
        for e in range(2):
            s_, q_ = 96 + 4*e, 98 + 4*e
            M += [f'v_mul_f32 v{s_}, {hf(-1/448)}, v{s_}', f'v_mul_f32 v{q_}, {hf(1/448)}, v{q_}', f'v_fma_f32 v{q_}, -v{s_}, v{s_}, v{q_}', f'v_max_f32 v{q_}, 0, v{q_}',
                  f'v_add_f32 v{q_}, {hf(EPS)}, v{q_}', f'v_rsq_f32 v{q_}, v{q_}']
        M.append(self.W(lg='xtr'))
        for n in range(14):
            e, i = n // 7, n % 7
            for d in range(4):
                M.append(f'v_dot2_f32_bf16 v{112+2*d}, v{XR+4*n+d}, {LO1}, v{96+4*e}')
                M.append(f'v_dot2_f32_bf16 v{113+2*d}, v{XR+4*n+d}, {HI1}, v{96+4*e}')
            M += [f'v_cvt_pk_bf16_f32 v{XR+4*n+d}, v{112+2*d}, v{113+2*d}' for d in range(4)]
            M.append((f'ds_write_b128 v{XW}, {vr(XR+4*n,4)} offset:{e*8*XP + 128*i}', 'xw'))
        M += [('ds_write_b32 v92, v98', 'xw'), ('ds_write_b32 v92, v102 offset:32', 'xw')]
        L, left = weave(M, WU, gap=self.opt.get('p1gap', 56), first=self.opt.get('p1first', 30))
        self.run(L); self.run(flat(left))
        self.stamp('norm')
        def wreg(s, i): return f'a[{(s%3)*12+4*i}:{(s%3)*12+4*i+3}]'
        def sync(s): return [self.WN(f'wq{s>>2}', 6), 's_barrier'] if s & 3 == 0 else []
        def reads(s, i):
            c, k = s >> 2, s & 3
            ar, off = (WA + i, 24576 * (c & 1)) if (c & 3) < 2 else (WB + i, 24576 * (c & 1))
            r0 = (s % 3) * 12 + 4 * i
            L = [(f'ds_read_b64_tr_b16 a[{r0}:{r0+1}], v{ar} offset:{off + k*2048}', f'wf{s}'), (f'ds_read_b64_tr_b16 a[{r0+2}:{r0+3}], v{ar} offset:{off + k*2048 + 512}', f'wf{s}')]
            if i == 2: L.append((f'ds_read_b128 {vr(XF+4*(s%3),4)}, v{XA} offset:{32*s}', f'wf{s}'))
            return L
        a.wait(lg='all')
        self.run(sync(0))
        a('ds_read_b32 v123, v94', 'rs')
        for q in range(2):
            for i in range(3): self.run(reads(q, i))
        pend = []
        for s in range(28):
            if s + 2 < 28:
                self.run(sync(s + 2))
                c = (s + 2) >> 2
                if (s + 2) & 3 == 0 and 2 <= c <= 4: pend = wunits(c + 2)
            a.wait(lg=f'wf{s}')
            for i in range(3):
                a(f'v_mfma_f32_32x32x16_bf16 {vr(ACC+16*i,16)}, {wreg(s,i)}, {vr(XF+4*(s%3),4)}, {vr(ACC+16*i,16) if s else 0}')
                if s + 2 < 28: self.run(reads(s + 2, i))
                if pend and i != 2: self.run(pend.pop(0))
            if s == 20: self.run(self.get_tag())
            if self.opt.get('b1', 1):
                if s == 17: a(f's_and_b32 {T4}, {RB}, 3\ns_mul_i32 {T4}, {T4}, 7\ns_add_u32 {T4}, {T4}, {CG}')
                if s == 18: self.burst(WO, 0, 28, T4, None, 104)()
                if s == 19: self.burst(W4, 0, 24, T4, 448*896, 105)()
            if s == 24:
                for i in range(3):
                    a(f's_add_u32 {T2}, {T6}, {i}\ns_cmp_lt_u32 {T2}, 14\ns_cselect_b32 {T2}, {hf(QSCALE)}, 1.0\nv_mul_f32 v{96+2*i}, {T2}, v123')
        self.stamp('mm')
        for i in range(3):
            for k in range(8):
                r = ACC + 16*i + 2*k
                a(f'v_pk_mul_f32 {vr(r,2)}, {vr(r,2)}, {vr(96+2*i,2)} op_sel_hi:[1,0]')
            for q in range(4):
                for k in (2*q, 2*q+1):
                    a(f'v_cvt_pk_bf16_f32 v{XR+8*i+k}, v{ACC+16*i+2*k}, v{ACC+16*i+2*k+1}')
                if q % 2 == 0: a(f's_add_u32 {T2}, {T3}, {i*8192 + q*2048}')
                a(f'buffer_store_dwordx2 {vr(XR+8*i+2*q,2)}, v95, {WS}, {T2} offen offset:{(q%2)*2048} sc1', 'st')
        self.finish(0, SLOTA, self.p2_setup(), self.img9(WO, S0, 'wo') + self.w4_units(0), split=1000)

    def p2_setup(self):
        MD, MO = 176, 192
        a = self.a
        L = S(f'''v_lshl_add_u32 v240, {WAVE}, 6, {LANE}
            s_sub_u32 {T5}, 2, {TEAM}
            s_max_i32 {T5}, {T5}, 0
            s_cmp_lt_u32 {WAVE}, {T5}
            s_cselect_b32 {T1}, {hx(NBIG >> 16)}, 0''')
        L = ['\n'.join(L)]
        L += S(f'''v_mov_b32 v244, {T1}
            v_mov_b32 v245, 0
            v_mov_b32 v246, {T1}
            v_mov_b32 v247, 0
            v_mov_b32 v236, 0x3f80
            v_mov_b32 v237, 0
            v_mov_b32 v238, 0x3f80
            v_mov_b32 v239, 0
            v_lshlrev_b32 v240, 4, v240
            v_add_u32 v240, {KB + 7*KP}, v240''')
        def cr():
            Lb = a.label('cr')
            a(f's_cmp_ge_u32 {WAVE}, 3\ns_cbranch_scc1 {Lb}')
            a.raw(f'ds_write_b128 v240, v[244:247]\nds_write_b128 v240, v[236:239] offset:{8*KP}')
            a(f'{Lb}:')
        L.append(cr)
        L += S(f'''v_and_b32 v240, 31, {LANE}
            v_lshrrev_b32 v241, 5, {LANE}
            v_lshlrev_b32 v242, 2, v241
            v_sub_u32 v240, v240, v242
            v_mov_b32 v242, {hx(NBIG)}''')
        for r in range(16):
            kk = 8*(r >> 2) + (r & 3)
            L += [f'v_subrev_u32 v243, {kk}, v240', 'v_ashrrev_i32 v243, 31, v243', f'v_and_b32 v{MD+r}, v242, v243', f'v_xor_b32 v{MO+r}, v242, v{MD+r}']
        L += S(f'''v_and_b32 v240, 31, {LANE}
            v_lshlrev_b32 v240, 3, v240
            v_mul_u32_u24 v232, {KP}, v241
            v_add_u32 v232, v232, v240
            v_lshl_add_u32 v234, v241, 10, v240
            s_lshl_b32 {T1}, {WAVE}, 8
            s_add_u32 {T2}, {T1}, {KB}
            v_add_u32 v232, {T2}, v232
            v_bfe_u32 v240, {LANE}, 4, 1
            v_and_b32 v242, 3, {LANE}
            v_lshl_add_u32 v240, v240, 2, v242
            v_mul_u32_u24 v233, {KP}, v240
            v_lshl_add_u32 v233, v241, 5, v233
            v_bfe_u32 v240, {LANE}, 2, 2
            v_lshl_add_u32 v233, v240, 3, v233
            s_add_u32 {T2}, {T1}, {VB}
            v_add_u32 v233, {T2}, v233
            v_lshlrev_b32 v235, 4, {LANE}
            s_mul_i32 {T3}, {TEAM}, {336*1024}
            s_mul_i32 {T2}, {MEM}, 7168
            s_add_u32 {T3}, {T3}, {T2}
            s_add_u32 {T3}, {T3}, {QKV}
            s_sub_u32 {T4}, 2, {WAVE}
            s_mul_i32 {T4}, {T4}, {336*1024}
            s_sub_u32 {T4}, {T3}, {T4}''')
        L.append(f's_cmp_lt_u32 {WAVE}, {T5}\ns_cselect_b32 {T4}, {OOB}, {T4}')
        L += S(f'''s_add_u32 {T3}, {T3}, {T1}
            s_mov_b32 {T6}, 0x7f7f7f7f
            s_mov_b32 {T7}, 0x7f7f
            s_lshl_b32 {T1}, {T5}, 4
            s_lshr_b64 s[58:59], s[58:59], {T1}
            s_lshl_b64 s[58:59], s[58:59], {T1}
            s_lshl_b32 {T2}, {TEAM}, 4
            s_sub_u32 {T2}, {T2}, 32''')
        return L

    def p2(self):
        a = self.a
        S_, MD, MO, Q, OA = 32, 176, 192, 208, 216
        KA, VA = 'v232', 'v233'
        FB = 200
        a.raw('s_waitcnt lgkmcnt(0)')
        self.poll(0, T2, 's[58:59]')
        a.wait(vm='w4_0')
        a(f's_add_u32 {T2}, {T3}, 4096')
        for q in range(4):
            a(f'buffer_load_dwordx2 {vr(Q+2*q,2)}, v234, {WS}, {T3 if q < 2 else T2} offen offset:{(q%2)*2048} sc1', 'q')
        L = a.label('kv')
        a(f's_cmp_ge_u32 {WAVE}, 3\ns_cbranch_scc1 {L}')
        a(f's_lshl_b32 {T2}, {WAVE}, 10')
        for part, lb in ((1, KB), (2, VB)):
            for q in range(7):
                if q % 4 == 0: a(f's_add_u32 {T3}, {T4}, {part*112*1024 + q*1024}')
                a(f's_add_u32 m0, {T2}, {lb + q*KP - (q%4)*1024}')
                a.raw(f'buffer_load_dwordx4 v235, {WS}, {T3} offen offset:{(q%4)*1024} sc1 lds')
        a(f'{L}:')
        self.run(self.w4_read(0))
        a(f's_lshl_b32 {T4}, {TEAM}, 1\ns_lshr_b32 {T1}, {WAVE}, 1\ns_add_u32 {T4}, {T4}, {T1}\ns_lshl_b32 {T4}, {T4}, 16')
        a(f's_lshl_b32 {T1}, {MEM}, 12\ns_add_u32 {T4}, {T4}, {T1}\ns_and_b32 {T1}, {WAVE}, 1\ns_lshl_b32 {T1}, {T1}, 9\ns_add_u32 {T4}, {T4}, {T1}\ns_add_u32 {T4}, {T4}, {O_}')
        a.raw('s_waitcnt vmcnt(7)')
        L = a.label('kv2')
        a(f's_cmp_lt_u32 {WAVE}, 3\ns_cbranch_scc1 {L}')
        a.raw('s_waitcnt vmcnt(0)')
        a(f'{L}:')
        a('s_barrier')
        self.stamp('k')
        def kread(i):
            b = FB + (i % 3) * 8
            return [(f'ds_read_b64 a[{b+4*p+2*s}:{b+4*p+2*s+1}], {KA} offset:{(4*p+2*s)*KP + 256*i}', f'k{i}') for p in range(2) for s in range(2)]
        self.run(kread(0)); self.run(kread(1))
        nb2 = 0
        if self.opt.get('b2', 1):
            a(f's_and_b32 {T5}, {SLOTB}, 31')
            self.burst(W1, 0, 25, T5, None, 240)(); self.burst(W4, 192*896, 21, T5, 448*896, 241)(); self.burst(W2, 0, 25, T5, None, 242)()
            nb2 = 3
        a(f's_mov_b32 exec_lo, 0\nv_mov_b32 v{Q+6}, 0x3f80\nv_mov_b32 v{Q+7}, 0\ns_mov_b32 exec_lo, -1')
        MX = 236
        def maxes(i):
            L = []
            r = S_ + 16*i
            for k in range(8):
                if i == 0 and k < 2: L.append(f'v_max_f32 v{MX+k}, v{r+2*k}, v{r+2*k+1}')
                else: L.append(f'v_max3_f32 v{MX+(k&1)}, v{r+2*k}, v{r+2*k+1}, v{MX+(k&1)}')
            return L
        for i in range(9):
            a.wait(lg=f'k{i}')
            b = FB + (i % 3) * 8
            c0 = vr(MO, 16) if i == 0 else (vr(MD, 16) if i == 8 else '0')
            kr = kread(i + 2) if i + 2 < 9 else []
            mx = maxes(i - 2) if i >= 2 else []
            a(f'v_mfma_f32_32x32x16_bf16 {vr(S_+16*i,16)}, a[{b}:{b+3}], {vr(Q,4)}, {c0}')
            self.run(kr[:2] + mx[:4])
            a(f'v_mfma_f32_32x32x16_bf16 {vr(S_+16*i,16)}, a[{b+4}:{b+7}], {vr(Q+4,4)}, {vr(S_+16*i,16)}')
            self.run(kr[2:] + mx[4:])
        self.stamp('qk')
        self.run(maxes(7)); self.run(maxes(8))
        a(f'v_max_f32 v{MX}, v{MX}, v{MX+1}\nv_mov_b32 v{MX+1}, v{MX}\nv_permlane32_swap_b32 v{MX}, v{MX+1}\nv_max_f32 v{MX}, v{MX}, v{MX+1}')
        def vread(i):
            b = FB + (i % 3) * 8
            return [(f'ds_read_b64_tr_b16 a[{b+4*m+2*e}:{b+4*m+2*e+1}], {VA} offset:{256*i + 128*m + 64*e}', f'v{i}') for m in range(2) for e in range(2)]
        def sub(i):
            r = S_ + 16*i
            return [f'v_pk_add_f32 {vr(r+2*k,2)}, {vr(r+2*k,2)}, {vr(MX,2)} op_sel_hi:[1,0] neg_lo:[0,1] neg_hi:[0,1]' for k in range(8)]
        def ex(i):
            r = S_ + 16*i
            return [f'v_exp_f32 v{r+k}, v{r+k}' for k in range(16)] + [f'v_cvt_pk_bf16_f32 v{r+k}, v{r+2*k}, v{r+2*k+1}' for k in range(8)]
        self.stamp('max')
        self.run(sub(0) + ex(0)[:16])
        a.raw(f's_waitcnt vmcnt({nb2})'); a.vm = ['pf'] * nb2
        a('s_barrier')
        self.run(vread(0)); self.run(vread(1))
        self.run(ex(0)[16:])
        U = self.w4_units(1)
        for i in range(9):
            if i + 1 < 9: self.run(sub(i + 1))
            a.wait(lg=f'v{i}')
            b = FB + (i % 3) * 8
            r = S_ + 16*i
            e = ex(i + 1) if i + 1 < 9 else []
            a(f'v_mfma_f32_32x32x16_bf16 {vr(OA,16)}, a[{b}:{b+3}], {vr(r,4)}, {vr(OA,16) if i else 0}')
            if i + 2 < 9: self.run(vread(i + 2))
            self.run(e[:1])
            a(f'v_mfma_f32_32x32x16_bf16 {vr(OA,16)}, a[{b+4}:{b+7}], {vr(r+4,4)}, {vr(OA,16)}')
            if U: self.run(U.pop(0))
            self.run(e[1:12])
            if U: self.run(U.pop(0))
            self.run(e[12:])
        assert not U
        a(f'v_mov_b32 v{MX}, v{OA+12}\nv_mov_b32 v{MX+1}, v{OA+12}\nv_permlane32_swap_b32 v{MX}, v{MX+1}\nv_rcp_f32 v{MX}, v{MX+1}')
        for p in range(2):
            for k in range(4*p, 4*p+4):
                a(f'v_pk_mul_f32 {vr(OA+2*k,2)}, {vr(OA+2*k,2)}, {vr(MX,2)} op_sel_hi:[1,0]')
            for k in range(4*p, 4*p+4):
                a(f'v_cvt_pk_bf16_f32 v{S_+k}, v{OA+2*k}, v{OA+2*k+1}')
            if p: a(f's_mov_b32 exec_lo, 0\nv_mov_b32 v{S_+6}, 0\nv_mov_b32 v{S_+7}, 0\ns_mov_b32 exec_lo, -1')
            a(f'buffer_store_dwordx4 {vr(S_+4*p,4)}, {V32}, {WS}, {T4} offen offset:{p*2048} sc1', 'st')

    def trA(self, base, omap):
        L = [f'v_accvgpr_read_b32 v4, {aA0}']
        if omap: L += [f'v_and_b32 v5, 1024, {V32}', 'v_add_u32 v4, v4, v5']
        if base: L.append(f'v_add_u32 v4, {base}, v4')
        L += [f'v_xor_b32 v{4+j}, {32*j}, v4' for j in range(1, 4)]
        return L
    def breg(self, s, j, abase):
        return ('v', 112 + 16*s + 4*j) if s < 8 else ('a', abase + 16*(s - 8) + 4*j)
    def breads(self, s, omap, abase, cs=False):
        L = []
        for j in range(4):
            if omap: ar = 4 + (j ^ (2 if s & 1 else 0)); off = 28 * s * 128; d2 = 8 * 128
            else: ar = 4 + j; off = 32 * s * 128; d2 = 16 * 128
            k, b = self.breg(s, j, abase)
            L.append((f'ds_read_b64_tr_b16 {vr(b,2,k)}, v{ar} offset:{off}', f'b{s}'))
            L.append((f'ds_read_b64_tr_b16 {vr(b+2,2,k)}, v{ar} offset:{off+d2}', f'b{s}'))
        return L
    def bstream(self, steps, omap, abase, cs_from=None, cs_upto=None):
        L = []
        def csm(s):
            out = [self.W(lg=f'b{s}')]
            for j in range(4):
                k, b = self.breg(s, j, abase)
                out.append(f'v_mfma_f32_16x16x32_bf16 {vr(RES+4*j,4)}, {vr(b,4,k)}, v[88:91], {vr(RES+4*j,4) if s else 0}')
            return out
        c = cs_from
        for s in steps:
            br = self.breads(s, omap, abase)
            if c is not None and c <= s - 1 and c < cs_upto:
                m = csm(c); c += 1
                L.append(m[0])
                for j in range(4): L += [m[1+j]] + br[2*j:2*j+2]
            else: L += br
        while c is not None and c < cs_upto:
            L += csm(c); c += 1
        return L

    def small_gemm(self, nsteps, abase_g, ACC, pollargs, post, abase, pre=[], bg=[], split8=(), cinit=True, fill=[], mid=[]):
        a = self.a
        AF = 32
        self.poll(*pollargs)
        self.run(pre)
        def aload(s):
            u = [f's_add_u32 {T3}, {T3}, 4096'] if s else []
            if s in split8:
                u += [(f'buffer_load_dwordx2 {vr(AF+4*s+2*h,2)}, v96, {WS}, {T3} offen offset:{2048*h} sc1', f'a{s}') for h in range(2)]
            else:
                u.append((f'buffer_load_dwordx4 {vr(AF+4*s,4)}, {VA16}, {WS}, {T3} offen sc1', f'a{s}'))
            return u
        U = [aload(s) for s in range(nsteps)]
        NPRE = self.opt.get('sgpre', 11)
        L, left = weave(post, U[:NPRE], gap=self.opt.get('sggap', 56))
        self.run(L); self.run(flat(left))
        self.run(mid)
        self.stamp('issued')
        fill = list(fill)
        U = U[NPRE:] + list(bg)
        for s in range(nsteps):
            a.wait(vm=f'a{s}', lg=f'b{s}')
            if s == 0: self.stamp('a0')
            if s == nsteps - 1: self.stamp('alast')
            for j in range(4):
                k, b = self.breg(s, j, abase)
                a(f'v_mfma_f32_16x16x32_bf16 {vr(ACC+4*j,4)}, {vr(b,4,k)}, {vr(AF+4*s,4)}, {vr(ACC+4*j,4) if (s or cinit) else 0}')
                if U and (j == 0 or (j == 2 and s >= 6 and len(U) >= nsteps - s)): self.run(U.pop(0))
                elif fill: self.run(fill[:2]); fill = fill[2:]
        assert not fill
        return U

    def unpack(self, dst, src, n):
        return flat([[f'v_lshlrev_b32 v{dst+2*k}, 16, v{src+k}', f'v_and_b32 v{dst+2*k+1}, 0xffff0000, v{src+k}'] for k in range(n)])

    def tile_out(self, acc, pk, base, stbase):
        a = self.a
        a(f's_add_u32 {T4}, {TB16}, {base}\ns_add_u32 {T5}, {TB16}, {base + 4096}\ns_add_u32 {T6}, {STO}, {stbase}\nv_lshlrev_b32 v244, 3, {LANE}')
        for p in range(2):
            for k in range(4*p, 4*p+4): a(f'v_cvt_pk_bf16_f32 v{pk+k}, v{acc+2*k}, v{acc+2*k+1}')
            a(f'buffer_store_dwordx4 {vr(pk+4*p,4)}, {VA16}, {WS}, {T5 if p else T4} offen sc1', 'st')
        a(f'v_pk_add_f32 v[240:241], {vr(acc,2)}, {vr(acc+2,2)}\nv_pk_mul_f32 v[242:243], {vr(acc,2)}, {vr(acc,2)}')
        a(f'v_pk_fma_f32 v[242:243], {vr(acc+2,2)}, {vr(acc+2,2)}, v[242:243]')
        for k in range(2, 8):
            a(f'v_pk_add_f32 v[240:241], v[240:241], {vr(acc+2*k,2)}\nv_pk_fma_f32 v[242:243], {vr(acc+2*k,2)}, {vr(acc+2*k,2)}, v[242:243]')
        a('v_add_f32 v240, v240, v241\nv_add_f32 v241, v242, v243')
        for sw in ('16', '32'):
            a('v_mov_b32 v242, v240\nv_mov_b32 v243, v241')
            a(f'v_permlane{sw}_swap_b32 v240, v242\nv_permlane{sw}_swap_b32 v241, v243')
            a('v_pk_add_f32 v[240:241], v[240:241], v[242:243]')
        a('s_mov_b64 exec, 0xffff')
        a(f'buffer_store_dwordx2 v[240:241], v244, {WS}, {T6} offen sc1', 'st')
        a('s_mov_b64 exec, -1')

    def fin_stats(self, sws):
        L = []
        for sw in sws:
            L += ['v_mov_b32 v242, v240', 'v_mov_b32 v243, v241', f'v_permlane{sw}_swap_b32 v240, v242', f'v_permlane{sw}_swap_b32 v241, v243',
                  'v_add_f32 v240, v240, v242', 'v_add_f32 v241, v241, v243']
        L += [f'v_mul_f32 v240, {hf(-1/448)}, v240', f'v_mul_f32 v242, {hf(1/448)}, v241', 'v_fma_f32 v242, -v240, v240, v242', 'v_max_f32 v242, 0, v242']
        return L
    def gelu_consts(self, s):
        return [f'v_mul_f32 v244, {hf(K1)}, v{s}', f'v_mul_f32 v245, v{s}, v{s}', f'v_mul_f32 v245, v245, v{s}', f'v_mul_f32 v245, {hf(K2)}, v245', f'v_rcp_f32 v246, v{s}']
    def gelu_pk(self, acc, n, dst, tmp):
        L = []
        ks = range(n)
        for k in ks: L.append(f'v_pk_mul_f32 {vr(tmp+2*k,2)}, {vr(acc+2*k,2)}, {vr(acc+2*k,2)}')
        for k in ks: L.append(f'v_pk_fma_f32 {vr(tmp+2*k,2)}, {vr(tmp+2*k,2)}, v[244:245], v[244:245] op_sel:[0,1,0] op_sel_hi:[1,1,0]')
        for k in ks: L.append(f'v_pk_mul_f32 {vr(tmp+2*k,2)}, {vr(tmp+2*k,2)}, {vr(acc+2*k,2)}')
        for k in range(2*n): L.append(f'v_exp_f32 v{tmp+k}, v{tmp+k}')
        for k in ks: L.append(f'v_pk_fma_f32 {vr(tmp+2*k,2)}, {vr(tmp+2*k,2)}, v[246:247], v[246:247] op_sel_hi:[1,0,0]')
        for k in range(2*n): L.append(f'v_rcp_f32 v{tmp+k}, v{tmp+k}')
        for k in ks: L.append(f'v_pk_mul_f32 {vr(acc+2*k,2)}, {vr(acc+2*k,2)}, {vr(tmp+2*k,2)}')
        for k in ks: L.append(f'v_cvt_pk_bf16_f32 v{dst+k}, v{acc+2*k}, v{acc+2*k+1}')
        return L
    def gelu_sc(self, acc, n, dst, tmp):
        L = []
        ks = range(2*n)
        for k in ks: L.append(f'v_mul_f32 v{tmp+k}, v{acc+k}, v{acc+k}')
        for k in ks: L.append(f'v_fma_f32 v{tmp+k}, v{tmp+k}, v245, v244')
        for k in ks: L.append(f'v_mul_f32 v{tmp+k}, v{tmp+k}, v{acc+k}')
        for k in ks: L.append(f'v_exp_f32 v{tmp+k}, v{tmp+k}')
        for k in ks: L.append(f'v_fma_f32 v{tmp+k}, v{tmp+k}, v246, v246')
        for k in ks: L.append(f'v_rcp_f32 v{tmp+k}, v{tmp+k}')
        for k in ks: L.append(f'v_mul_f32 v{acc+k}, v{acc+k}, v{tmp+k}')
        for k in range(n): L.append(f'v_cvt_pk_bf16_f32 v{dst+k}, v{acc+2*k}, v{acc+2*k+1}')
        return L

    def p2_finish(self):
        work = self.trA(S0, True) + self.bstream(range(8), True, 96) + self.unpack(96, HPK, 8) + self.w4_read(1)
        work += [f's_lshl_b32 {T3}, {RB}, 16', f's_add_u32 {T3}, {T3}, {O_}', f's_lshl_b32 {T2}, {TEAM}, 4']
        self.finish(1, SLOTB, work, self.img9(W1, S1, 'w1'), split=600)

    def p3(self):
        a = self.a
        ACC = 96
        left = self.small_gemm(16, O_, ACC, (1, T2, '0xffff'), self.bstream(range(8, 16), True, 96), 96, bg=self.w4_units(2))
        self.tile_out(ACC, HPK, H_, STH)
        work = self.trA(S1, False) + [f'v_mov_b32 v{88+d}, {ONES}' for d in range(4)] + self.bstream(range(14), False, 144, 0, 14)
        work += self.w4_read(2)
        work += S(f'''v_lshrrev_b32 v244, 1, {VA16}
            v_add_u32 v245, 2048, v244
            v_lshrrev_b32 v242, 4, {LANE}
            v_add_u32 v242, 1, v242
            v_lshrrev_b32 v242, 2, v242
            v_lshl_add_u32 v245, v242, 30, v245
            s_lshl_b32 {T6}, {RB}, 12
            s_add_u32 {T6}, {T6}, {STH}
            s_add_u32 {T3}, {RB57}, {H_}
            s_lshl_b32 {T2}, {RB}, 3''')
        self.finish(2, SLOTA, work, left + self.img9(W2, S0, 'w2'), split=600)

    def p4(self):
        a = self.a
        ACC = 96
        pre = [(f'buffer_load_dwordx2 v[240:241], v244, {WS}, {T6} offen sc1', 'sl'), (f'buffer_load_dwordx2 v[242:243], v245, {WS}, {T6} offen sc1', 'sl')]
        post = ['v_add_f32 v240, v240, v242', 'v_add_f32 v241, v241, v243'] + self.fin_stats(['16', '32'])
        post += [f'v_add_f32 v243, {hf(EPS)}, v242', 'v_rsq_f32 v241, v243', 'v_mul_f32 v243, v241, v241', f'v_mov_b32 v247, {hf(EPS)}', 'v_fmac_f32 v247, v243, v242',
                 'v_rsq_f32 v247, v247', 'v_mul_f32 v247, v247, v241'] + self.gelu_consts(247)
        p2_ = [f's_lshl_b32 {T4}, {CG}, 13', f's_add_u32 {T4}, {T4}, {G_}', f's_add_u32 {T5}, {T4}, 4096']
        p2_ += [f'v_accvgpr_read_b32 v{88+j}, a{244+j}' for j in range(4)] + [f'v_accvgpr_read_b32 v{92+j}, a{240+j}' for j in range(4)]
        left = self.small_gemm(14, H_, ACC, (2, T2, '0x7f'), p2_, 144, pre=pre, bg=self.w4_units(3), cinit=False, fill=post)
        for pp in range(2):
            for k in range(4*pp, 4*pp+4):
                a(f'v_pk_fma_f32 {vr(ACC+2*k,2)}, {vr(RES+2*k,2)}, v[240:241], {vr(ACC+2*k,2)} op_sel_hi:[1,0,1]')
            self.run(self.gelu_pk(ACC + 8*pp, 4, 32 + 4*pp, 48))
            for q in range(4): a(f'v_and_b32 v{32+4*pp+q}, v{88+2*pp+(q>>1)}, v{32+4*pp+q}')
            Lm = a.label('mix'); Le = a.label('mixe')
            so = T5 if pp else T4
            a(f's_cmp_eq_u32 {CG}, {1 if pp else 5}\ns_cbranch_scc1 {Lm}')
            a(f'buffer_store_dwordx4 {vr(32+4*pp,4)}, v{92+2*pp}, {WS}, {so} offen sc1', 'st')
            a(f's_branch {Le}\n{Lm}:')
            a.raw(f'buffer_store_dwordx2 {vr(32+4*pp,2)}, v{92+2*pp}, {WS}, {so} offen sc1')
            a.raw(f'buffer_store_dwordx2 {vr(34+4*pp,2)}, v{93+2*pp}, {WS}, {so} offen offset:2048 sc1')
            a(f'{Le}:')
        work = self.trA(S0, False) + self.bstream(range(8), False, 144) + self.unpack(RES, HPK, 8)
        for k in range(8):
            work += [f'v_pk_add_f32 {vr(RES+2*k,2)}, {vr(RES+2*k,2)}, v[240:241] op_sel_hi:[1,0]', f'v_pk_mul_f32 {vr(RES+2*k,2)}, {vr(RES+2*k,2)}, v[240:241] op_sel:[0,1] op_sel_hi:[1,1]']
        work += [f'v_lshrrev_b32 v96, 1, {VA16}', f's_add_u32 {T3}, {RB57}, {G_}', f's_lshl_b32 {T2}, {RB}, 3', f's_sub_u32 {T2}, {T2}, 8']
        self.finish(3, SLOTA, work, left + self.img3(0, S1, 'w3a'), split=600)

    AF6, ACC6, CT6 = 32, 144, 208
    def woff(self, i): return (32 * (i >> 1) + 8 * (i & 1)) * 128
    def wread(self, t, i, slot, tag):
        b = 224 + 4 * slot; ar = [6, 7, 4, 5][t]
        return [(f'ds_read_b64_tr_b16 a[{b}:{b+1}], v{ar} offset:{self.woff(i)}', tag), (f'ds_read_b64_tr_b16 a[{b+2}:{b+3}], v{ar} offset:{self.woff(i)+2048}', tag)]
    def colsum6(self, ar, dst, tg):
        L = []
        rd = lambda i: [(f'ds_read_b64_tr_b16 {vr(64+4*(i%8),2)}, v{ar} offset:{self.woff(i)}', f'{tg}{i}'), (f'ds_read_b64_tr_b16 {vr(66+4*(i%8),2)}, v{ar} offset:{self.woff(i)+2048}', f'{tg}{i}')]
        G = []
        for i in range(5): L += rd(i)
        for i in range(28):
            g = [self.W(lg=f'{tg}{i}'), f'v_mfma_f32_32x32x16_bf16 {vr(dst,16)}, {vr(64+4*(i%8),4)}, v[12:15], {vr(dst,16) if i else 0}']
            if i + 5 < 28: g += rd(i + 5)
            G.append(g)
        return L, G

    def p5(self):
        a = self.a
        CT = self.CT6
        left = self.small_gemm(14, G_, RES, (3, T2, '0x7f7f7f'), self.bstream(range(8, 14), False, 144), 144, split8=(3, 10),
                               mid=[self.W(lg='all'), 's_barrier'], bg=self.img3(128, S0, 'w3b'))
        self.run(flat(left))
        self.tile_out(RES, 32, X1_, STX)
        work = self.unpack(48, HPK, 8) + [f'v_pk_add_f32 {vr(RES+2*k,2)}, {vr(RES+2*k,2)}, {vr(48+2*k,2)}' for k in range(8)]
        work += self.w4_read(3)
        u4 = self.w4_units(4)
        self.u4 = u4
        setup4 = [x for x in u4[0] if not (isinstance(x, tuple) or (isinstance(x, str) and 'm0' in x))]
        u4[0] = [x for x in u4[0] if x not in setup4]
        work += setup4
        work += S(f"""v_accvgpr_read_b32 v4, {aB0}
            v_xor_b32 v5, 64, v4
            v_add_u32 v6, {S1}, v4
            v_add_u32 v7, {S1}, v5
            s_and_b32 {T5}, {WAVE}, 1
            s_lshl_b32 {T0}, {T5}, 6
            s_lshr_b32 {T4}, {WAVE}, 1
            s_xor_b32 {T1}, {T4}, 1
            s_mul_i32 {T1}, {T1}, {S1}
            v_xor_b32 v8, {T0}, v4
            v_add_u32 v8, {T1}, v8""")
        work += [f'v_mov_b32 v{12+d}, {ONES}' for d in range(4)]
        misc = S(f"""v_lshrrev_b32 v11, 5, {LANE}
            v_lshlrev_b32 v0, 6, v11
            v_add_u32 v0, {CS}, v0
            s_lshl_b32 {T0}, {WAVE}, 7
            v_add_u32 v9, {T0}, v0
            s_lshl_b32 {T0}, {TEAM}, 1
            s_add_u32 {T4}, {T4}, {T0}
            s_lshl_b32 {T5}, {T5}, 9
            s_mul_i32 {T3}, {T4}, 57344
            s_add_u32 {T3}, {T3}, {T5}
            s_add_u32 {T3}, {T3}, {X1_}
            s_lshl_b32 {T6}, {T4}, 12
            s_lshr_b32 {T7}, {T5}, 1
            s_add_u32 {T6}, {T6}, {T7}
            s_add_u32 {T6}, {T6}, {STX}
            s_mul_i32 {T4}, {T4}, {224*1024}
            s_add_u32 {T4}, {T4}, {T5}
            s_lshl_b32 {T1}, {MEM}, 14
            s_add_u32 {T4}, {T4}, {T1}
            s_add_u32 {T4}, {T4}, {U_}
            v_and_b32 v10, 31, {LANE}
            v_lshlrev_b32 v10, 3, v10
            v_lshl_add_u32 v10, v11, 11, v10
            v_lshl_add_u32 v11, v11, 30, v10
            s_lshl_b32 {T2}, {TEAM}, 4""")
        for i in range(4): misc += self.wread(0, i, 2*i, f'w{i}') + self.wread(1, i, 2*i+1, f'w{i}')
        work.append(self.W(lg='all'))
        L, G = self.colsum6(8, CT, 'c')
        post = L + self.zipper(G, misc)
        post += ['s_mov_b32 exec_lo, 1', 's_mov_b32 exec_hi, 1'] + [(f'ds_write_b128 v9, {vr(CT+4*q,4)} offset:{16*q}', 'cs') for q in range(4)]
        post += ['s_mov_b64 exec, -1', self.W(lg='cs')]
        self.finish(4, SLOTA, work, [], split=10000, post=post)

    def p6(self):
        a = self.a
        AF, ACC, CT, PK = self.AF6, self.ACC6, self.CT6, 8
        self.poll(4, T2, '0x7f7f')
        for q in range(4):
            a(f'buffer_load_dwordx2 {vr(240+2*q,2)}, v{10 if q < 3 else 11}, {WS}, {T6} offen offset:{512*q} sc1', 'sl')
        def aload(i):
            u = [f's_add_u32 {T3}, {T3}, 4096'] if i and i % 2 == 0 else []
            return u + [(f'buffer_load_dwordx4 {vr(AF+4*i,4)}, {V32}, {WS}, {T3} offen offset:{(i&1)*2048} sc1', f'a{i}')]
        U = [aload(i) for i in range(28)]
        M = [(f'ds_read_b128 {vr(ACC+16*t+4*q,4)}, v0 offset:{t*128+16*q}', 'ct') for t in range(4) for q in range(4)]
        L, left = weave(M, U[:6], gap=40)
        self.run(L); self.run(flat(left)); U = U[6:]
        M = [self.W(vm='sl', lg='ct'), 'v_pk_add_f32 v[240:241], v[240:241], v[242:243]', 'v_pk_add_f32 v[244:245], v[244:245], v[246:247]', 'v_pk_add_f32 v[240:241], v[240:241], v[244:245]']
        M += self.fin_stats(['32'])
        M += [f'v_pk_mul_f32 {vr(ACC+2*k,2)}, {vr(ACC+2*k,2)}, v[240:241] op_sel_hi:[1,0]' for k in range(16)]
        PRE = self.opt.get('p6pre', 5)
        L, left = weave(M, U[:PRE], gap=40)
        self.run(L); self.run(flat(left))
        U = U[PRE:] + self.u4
        self.stamp('init')
        p2 = [(2, i) for i in range(28)] + [(3, i) for i in range(28)]
        fill = [f'v_add_f32 v243, {hf(EPS)}, v242', 'v_rsq_f32 v247, v243'] + self.gelu_consts(247) + [f'v_mul_f32 v{ACC+32+k}, v{ACC+32+k}, v240' for k in range(32)]
        for i in range(28):
            a.wait(vm=f'a{i}', lg=f'w{i}')
            sl = 2 * (i % 4)
            for t in range(2):
                a(f'v_mfma_f32_32x32x16_bf16 {vr(ACC+16*t,16)}, a[{224+4*(sl+t)}:{227+4*(sl+t)}], {vr(AF+4*i,4)}, {vr(ACC+16*t,16)}')
                if i + 4 < 28: self.run(self.wread(t, i + 4, sl + t, f'w{i+4}'))
                else:
                    n = 2 * (i - 24) + t
                    self.run(self.wread(p2[n][0], p2[n][1], n % 8, f'y{n}'))
                if t == 0 and U: self.run(U.pop(0))
                if t == 1: self.run(fill[:2]); fill = fill[2:]
        assert not U and not fill
        self.stamp('pass1')
        def st(p): return [(f'buffer_store_dwordx4 {vr(PK+4*p,4)}, {V32}, {WS}, {T0} offen offset:{p*2048} sc1', 'st')]
        def epi(t, f):
            return ([f's_add_u32 {T0}, {T4}, {t*4096}'] + f(ACC + 16*t, 4, PK, CT) + st(0) + f(ACC + 16*t + 8, 4, PK + 4, CT) + st(1))
        mm = []
        for n, (t, i) in enumerate(p2):
            b = 224 + 4 * (n % 8)
            g = [self.W(lg=f'y{n+1}')] if n % 2 == 0 else []
            g += [f'v_mfma_f32_32x32x16_bf16 {vr(ACC+16*t,16)}, a[{b}:{b+3}], {vr(AF+4*i,4)}, {vr(ACC+16*t,16)}']
            if n + 8 < 56: g += self.wread(p2[n+8][0], p2[n+8][1], n % 8, f'y{n+8}')
            mm.append(g)
        self.run(self.zipper(mm, epi(0, self.gelu_sc)))
        self.stamp('pass2')
        for t in (1, 2, 3): self.run(epi(t, self.gelu_pk))
        RP = 16 * 1040
        work = self.w4_read(4)[3:]
        work += S(f'''v_lshrrev_b32 v250, 4, {LANE}
            v_mul_u32_u24 v250, 1040, v250
            v_and_b32 v251, 15, {LANE}
            v_lshl_add_u32 v250, v251, 4, v250
            s_lshl_b32 {T0}, {WAVE}, 8
            s_add_u32 {T0}, {T0}, {4*RP}
            v_add_u32 v250, {T0}, v250''')
        work += [(f'ds_write_b128 v250, {vr(RES+4*j,4)} offset:{4*j*1040}', 'rs') for j in range(4)]
        work += S(f'''v_lshrrev_b32 v4, 5, {LANE}
            v_mul_u32_u24 v4, 1040, v4
            v_and_b32 v251, 31, {LANE}
            v_lshl_add_u32 v4, v251, 4, v4
            s_mul_i32 {T1}, {WAVE}, {RP}
            v_add_u32 v4, {T1}, v4
            v_and_b32 v251, 7, {LANE}
            v_mul_u32_u24 v5, 2080, v251
            v_lshrrev_b32 v7, 3, {LANE}
            v_lshl_add_u32 v5, v7, 4, v5
            s_lshl_b32 {T1}, {WAVE}, 7
            v_add_u32 v5, {T1}, v5
            v_add_u32 v6, {3*RP}, v5
            v_mul_u32_u24 v7, 896, v7
            v_lshl_add_u32 v7, v251, 4, v7
            s_mul_i32 {T6}, {RB}, {224*1024}
            s_mul_i32 {T1}, {WAVE}, 57344
            s_add_u32 {T6}, {T6}, {T1}
            s_add_u32 {T6}, {T6}, {U_}
            s_lshl_b32 {T4}, {RB}, 3
            s_add_u32 {T4}, {T4}, {WAVE}
            s_mul_i32 {T4}, {T4}, {8*896}
            s_lshl_b32 {T5}, {CG}, 7
            s_add_u32 {T4}, {T4}, {T5}
            s_add_u32 {T5}, {T4}, {32*896}
            s_lshl_b32 {T2}, {TEAM}, 4''')
        self.finish(5, SLOTB, work, [], split=600, post=[self.W(lg='all')])

    def p7(self):
        a = self.a
        ACC, AF, NS, R = 32, 144, 24, 96
        RP = 16 * 1040
        self.poll(5, T2, '0x3fff')
        def aload(n):
            tm, i = n // 28, n % 28
            u = []
            if i == 0: u.append(f's_add_u32 {T3}, {T6}, {512*tm}')
            elif i % 2 == 0: u.append(f's_add_u32 {T3}, {T3}, 4096')
            return u + [(f'buffer_load_dwordx4 {vr(AF+4*(n%NS),4)}, {V32}, {WS}, {T3} offen offset:{(i&1)*2048} sc1', f'a{n}')]
        def wr(tm): return [(f'ds_write_b128 v4, {vr(ACC+16*(2*tm+tn)+4*q,4)} offset:{(8*tn+2*q)*1040 + tm*512}', 'rd') for tn in range(2) for q in range(4)]
        def rd(tm):
            return [(f'ds_read_b128 {vr(R+(e*5+w)*4,4)}, {"v5" if w < 3 else "v6"} offset:{(w%3)*RP + e*1040 + tm*512}', 'rr') for e in range(2) for w in range(5)]
        def fin(tm, pk):
            L = []
            for e in range(2):
                b = R + e*20
                if pk:
                    for x, y in ((0, 4), (8, 12), (0, 16), (0, 8)):
                        L += [f'v_pk_add_f32 {vr(b+x+2*hh,2)}, {vr(b+x+2*hh,2)}, {vr(b+y+2*hh,2)}' for hh in range(2)]
                else:
                    for x, y in ((0, 4), (8, 12), (0, 16), (0, 8)):
                        L += [f'v_add_f32 v{b+x+d}, v{b+x+d}, v{b+y+d}' for d in range(4)]
                L += [f'v_cvt_pk_bf16_f32 v{8+4*tm+2*e+hh}, v{b+2*hh}, v{b+2*hh+1}' for hh in range(2)]
            L.append((f'buffer_store_dwordx4 {vr(8+4*tm,4)}, v7, {OUT}, {T5 if tm else T4} offen sc1', 'st'))
            return L
        PRE = self.opt.get('p7pre', 12)
        for n in range(PRE): self.run(aload(n))
        side = {}
        w0 = wr(0)
        for k in range(8): side[29 + k] = [w0[k]]
        side[39] = [self.W(lg='rd'), 's_barrier']
        r0 = rd(0)
        for k in range(5): side[40 + k] = r0[2*k:2*k+2]
        f0 = [self.W(lg='rr')] + fin(0, False)
        for k in range(8): side[46 + k] = f0[(len(f0)*k)//8:(len(f0)*(k+1))//8]
        for n in range(56):
            tm, i = n // 28, n % 28
            a.wait(vm=f'a{n}')
            for tn in range(2):
                b = (i * 2 + tn) * 4; c = ACC + 16 * (2*tm + tn)
                a(f'v_mfma_f32_32x32x16_bf16 {vr(c,16)}, a[{b}:{b+3}], {vr(AF+4*(n%NS),4)}, {vr(c,16) if i else 0}')
                if tn == 0 and n + PRE < 56: self.run(aload(n + PRE))
            self.run(side.get(n, []))
        self.stamp('mm')
        self.run(wr(1))
        a.wait(lg='all')
        a('s_barrier')
        self.run(rd(1))
        a.wait(lg='all')
        self.run(fin(1, True))
        self.stamp('zdone')

    def pf(self, srd, start, nbytes, parts, idx, rot=True, fl='', stride=1):
        a = self.a
        per = -(-nbytes // parts // (128*stride)) * 128*stride
        n = -(-per // (32768*stride))
        a(f's_mul_i32 {T0}, {idx}, {per}\ns_add_u32 {T0}, {T0}, {start}')
        if rot and n > 1:
            a(f's_lshr_b32 {T1}, {TEAM}, 1\ns_mul_i32 {T1}, {T1}, {n}\ns_lshr_b32 {T1}, {T1}, 3')
        else:
            a(f's_mov_b32 {T1}, 0')
        a(f's_mov_b32 {T3}, {n}')
        L = a.label('pf')
        a(f'{L}:')
        a(f's_lshl_b32 {T2}, {T1}, {14+stride}\nv_lshl_add_u32 v41, v40, {stride-1}, {T2}\nv_cmp_gt_u32 vcc, {per}, v41')
        a(f's_add_u32 {T1}, {T1}, 1\ns_cmp_ge_u32 {T1}, {n}\ns_cselect_b32 {T1}, 0, {T1}')
        a(f'v_cndmask_b32 v41, v42, v41, vcc')
        a.raw(f'buffer_load_dword v43, v41, {srd}, {T0} offen {fl}')
        a(f's_sub_u32 {T3}, {T3}, 1\ns_cmp_lg_u32 {T3}, 0\ns_cbranch_scc1 {L}')

    def helper_setup(self):
        a = self.a
        a(f'v_lshl_add_u32 v40, {WAVE}, 6, {LANE}\nv_lshlrev_b32 v40, 7, v40\nv_mov_b32 v42, {OOB}')
        a(f's_lshl_b32 {T5}, {TEAM}, 1\ns_add_u32 {T5}, {T5}, {MEM}\ns_sub_u32 {T5}, {T5}, 14\ns_and_b32 {T4}, {T5}, 3')
    def pf_w4(self, rnd):
        t = self.W4R[rnd]
        self.a(f's_mul_i32 {T6}, {T4}, {448*896}\ns_add_u32 {T6}, {T6}, {32*t[0]*896}')
        self.pf(W4, T6, len(t)*32*896, 1, 0)

    def helper_head(self):
        a = self.a
        pf = self.opt.get('pf', 1)
        a(f'buffer_load_dword v4, v255, {WS}, 0 offen sc1', 'epoch')
        self.run(self.common_setup())
        self.helper_setup()
        if pf:
            a(f's_getpc_b64 s[60:61]\nL_pc:\ns_sub_u32 s60, s60, L_pc-{NAME}_kernel\ns_subb_u32 s61, s61, 0')
            a(f's_mov_b32 s62, L_end-{NAME}_kernel\ns_mov_b32 s63, 0x20000')
            self.pf('s[60:63]', 0, 40960, 4, T4, rot=False)
            self.pf(WS, FLAGS, 6*65536, 32, T5, rot=False, fl='sc1', stride=2)
            self.pf(WO, 0, 448*896, 32, T5, rot=False)
            self.pf(W4, 0, 1792*896, 32, T5, rot=False)
            self.stamp('a')
            self.pf(W1, 0, 448*896, 32, T5, rot=False)
            self.pf(W2, 0, 448*896, 32, T5, rot=False)
            self.pf(W3, 0, 448*3584, 32, T5, rot=False)
            self.stamp('b')
            self.pf_w4(1)
        self.run(self.get_tag())
        self.stamp('c')
        self.run(self.p2_setup())

    def helper_tail(self):
        a = self.a
        self.finish(1, SLOTB)
        self.helper_setup()
        if self.opt.get('pf', 1):
            if self.opt.get('pfg', 1): self.pf(WS, G_, 32*57344, 32, T5, rot=False, fl='sc1')
            self.pf_w4(3)
            self.stamp('d')
            self.pf(W3, 0, 448*3584, 4, T4, stride=2)
            self.stamp('e')
            self.pf(W3, 128, 448*3584, 4, T4, stride=2)
            self.stamp('f')
            self.pf_w4(4)
            a.raw('s_waitcnt vmcnt(0)')
            self.stamp('g')
        a(f's_cmp_lg_u32 {SLOTB}, 15\ns_cbranch_scc1 L_fin')
        for q in range(4):
            a(f's_mov_b32 {T2}, {64*q}')
            self.poll(1, T2, '-1')
        a(f's_cmp_lg_u32 {WAVE}, 0\ns_cbranch_scc1 L_fin')
        a(f'v_mov_b32 v254, {TAG}\nv_mov_b32 v255, 0\ns_mov_b64 exec, 1')
        a.raw(f'buffer_store_dword v254, v255, {WS}, 0 offen sc1')
        a('s_mov_b64 exec, -1')
        a('s_branch L_fin')

    def build(self):
        a = self.a
        self.prologue()
        a('s_cbranch_scc0 L_p1')
        if self.opt.get('pf', 1):
            a.raw(f'buffer_load_dword v43, v40, {WQ}, s68 offen')
            a(f's_add_u32 s68, s68, {38*128}')
            a.raw(f'buffer_load_dword v43, v40, {WQ}, s68 offen')
        a('s_branch L_hh')
        a('L_p1:')
        self.ph = 'p1'
        self.p1()
        a('L_att:')
        self.ph = 'p2'
        self.p2()
        a(f's_cmp_lt_u32 {MEM}, 14\ns_cbranch_scc1 L_p3')
        st = (list(a.vm), list(a.lg))
        self.ph = 'hh'
        self.helper_tail()
        a('L_hh:')
        a.vm, a.lg = [], []
        self.helper_head()
        a('s_branch L_att')
        a('L_p3:')
        a.vm, a.lg = st
        self.ph = 'p2'
        self.p2_finish()
        for n, f in enumerate((self.p3, self.p4, self.p5, self.p6, self.p7)):
            self.ph = f'p{n+3}'
            f()
        a('L_fin:')
        if self.stamps:
            a.raw('s_waitcnt vmcnt(0)')
            a('s_memrealtime s[60:61]\ns_memtime s[62:63]')
            a.raw('s_waitcnt lgkmcnt(0)')
            a(f's_cmp_lg_u32 {WAVE}, 0\ns_cbranch_scc1 L_end')
            a(f's_lshl_b32 {T0}, s2, 8\ns_add_u32 {T0}, {T0}, {STAMPS}\ns_mov_b64 exec, 1\nv_mov_b32 v255, 0')
            for i in range(self.nstamp):
                a(f'v_mov_b32 v254, s{100-2*i}')
                a.raw(f'buffer_store_dword v254, v255, {WS}, {T0} offen offset:{4*i}')
            for i, r in enumerate(('s101', 's60', 's62')):
                a(f'v_mov_b32 v254, {r}')
                a.raw(f'buffer_store_dword v254, v255, {WS}, {T0} offen offset:{240+4*i}')
        a('L_end:')
        a('s_endpgm')
        hdr = open('cdna_kernels/' + NAME + '.s.ref').read().split('; Override')[0]
        hdr += '; Generated by a hand-written generator script (persistent fused kernel, one workgroup per CU).\n'
        hdr += '; @launch grid=(256,1,1) block=(256,1,1) lds=163840\n'
        hdr += f'.amdgcn_target "amdgcn-amd-amdhsa--gfx950"\n.text\n.globl {NAME}_kernel\n.p2align 8\n.type {NAME}_kernel,@function\n{NAME}_kernel:\n'
        kd = f"""
.section .rodata,"a"
.p2align 6
.amdhsa_kernel {NAME}_kernel
  .amdhsa_next_free_vgpr 512
  .amdhsa_next_free_sgpr 102
  .amdhsa_accum_offset 256
  .amdhsa_group_segment_fixed_size 0
  .amdhsa_kernarg_size 88
  .amdhsa_user_sgpr_count 2
  .amdhsa_user_sgpr_kernarg_segment_ptr 1
  .amdhsa_system_sgpr_workgroup_id_x 1
.end_amdhsa_kernel
"""
        return hdr + a.text() + kd

if __name__ == '__main__':
    import argparse
    ap = argparse.ArgumentParser()
    ap.add_argument('-o', default='cdna_kernels/' + NAME + '.s')
    ap.add_argument('--stamps', default='')
    ap.add_argument('opts', nargs='*')
    args = ap.parse_args()
    g = Gen()
    g.stamps = bool(args.stamps)
    g.sel = args.stamps.split(',') if args.stamps != 'z' else [f'p{i}.z' for i in range(8)]
    g.opt = {k: int(v) for k, v in (o.split('=') for o in args.opts)}
    txt = g.build()
    open(args.o, 'w').write(txt)
    if args.stamps: open(args.o + '.stamps', 'w').write('\n'.join(g.stamp_names))
    print('instructions', len(g.a.ins), 'auto nops', g.a.nops, file=sys.stderr)
```

```python
import sys, struct, math
sys.path.insert(0, 'gen')
from asm import Asm, vr

NAME = 'sequential_preLN__sliding_block__mixer_s_mlp__prompt'
def f2u(x): return struct.unpack('<I', struct.pack('<f', x))[0]
def hx(x): return '0x%08x' % (x & 0xffffffff)
def hf(x): return hx(f2u(x))

FLAGS = 0x10000
QKV, O_, H_, G_, X1_, U_ = 0x100000, 0x700000, 0x900000, 0xB00000, 0xD00000, 0xF00000
STH, STX = 0x80000, 0xA0000
STAMPS = 0x2000000
OOB = 0x40000000
S0, S1, S2 = 0, 57344, 114688
KP = 3104
KB, VB = S1, S1 + 8 * KP
CS = S2 + 49152 - 1024
XP = 912
WSL = 64 * XP
RSD = WSL + 4 * 24576
WS, XS, WQ, WO, W1, W2, W3, W4, OUT = 's[4:7]', 's[8:11]', 's[12:15]', 's[16:19]', 's[20:23]', 's[24:27]', 's[28:31]', 's[32:35]', 's[36:39]'
TEAM, MEM, RB, CG, WAVE, TAG, RH, SLOTA, SLOTB = 's40', 's41', 's42', 's43', 's44', 's45', 's46', 's47', 's3'
ONES, LO1, HI1, FL0 = 's48', 's49', 's50', 's51'
T0, T1, T2, T3, T4, T5, T6, T7 = 's52', 's53', 's54', 's55', 's56', 's57', 's58', 's59'
D0, D1 = 's64', 's65'
WV14, WV12, IMG9, W4O, IMG3, TB16, STO, RB57 = 's66', 's67', 's68', 's69', 's70', 's71', 's72', 's73'
NSTAMP = 14
VO = 248
aA0, aB0, aVA, aVB, aVC = 'a248', 'a249', 'a250', 'a251', 'a252'
NBIG = f2u(-1e30)
EPS = 1e-5
QSCALE = (28 ** -0.5) * math.log2(math.e)
K1 = -2 * math.sqrt(2 / math.pi) * math.log2(math.e)
K2 = K1 * 0.044715
LANE, VA16, V32 = 'v1', 'v2', 'v3'
HPK = 8
RES = 16

def S(text): return [l.strip() for l in text.split('\n') if l.strip()]
def flat(G): return [x for g in G for x in g]
def cost(it):
    if callable(it): return 4
    t = it[0] if isinstance(it, tuple) else it
    if t.startswith('v_mfma'): return 24 if '32x32' in t else 10
    if t.startswith(('v_exp', 'v_rcp', 'v_rsq')): return 8
    if t.startswith('ds_read_b128') or t.startswith('ds_write_b128'): return 16
    if t.startswith('ds_'): return 8
    return 4
def weave(main, units, gap=64, first=0):
    out = []; acc = gap - first; units = list(units)
    for it in main:
        if units and acc >= gap:
            out += units.pop(0); acc = 0
        out.append(it); acc += cost(it)
    return out, units

class Gen:
    def __init__(self):
        self.a = Asm()
        self.stamps = False
        self.nstamp = 0
        self.stamp_names = []
        self.ph = 'p0'
        self.sel = []
        self.opt = {}

    def stamp(self, name):
        name = self.ph + '.' + name
        if not self.stamps: return
        if name != 'p0.start' and not any(name.startswith(p) for p in self.sel): return
        i = self.nstamp; self.nstamp += 1
        assert i < NSTAMP
        self.stamp_names.append(name)
        self.a(f's_memtime s[{100-2*i}:{101-2*i}]')
    def ST(self, name): return lambda: self.stamp(name)

    def run(self, items):
        for it in items:
            if callable(it): it()
            elif isinstance(it, tuple): self.a(it[0], it[1])
            else: self.a(it)

    def zipper(self, main, fill):
        n = len(main); out = []; k = 0
        for i, g in enumerate(main):
            out += g
            upto = (len(fill) * (i + 1)) // n
            out += fill[k:upto]; k = upto
        return out

    def W(self, vm=None, lg=None): return lambda: self.a.wait(vm=vm, lg=lg)

    def WN(self, tag, n, lg=None):
        def f():
            assert self.a.cnt.get(tag, 0) == n, (tag, self.a.cnt.get(tag, 0), n)
            self.a.wait(vm=tag, lg=lg)
        return f

    def finish(self, phase, slot, work=[], units=[], split=800, post=[]):
        a = self.a
        self.stamp('st')
        if work or units:
            a.wait(lg='all')
            a('s_barrier')
        L, left = weave(work, units)
        L += flat(left)
        acc = 0; cut = len(L); nd = 0
        for i, it in enumerate(L):
            t = it[0] if isinstance(it, tuple) else (it if isinstance(it, str) else '')
            if t.startswith('buffer_load'): nd += 1
            acc += cost(it)
            if acc >= split or nd > 9: cut = i; break
        self.run(L[:cut])
        self.stamp('bg1')
        a(f's_lshl_b32 {FL0}, {slot}, 8\ns_add_u32 {FL0}, {FL0}, {FLAGS + phase * 65536}')
        a(f'v_mov_b32 v254, {TAG}\nv_lshlrev_b32 v255, 2, {LANE}')
        a.wait(vm='st', lg=(None if (work or units) else 'all'))
        self.stamp('drain')
        a('s_barrier')
        self.stamp('zflag')
        Lb = a.label('sig')
        a(f's_cmp_lg_u32 {WAVE}, 0\ns_cbranch_scc1 {Lb}')
        a('s_mov_b32 exec_hi, 0')
        a.raw(f'buffer_store_dword v254, v255, {WS}, {FL0} offen sc1')
        a('s_mov_b32 exec_hi, -1')
        a(f'{Lb}:')
        self.run(L[cut:])
        self.run(post)
        self.stamp('bg2')

    def poll(self, phase, base, mask):
        a = self.a
        self.stamp('prepoll')
        L = a.label('pskip'); P = a.label('poll'); K = a.label('pok')
        a(f's_cmp_lg_u32 {WAVE}, 0\ns_cbranch_scc1 {L}')
        a(f'v_add_u32 v254, {base}, {LANE}\nv_and_b32 v254, 255, v254\nv_lshlrev_b32 v254, 8, v254')
        a(f's_mov_b32 {T0}, {FLAGS + phase * 65536}\ns_mov_b32 {T1}, 300000')
        a(f's_mov_b64 exec, {mask}')
        a(f'{P}:')
        a.raw(f'buffer_load_dword v255, v254, {WS}, {T0} offen sc1')
        a.raw('s_waitcnt vmcnt(0)')
        a(f'v_cmp_ne_u32 vcc, {TAG}, v255')
        a(f's_sub_u32 {T1}, {T1}, 1')
        a(f's_cbranch_vccz {K}')
        a(f's_cmp_lg_u32 {T1}, 0\ns_cbranch_scc1 {P}')
        a(f'{K}:')
        a('s_mov_b64 exec, -1')
        a(f'{L}:')
        a('s_barrier')
        self.stamp('zpoll')

    def voff_calc(self, v, pitch, typ):
        L = [f'v_lshrrev_b32 v252, 3, {LANE}', f'v_mul_u32_u24 {v}, {pitch}, v252']
        if typ == 'A': L += [f'v_lshrrev_b32 v252, 4, {LANE}', 'v_lshlrev_b32 v252, 1, v252']
        else: L += [f'v_bfe_u32 v252, {LANE}, 4, 1', 'v_lshlrev_b32 v252, 2, v252']
        L += [f'v_and_b32 v253, 7, {LANE}', 'v_xor_b32 v252, v252, v253', f'v_lshl_add_u32 {v}, v252, 4, {v}']
        return L
    def dma_units(self, srd, pitch, stash, src, srcadd, dst, dstadd, n, tag, pre=[]):
        U = []
        for i in range(n):
            u = []
            if i == 0:
                u += pre + [f'v_accvgpr_read_b32 v{VO}, {stash}', f's_add_u32 {D0}, {src}, {srcadd}']
                u += [f'v_add_u32 v{VO+k}, {k*(8*pitch-1024)}, v{VO}' for k in range(1, 4)]
            if i % 4 == 0:
                u.append(f's_add_u32 m0, {dst}, {dstadd + i*1024}')
                if i: u.append(f's_add_u32 {D0}, {D0}, {32*pitch}')
            u.append((f'buffer_load_dwordx4 v{VO+(i&3)}, {srd}, {D0} offen offset:{(i&3)*1024} lds', tag))
            U.append(u)
        return U
    def img9(self, srd, base, tag): return self.dma_units(srd, 896, aVA, IMG9, 0, WV14, base, 14, tag)
    def img3(self, col, base, tag): return self.dma_units(W3, 3584, aVC, IMG3, col, WV14, base, 14, tag)
    W4R = [(0, 1, 2), (3, 4, 5), (6, 7, 8), (9, 10, 11), (12, 13)]
    def w4_units(self, rnd):
        t = self.W4R[rnd]
        return self.dma_units(W4, 896, aVB, W4O, 32*t[0]*896, WV12, 0, 4*len(t), f'w4_{rnd}', pre=[self.W(lg='w4r')])
    def w4_read(self, rnd):
        L = [f'v_accvgpr_read_b32 v253, {aB0}', f'v_add_u32 v253, {WV12}, v253', 'v_xor_b32 v252, 64, v253', self.WN(f'w4_{rnd}', 4*len(self.W4R[rnd]))]
        for n, t in enumerate(self.W4R[rnd]):
            for p in range(2):
                for tn in range(2):
                    b = ((2*t + p) * 2 + tn) * 4
                    off = n*4096 + p*2048
                    L.append((f'ds_read_b64_tr_b16 a[{b}:{b+1}], v{253-tn} offset:{off}', 'w4r'))
                    L.append((f'ds_read_b64_tr_b16 a[{b+2}:{b+3}], v{253-tn} offset:{off+1024}', 'w4r'))
        return L

    def prologue(self):
        a = self.a
        a('s_load_dwordx16 s[48:63], s[0:1], 0\ns_load_dwordx2 s[36:37], s[0:1], 64\ns_load_dwordx2 s[4:5], s[0:1], 80')
        a('s_cmp_ge_u32 s2, 256\ns_cbranch_scc1 L_end')
        self.stamp('start')
        if self.stamps: a('s_memrealtime vcc')
        a(f'v_and_b32 {LANE}, 63, v0\nv_lshlrev_b32 v40, 7, v0\nv_lshrrev_b32 v0, 6, v0')
        a(f's_and_b32 {TEAM}, s2, 7\ns_lshl_b32 {TEAM}, {TEAM}, 1\ns_lshr_b32 {MEM}, s2, 7\ns_add_u32 {TEAM}, {TEAM}, {MEM}')
        a(f's_bfe_u32 {MEM}, s2, 0x40003')
        a(f'v_readfirstlane_b32 {WAVE}, v0')
        a(f's_cmp_ge_u32 {MEM}, 7\ns_cselect_b32 {RH}, 1, 0\ns_mul_i32 {CG}, {RH}, 7\ns_sub_u32 {CG}, {MEM}, {CG}')
        a(f's_lshl_b32 {RB}, {TEAM}, 1\ns_add_u32 {RB}, {RB}, {RH}')
        a(f'v_lshrrev_b32 v250, 3, {LANE}\nv_and_b32 v251, 7, {LANE}\nv_mul_u32_u24 v239, 896, v250\nv_lshl_add_u32 v239, v251, 4, v239')
        a(f's_lshl_b32 {D0}, {RB}, 2\ns_add_u32 {D0}, {D0}, {WAVE}\ns_mul_i32 {D0}, {D0}, {16*896}\ns_add_u32 {D1}, {D0}, {8*896}')
        a(f's_lshl_b32 s66, {CG}, 7\ns_add_u32 s67, s66, {D1}\ns_add_u32 s66, s66, {D0}')
        a(f's_mov_b32 s10, {2048*896}\ns_mov_b32 s11, 0x20000\ns_mov_b32 s14, {448*2688}\ns_mov_b32 s15, 0x20000')
        a('s_mov_b32 s6, 0x10000000\ns_mov_b32 s7, 0x20000\nv_mov_b32 v255, 0')
        a(f's_lshl_b32 s68, {TEAM}, 1\ns_add_u32 s68, s68, {MEM}\ns_sub_u32 s68, s68, 14\ns_mul_i32 s68, s68, {294*128}')
        a(f's_cmp_ge_u32 {MEM}, 14')
        a.raw('s_waitcnt lgkmcnt(0)')
        a('s_mov_b32 s8, s48\ns_mov_b32 s9, s49\ns_mov_b32 s12, s50\ns_mov_b32 s13, s51')
        if self.stamps: a('s_mov_b32 s101, vcc_lo')

    def common_setup(self):
        L = []
        for base, src, size in [(16, 52, 448*896), (20, 56, 448*896), (24, 58, 448*896), (28, 60, 448*3584), (32, 62, 1792*896)]:
            L += S(f's_mov_b32 s{base}, s{src}\ns_mov_b32 s{base+1}, s{src+1}\ns_mov_b32 s{base+2}, {size}\ns_mov_b32 s{base+3}, 0x20000')
        L += S(f"""s_mov_b32 s38, {2048*896}
            s_mov_b32 s39, 0x20000
            s_mov_b32 {ONES}, 0x3f803f80
            s_mov_b32 {LO1}, 0x00003f80
            s_mov_b32 {HI1}, 0x3f800000
            s_lshl_b32 {SLOTA}, {RB}, 3
            s_add_u32 {SLOTA}, {SLOTA}, {CG}
            s_lshl_b32 {SLOTB}, {TEAM}, 4
            s_add_u32 {SLOTB}, {SLOTB}, {MEM}
            s_mul_i32 {WV14}, {WAVE}, 14336
            s_mul_i32 {WV12}, {WAVE}, 12288
            s_add_u32 {WV12}, {WV12}, {S2}
            s_lshl_b32 {T0}, {CG}, 7""")
        L.append(f's_cmp_ge_u32 {MEM}, 14\ns_cselect_b32 {T0}, {OOB}, {T0}')
        L += S(f"""s_mul_i32 {IMG9}, {WAVE}, {112*896}
            s_add_u32 {IMG9}, {IMG9}, {T0}
            s_mul_i32 {W4O}, {WAVE}, {448*896}
            s_add_u32 {W4O}, {W4O}, {T0}
            s_mul_i32 {IMG3}, {WAVE}, {112*3584}
            s_lshl_b32 {T0}, {MEM}, 8
            s_add_u32 {IMG3}, {IMG3}, {T0}
            s_mul_i32 {RB57}, {RB}, 57344
            s_lshl_b32 {TB16}, {CG}, 13
            s_add_u32 {TB16}, {TB16}, {RB57}
            s_lshl_b32 {STO}, {SLOTA}, 9
            s_lshl_b32 {T0}, {WAVE}, 7
            s_add_u32 {STO}, {STO}, {T0}
            v_lshrrev_b32 v250, 4, {LANE}
            v_and_b32 v251, 15, {LANE}
            v_lshlrev_b32 v251, 4, v251
            v_lshl_add_u32 {VA16}, v250, 10, v251
            v_lshl_add_u32 {VA16}, v0, 8, {VA16}
            v_lshrrev_b32 v250, 5, {LANE}
            v_and_b32 v251, 31, {LANE}
            v_lshlrev_b32 v251, 4, v251
            v_lshl_add_u32 {V32}, v250, 10, v251
            v_lshrrev_b32 v250, 2, {LANE}
            v_lshlrev_b32 v251, 7, v250
            v_and_b32 v250, 6, v250
            v_lshl_add_u32 v251, v250, 4, v251
            v_and_b32 v250, 3, {LANE}
            v_lshl_add_u32 v251, v250, 3, v251
            v_accvgpr_write_b32 {aA0}, v251
            v_lshrrev_b32 v252, 5, {LANE}
            v_lshlrev_b32 v251, 9, v252
            v_bfe_u32 v252, {LANE}, 2, 2
            v_lshl_add_u32 v251, v252, 7, v251
            v_bfe_u32 v252, {LANE}, 4, 1
            v_lshl_add_u32 v251, v252, 5, v251
            v_lshl_add_u32 v251, v250, 3, v251
            v_bfe_u32 v252, {LANE}, 3, 1
            v_lshl_add_u32 v251, v252, 6, v251
            v_accvgpr_write_b32 {aB0}, v251""")
        for st, pitch, typ in ((aVA, 896, 'A'), (aVB, 896, 'B'), (aVC, 3584, 'B')):
            L += self.voff_calc('v251', pitch, typ) + [f'v_accvgpr_write_b32 {st}, v251']
        return L

    def gaddr_setup(self):
        L = S(f"""v_and_b32 v104, 15, {LANE}
            s_lshl_b32 {T0}, {RB}, 6
            s_lshl_b32 {T1}, {WAVE}, 4
            s_add_u32 {T0}, {T0}, {T1}
            v_add_u32 v104, {T0}, v104
            v_and_b32 v105, 48, {LANE}
            v_lshlrev_b32 v105, 2, v105""")
        for j in range(4):
            mixcg = 5 if j < 2 else 1
            L.append(f's_lshl_b32 {T0}, {CG}, 2\ns_add_u32 {T0}, {T0}, {j}\ns_cmp_ge_u32 {T0}, 7\ns_cselect_b32 {T1}, -1, 1\ns_cmp_ge_u32 {T0}, 14\ns_cselect_b32 {T1}, 2, {T1}\n'
                     f's_cmp_ge_u32 {T0}, 21\ns_cselect_b32 {T1}, -2, {T1}\ns_cmp_eq_u32 {CG}, {mixcg}\ns_cselect_b32 {T0}, 3, 4')
            L += S(f"""v_add_u32 v106, {T1}, v104
                v_bfe_i32 v108, v106, 11, 1
                v_bfe_u32 v107, v106, 6, 5
                v_mul_u32_u24 v107, 57344, v107
                v_and_or_b32 v106, v106, 63, v105
                v_lshl_add_u32 v106, v106, {T0}, v107
                v_not_b32 v108, v108
                v_accvgpr_write_b32 a{240+j}, v106
                v_accvgpr_write_b32 a{244+j}, v108""")
        return L

    def burst(self, srd, start, k, idx, wstride, vreg):
        def f():
            a = self.a
            a(f's_mul_i32 {T0}, {idx}, {k*128 * (4 if wstride is None else 1)}\ns_mul_i32 {T1}, {WAVE}, {k*128 if wstride is None else wstride}\ns_add_u32 {T0}, {T0}, {T1}')
            if start: a(f's_add_u32 {T0}, {T0}, {start}')
            a(f'v_lshlrev_b32 v{vreg}, 7, {LANE}\ns_mov_b64 exec, {hx((1 << k) - 1)}')
            a(f'buffer_load_dword v{vreg}, v{vreg}, {srd}, {T0} offen', 'pf')
            a('s_mov_b64 exec, -1')
        return f

    def get_tag(self):
        return [self.W(vm='epoch'), f'v_readfirstlane_b32 {TAG}, v4', f's_mul_i32 {TAG}, {TAG}, 0x9E3779B1', f's_add_u32 {TAG}, {TAG}, 0x7F4A7C15']

    def p1(self):
        a = self.a
        ACC, XR, XF = 32, 128, 80
        WA, WB, XW, XA = 240, 243, 246, 247
        slot = [WSL + 24576 * (c & 3) for c in range(7)]
        XL = [[(f'buffer_load_dwordx4 v[184:187], v239, {XS}, s66 offen', 'xt')], [(f'buffer_load_dwordx4 v[188:191], v239, {XS}, s67 offen', 'xt')]]
        XL += [[(f'buffer_load_dwordx4 {vr(128+4*n,4)}, v239, {XS}, {D1 if n >= 7 else D0} offen offset:{128*(n%7)}', f'x{n}')] for n in range(14)]
        XL.insert(2, [(f'buffer_load_dword v4, v255, {WS}, 0 offen sc1', 'epoch')])
        self.run(flat(XL[:4]))
        NX = self.opt.get('p1nx', 11)
        L, left = weave(self.common_setup(), XL[4:NX], gap=48, first=48)
        self.run(L); self.run(flat(left))
        self.run(self.gaddr_setup())
        self.run(self.voff_calc(f'v{VO}', 2688, 'B') + [f'v_add_u32 v{VO+1}, {8*2688-1024}, v{VO}'])
        def wunits(c):
            U = []
            for i in range(3):
                U.append([f's_add_u32 m0, {D1}, {slot[c] + i*8192}', f's_add_u32 {T7}, {D0}, {64*c*2688 + i*128}', (f'buffer_load_dwordx4 v{VO}, {WQ}, {T7} offen lds', f'wq{c}')])
                U.append([(f'buffer_load_dwordx4 v{VO+1}, {WQ}, {T7} offen offset:1024 lds', f'wq{c}')])
            return U
        a(f's_and_b32 {T4}, {WAVE}, 1\ns_lshr_b32 {T5}, {WAVE}, 1')
        a(f's_mul_i32 {T0}, {WAVE}, {16*XP}\nv_lshrrev_b32 v250, 3, {LANE}\nv_and_b32 v251, 7, {LANE}\nv_mul_u32_u24 v{XW}, {XP}, v250')
        a(f'v_lshl_add_u32 v{XW}, v251, 4, v{XW}\nv_add_u32 v{XW}, {T0}, v{XW}')
        a(f's_lshl_b32 {T1}, {WAVE}, 6\ns_add_u32 {T1}, {T1}, {RSD}\nv_lshl_add_u32 v92, v250, 2, {T1}')
        a(f'v_and_b32 v250, 15, {LANE}\nv_lshrrev_b32 v251, 4, {LANE}\nv_mul_u32_u24 v93, {XP}, v250\nv_lshl_add_u32 v93, v251, 3, v93\nv_add_u32 v93, {T0}, v93')
        a(f's_mul_i32 {T0}, {T4}, {32*XP}\nv_and_b32 v250, 31, {LANE}\nv_lshrrev_b32 v251, 5, {LANE}\nv_mul_u32_u24 v{XA}, {XP}, v250')
        a(f'v_lshl_add_u32 v{XA}, v251, 4, v{XA}\nv_add_u32 v{XA}, {T0}, v{XA}')
        a(f's_lshl_b32 {T1}, {T4}, 7\ns_add_u32 {T1}, {T1}, {RSD}\nv_lshl_add_u32 v94, v250, 2, {T1}')
        a(f'v_lshlrev_b32 v95, 3, v250\nv_lshl_add_u32 v95, v251, 10, v95')
        a(f'v_accvgpr_read_b32 v250, {aB0}\nv_lshl_add_u32 v250, v251, 9, v250')
        a(f's_mul_i32 {T0}, {T5}, 3')
        for i in range(3):
            a(f's_add_u32 {T1}, {T0}, {i}\ns_and_b32 {T2}, {T1}, 1\ns_lshl_b32 {T2}, {T2}, 6\ns_lshr_b32 {T1}, {T1}, 1\ns_lshl_b32 {T1}, {T1}, 13\ns_add_u32 {T1}, {T1}, {WSL}')
            a(f'v_xor_b32 v{WA+i}, {T2}, v250\nv_add_u32 v{WA+i}, {T1}, v{WA+i}\nv_add_u32 v{WB+i}, 49152, v{WA+i}')
        a(f's_mul_i32 {T6}, {CG}, 6\ns_add_u32 {T6}, {T6}, {T0}')
        a(f's_mul_i32 {T3}, {TEAM}, {336*1024}\ns_lshl_b32 {T2}, {T6}, 13\ns_add_u32 {T3}, {T3}, {T2}')
        a(f's_lshl_b32 {T2}, {RH}, 9\ns_add_u32 {T3}, {T3}, {T2}\ns_lshl_b32 {T2}, {T4}, 8\ns_add_u32 {T3}, {T3}, {T2}\ns_add_u32 {T3}, {T3}, {QKV}')
        for i in range(8): a(f'v_mov_b32 v{96+i}, 0')
        self.stamp('setup')
        self.run(flat(XL[NX:]))
        a(f's_mul_i32 {D0}, {WAVE}, {16*2688}\ns_mul_i32 {D1}, {CG}, 384\ns_add_u32 {D0}, {D0}, {D1}\ns_lshl_b32 {D1}, {WAVE}, 11')
        WU = wunits(0) + wunits(1) + wunits(2) + wunits(3)
        M = [self.W(vm='xt'), self.ST('x0'), (f'ds_write_b128 v{XW}, v[184:187]', 'xw'), (f'ds_write_b128 v{XW}, v[188:191] offset:{8*XP}', 'xw'), self.W(lg='xw')]
        M += [(f'ds_read_b64 {vr(HPK+2*j,2)}, v93 offset:{32*j}', 'xtr') for j in range(4)]
        for n in range(14):
            e = n // 7
            M.append(self.W(vm=f'x{n}'))
            for d in range(4):
                M.append(f'v_dot2c_f32_bf16 v{96+4*e+(d&1)}, {ONES}, v{XR+4*n+d}')
                M.append(f'v_dot2c_f32_bf16 v{98+4*e+(d&1)}, v{XR+4*n+d}, v{XR+4*n+d}')
        M.append(self.ST('x_in'))
        M += [f'v_add_f32 v{96+2*k}, v{96+2*k}, v{97+2*k}' for k in range(4)]
        for dpp in ('quad_perm:[1,0,3,2]', 'quad_perm:[2,3,0,1]', 'row_half_mirror'):
            M += [f'v_add_f32_dpp v{96+2*k}, v{96+2*k}, v{96+2*k} {dpp} row_mask:0xf bank_mask:0xf' for k in range(4)]
        for e in range(2):
            s_, q_ = 96 + 4*e, 98 + 4*e
            M += [f'v_mul_f32 v{s_}, {hf(-1/448)}, v{s_}', f'v_mul_f32 v{q_}, {hf(1/448)}, v{q_}', f'v_fma_f32 v{q_}, -v{s_}, v{s_}, v{q_}', f'v_max_f32 v{q_}, 0, v{q_}',
                  f'v_add_f32 v{q_}, {hf(EPS)}, v{q_}', f'v_rsq_f32 v{q_}, v{q_}']
        M.append(self.W(lg='xtr'))
        for n in range(14):
            e, i = n // 7, n % 7
            for d in range(4):
                M.append(f'v_dot2_f32_bf16 v{112+2*d}, v{XR+4*n+d}, {LO1}, v{96+4*e}')
                M.append(f'v_dot2_f32_bf16 v{113+2*d}, v{XR+4*n+d}, {HI1}, v{96+4*e}')
            M += [f'v_cvt_pk_bf16_f32 v{XR+4*n+d}, v{112+2*d}, v{113+2*d}' for d in range(4)]
            M.append((f'ds_write_b128 v{XW}, {vr(XR+4*n,4)} offset:{e*8*XP + 128*i}', 'xw'))
        M += [('ds_write_b32 v92, v98', 'xw'), ('ds_write_b32 v92, v102 offset:32', 'xw')]
        L, left = weave(M, WU, gap=self.opt.get('p1gap', 56), first=self.opt.get('p1first', 30))
        self.run(L); self.run(flat(left))
        self.stamp('norm')
        def wreg(s, i): return f'a[{(s%3)*12+4*i}:{(s%3)*12+4*i+3}]'
        def sync(s): return [self.WN(f'wq{s>>2}', 6), 's_barrier'] if s & 3 == 0 else []
        def reads(s, i):
            c, k = s >> 2, s & 3
            ar, off = (WA + i, 24576 * (c & 1)) if (c & 3) < 2 else (WB + i, 24576 * (c & 1))
            r0 = (s % 3) * 12 + 4 * i
            L = [(f'ds_read_b64_tr_b16 a[{r0}:{r0+1}], v{ar} offset:{off + k*2048}', f'wf{s}'), (f'ds_read_b64_tr_b16 a[{r0+2}:{r0+3}], v{ar} offset:{off + k*2048 + 512}', f'wf{s}')]
            if i == 2: L.append((f'ds_read_b128 {vr(XF+4*(s%3),4)}, v{XA} offset:{32*s}', f'wf{s}'))
            return L
        a.wait(lg='all')
        self.run(sync(0))
        a('ds_read_b32 v123, v94', 'rs')
        for q in range(2):
            for i in range(3): self.run(reads(q, i))
        pend = []
        for s in range(28):
            if s + 2 < 28:
                self.run(sync(s + 2))
                c = (s + 2) >> 2
                if (s + 2) & 3 == 0 and 2 <= c <= 4: pend = wunits(c + 2)
            a.wait(lg=f'wf{s}')
            for i in range(3):
                a(f'v_mfma_f32_32x32x16_bf16 {vr(ACC+16*i,16)}, {wreg(s,i)}, {vr(XF+4*(s%3),4)}, {vr(ACC+16*i,16) if s else 0}')
                if s + 2 < 28: self.run(reads(s + 2, i))
                if pend and i != 2: self.run(pend.pop(0))
            if s == 20: self.run(self.get_tag())
            if self.opt.get('b1', 1):
                if s == 17: a(f's_and_b32 {T4}, {RB}, 3\ns_mul_i32 {T4}, {T4}, 7\ns_add_u32 {T4}, {T4}, {CG}')
                if s == 18: self.burst(WO, 0, 28, T4, None, 104)()
                if s == 19: self.burst(W4, 0, 24, T4, 448*896, 105)()
            if s == 24:
                for i in range(3):
                    a(f's_add_u32 {T2}, {T6}, {i}\ns_cmp_lt_u32 {T2}, 14\ns_cselect_b32 {T2}, {hf(QSCALE)}, 1.0\nv_mul_f32 v{96+2*i}, {T2}, v123')
        self.stamp('mm')
        for i in range(3):
            for k in range(8):
                r = ACC + 16*i + 2*k
                a(f'v_pk_mul_f32 {vr(r,2)}, {vr(r,2)}, {vr(96+2*i,2)} op_sel_hi:[1,0]')
            for q in range(4):
                for k in (2*q, 2*q+1):
                    a(f'v_cvt_pk_bf16_f32 v{XR+8*i+k}, v{ACC+16*i+2*k}, v{ACC+16*i+2*k+1}')
                if q % 2 == 0: a(f's_add_u32 {T2}, {T3}, {i*8192 + q*2048}')
                a(f'buffer_store_dwordx2 {vr(XR+8*i+2*q,2)}, v95, {WS}, {T2} offen offset:{(q%2)*2048} sc1', 'st')
        self.finish(0, SLOTA, self.p2_setup(), self.img9(WO, S0, 'wo') + self.w4_units(0), split=1000)

    def p2_setup(self):
        MD, MO = 176, 192
        a = self.a
        L = S(f'''v_lshl_add_u32 v240, {WAVE}, 6, {LANE}
            s_sub_u32 {T5}, 2, {TEAM}
            s_max_i32 {T5}, {T5}, 0
            s_cmp_lt_u32 {WAVE}, {T5}
            s_cselect_b32 {T1}, {hx(NBIG >> 16)}, 0''')
        L = ['\n'.join(L)]
        L += S(f'''v_mov_b32 v244, {T1}
            v_mov_b32 v245, 0
            v_mov_b32 v246, {T1}
            v_mov_b32 v247, 0
            v_mov_b32 v236, 0x3f80
            v_mov_b32 v237, 0
            v_mov_b32 v238, 0x3f80
            v_mov_b32 v239, 0
            v_lshlrev_b32 v240, 4, v240
            v_add_u32 v240, {KB + 7*KP}, v240''')
        def cr():
            Lb = a.label('cr')
            a(f's_cmp_ge_u32 {WAVE}, 3\ns_cbranch_scc1 {Lb}')
            a.raw(f'ds_write_b128 v240, v[244:247]\nds_write_b128 v240, v[236:239] offset:{8*KP}')
            a(f'{Lb}:')
        L.append(cr)
        L += S(f'''v_and_b32 v240, 31, {LANE}
            v_lshrrev_b32 v241, 5, {LANE}
            v_lshlrev_b32 v242, 2, v241
            v_sub_u32 v240, v240, v242
            v_mov_b32 v242, {hx(NBIG)}''')
        for r in range(16):
            kk = 8*(r >> 2) + (r & 3)
            L += [f'v_subrev_u32 v243, {kk}, v240', 'v_ashrrev_i32 v243, 31, v243', f'v_and_b32 v{MD+r}, v242, v243', f'v_xor_b32 v{MO+r}, v242, v{MD+r}']
        L += S(f'''v_and_b32 v240, 31, {LANE}
            v_lshlrev_b32 v240, 3, v240
            v_mul_u32_u24 v232, {KP}, v241
            v_add_u32 v232, v232, v240
            v_lshl_add_u32 v234, v241, 10, v240
            s_lshl_b32 {T1}, {WAVE}, 8
            s_add_u32 {T2}, {T1}, {KB}
            v_add_u32 v232, {T2}, v232
            v_bfe_u32 v240, {LANE}, 4, 1
            v_and_b32 v242, 3, {LANE}
            v_lshl_add_u32 v240, v240, 2, v242
            v_mul_u32_u24 v233, {KP}, v240
            v_lshl_add_u32 v233, v241, 5, v233
            v_bfe_u32 v240, {LANE}, 2, 2
            v_lshl_add_u32 v233, v240, 3, v233
            s_add_u32 {T2}, {T1}, {VB}
            v_add_u32 v233, {T2}, v233
            v_lshlrev_b32 v235, 4, {LANE}
            s_mul_i32 {T3}, {TEAM}, {336*1024}
            s_mul_i32 {T2}, {MEM}, 7168
            s_add_u32 {T3}, {T3}, {T2}
            s_add_u32 {T3}, {T3}, {QKV}
            s_sub_u32 {T4}, 2, {WAVE}
            s_mul_i32 {T4}, {T4}, {336*1024}
            s_sub_u32 {T4}, {T3}, {T4}''')
        L.append(f's_cmp_lt_u32 {WAVE}, {T5}\ns_cselect_b32 {T4}, {OOB}, {T4}')
        L += S(f'''s_add_u32 {T3}, {T3}, {T1}
            s_mov_b32 {T6}, 0x7f7f7f7f
            s_mov_b32 {T7}, 0x7f7f
            s_lshl_b32 {T1}, {T5}, 4
            s_lshr_b64 s[58:59], s[58:59], {T1}
            s_lshl_b64 s[58:59], s[58:59], {T1}
            s_lshl_b32 {T2}, {TEAM}, 4
            s_sub_u32 {T2}, {T2}, 32''')
        return L

    def p2(self):
        a = self.a
        S_, MD, MO, Q, OA = 32, 176, 192, 208, 216
        KA, VA = 'v232', 'v233'
        FB = 200
        a.raw('s_waitcnt lgkmcnt(0)')
        self.poll(0, T2, 's[58:59]')
        a.wait(vm='w4_0')
        a(f's_add_u32 {T2}, {T3}, 4096')
        for q in range(4):
            a(f'buffer_load_dwordx2 {vr(Q+2*q,2)}, v234, {WS}, {T3 if q < 2 else T2} offen offset:{(q%2)*2048} sc1', 'q')
        L = a.label('kv')
        a(f's_cmp_ge_u32 {WAVE}, 3\ns_cbranch_scc1 {L}')
        a(f's_lshl_b32 {T2}, {WAVE}, 10')
        for part, lb in ((1, KB), (2, VB)):
            for q in range(7):
                if q % 4 == 0: a(f's_add_u32 {T3}, {T4}, {part*112*1024 + q*1024}')
                a(f's_add_u32 m0, {T2}, {lb + q*KP - (q%4)*1024}')
                a.raw(f'buffer_load_dwordx4 v235, {WS}, {T3} offen offset:{(q%4)*1024} sc1 lds')
        a(f'{L}:')
        self.run(self.w4_read(0))
        a(f's_lshl_b32 {T4}, {TEAM}, 1\ns_lshr_b32 {T1}, {WAVE}, 1\ns_add_u32 {T4}, {T4}, {T1}\ns_lshl_b32 {T4}, {T4}, 16')
        a(f's_lshl_b32 {T1}, {MEM}, 12\ns_add_u32 {T4}, {T4}, {T1}\ns_and_b32 {T1}, {WAVE}, 1\ns_lshl_b32 {T1}, {T1}, 9\ns_add_u32 {T4}, {T4}, {T1}\ns_add_u32 {T4}, {T4}, {O_}')
        a.raw('s_waitcnt vmcnt(7)')
        L = a.label('kv2')
        a(f's_cmp_lt_u32 {WAVE}, 3\ns_cbranch_scc1 {L}')
        a.raw('s_waitcnt vmcnt(0)')
        a(f'{L}:')
        a('s_barrier')
        self.stamp('k')
        def kread(i):
            b = FB + (i % 3) * 8
            return [(f'ds_read_b64 a[{b+4*p+2*s}:{b+4*p+2*s+1}], {KA} offset:{(4*p+2*s)*KP + 256*i}', f'k{i}') for p in range(2) for s in range(2)]
        self.run(kread(0)); self.run(kread(1))
        nb2 = 0
        if self.opt.get('b2', 1):
            a(f's_and_b32 {T5}, {SLOTB}, 31')
            self.burst(W1, 0, 25, T5, None, 240)(); self.burst(W4, 192*896, 21, T5, 448*896, 241)(); self.burst(W2, 0, 25, T5, None, 242)()
            nb2 = 3
        a(f's_mov_b32 exec_lo, 0\nv_mov_b32 v{Q+6}, 0x3f80\nv_mov_b32 v{Q+7}, 0\ns_mov_b32 exec_lo, -1')
        MX = 236
        def maxes(i):
            L = []
            r = S_ + 16*i
            for k in range(8):
                if i == 0 and k < 2: L.append(f'v_max_f32 v{MX+k}, v{r+2*k}, v{r+2*k+1}')
                else: L.append(f'v_max3_f32 v{MX+(k&1)}, v{r+2*k}, v{r+2*k+1}, v{MX+(k&1)}')
            return L
        for i in range(9):
            a.wait(lg=f'k{i}')
            b = FB + (i % 3) * 8
            c0 = vr(MO, 16) if i == 0 else (vr(MD, 16) if i == 8 else '0')
            kr = kread(i + 2) if i + 2 < 9 else []
            mx = maxes(i - 2) if i >= 2 else []
            a(f'v_mfma_f32_32x32x16_bf16 {vr(S_+16*i,16)}, a[{b}:{b+3}], {vr(Q,4)}, {c0}')
            self.run(kr[:2] + mx[:4])
            a(f'v_mfma_f32_32x32x16_bf16 {vr(S_+16*i,16)}, a[{b+4}:{b+7}], {vr(Q+4,4)}, {vr(S_+16*i,16)}')
            self.run(kr[2:] + mx[4:])
        self.stamp('qk')
        self.run(maxes(7)); self.run(maxes(8))
        a(f'v_max_f32 v{MX}, v{MX}, v{MX+1}\nv_mov_b32 v{MX+1}, v{MX}\nv_permlane32_swap_b32 v{MX}, v{MX+1}\nv_max_f32 v{MX}, v{MX}, v{MX+1}')
        def vread(i):
            b = FB + (i % 3) * 8
            return [(f'ds_read_b64_tr_b16 a[{b+4*m+2*e}:{b+4*m+2*e+1}], {VA} offset:{256*i + 128*m + 64*e}', f'v{i}') for m in range(2) for e in range(2)]
        def sub(i):
            r = S_ + 16*i
            return [f'v_pk_add_f32 {vr(r+2*k,2)}, {vr(r+2*k,2)}, {vr(MX,2)} op_sel_hi:[1,0] neg_lo:[0,1] neg_hi:[0,1]' for k in range(8)]
        def ex(i):
            r = S_ + 16*i
            return [f'v_exp_f32 v{r+k}, v{r+k}' for k in range(16)] + [f'v_cvt_pk_bf16_f32 v{r+k}, v{r+2*k}, v{r+2*k+1}' for k in range(8)]
        self.stamp('max')
        self.run(sub(0) + ex(0)[:16])
        a.raw(f's_waitcnt vmcnt({nb2})'); a.vm = ['pf'] * nb2
        a('s_barrier')
        self.run(vread(0)); self.run(vread(1))
        self.run(ex(0)[16:])
        U = self.w4_units(1)
        for i in range(9):
            if i + 1 < 9: self.run(sub(i + 1))
            a.wait(lg=f'v{i}')
            b = FB + (i % 3) * 8
            r = S_ + 16*i
            e = ex(i + 1) if i + 1 < 9 else []
            a(f'v_mfma_f32_32x32x16_bf16 {vr(OA,16)}, a[{b}:{b+3}], {vr(r,4)}, {vr(OA,16) if i else 0}')
            if i + 2 < 9: self.run(vread(i + 2))
            self.run(e[:1])
            a(f'v_mfma_f32_32x32x16_bf16 {vr(OA,16)}, a[{b+4}:{b+7}], {vr(r+4,4)}, {vr(OA,16)}')
            if U: self.run(U.pop(0))
            self.run(e[1:12])
            if U: self.run(U.pop(0))
            self.run(e[12:])
        assert not U
        a(f'v_mov_b32 v{MX}, v{OA+12}\nv_mov_b32 v{MX+1}, v{OA+12}\nv_permlane32_swap_b32 v{MX}, v{MX+1}\nv_rcp_f32 v{MX}, v{MX+1}')
        for p in range(2):
            for k in range(4*p, 4*p+4):
                a(f'v_pk_mul_f32 {vr(OA+2*k,2)}, {vr(OA+2*k,2)}, {vr(MX,2)} op_sel_hi:[1,0]')
            for k in range(4*p, 4*p+4):
                a(f'v_cvt_pk_bf16_f32 v{S_+k}, v{OA+2*k}, v{OA+2*k+1}')
            if p: a(f's_mov_b32 exec_lo, 0\nv_mov_b32 v{S_+6}, 0\nv_mov_b32 v{S_+7}, 0\ns_mov_b32 exec_lo, -1')
            a(f'buffer_store_dwordx4 {vr(S_+4*p,4)}, {V32}, {WS}, {T4} offen offset:{p*2048} sc1', 'st')

    def trA(self, base, omap):
        L = [f'v_accvgpr_read_b32 v4, {aA0}']
        if omap: L += [f'v_and_b32 v5, 1024, {V32}', 'v_add_u32 v4, v4, v5']
        if base: L.append(f'v_add_u32 v4, {base}, v4')
        L += [f'v_xor_b32 v{4+j}, {32*j}, v4' for j in range(1, 4)]
        return L
    def breg(self, s, j, abase):
        return ('v', 112 + 16*s + 4*j) if s < 8 else ('a', abase + 16*(s - 8) + 4*j)
    def breads(self, s, omap, abase, cs=False):
        L = []
        for j in range(4):
            if omap: ar = 4 + (j ^ (2 if s & 1 else 0)); off = 28 * s * 128; d2 = 8 * 128
            else: ar = 4 + j; off = 32 * s * 128; d2 = 16 * 128
            k, b = self.breg(s, j, abase)
            L.append((f'ds_read_b64_tr_b16 {vr(b,2,k)}, v{ar} offset:{off}', f'b{s}'))
            L.append((f'ds_read_b64_tr_b16 {vr(b+2,2,k)}, v{ar} offset:{off+d2}', f'b{s}'))
        return L
    def bstream(self, steps, omap, abase, cs_from=None, cs_upto=None):
        L = []
        def csm(s):
            out = [self.W(lg=f'b{s}')]
            for j in range(4):
                k, b = self.breg(s, j, abase)
                out.append(f'v_mfma_f32_16x16x32_bf16 {vr(RES+4*j,4)}, {vr(b,4,k)}, v[88:91], {vr(RES+4*j,4) if s else 0}')
            return out
        c = cs_from
        for s in steps:
            br = self.breads(s, omap, abase)
            if c is not None and c <= s - 1 and c < cs_upto:
                m = csm(c); c += 1
                L.append(m[0])
                for j in range(4): L += [m[1+j]] + br[2*j:2*j+2]
            else: L += br
        while c is not None and c < cs_upto:
            L += csm(c); c += 1
        return L

    def small_gemm(self, nsteps, abase_g, ACC, pollargs, post, abase, pre=[], bg=[], split8=(), cinit=True, fill=[], mid=[]):
        a = self.a
        AF = 32
        self.poll(*pollargs)
        self.run(pre)
        def aload(s):
            u = [f's_add_u32 {T3}, {T3}, 4096'] if s else []
            if s in split8:
                u += [(f'buffer_load_dwordx2 {vr(AF+4*s+2*h,2)}, v96, {WS}, {T3} offen offset:{2048*h} sc1', f'a{s}') for h in range(2)]
            else:
                u.append((f'buffer_load_dwordx4 {vr(AF+4*s,4)}, {VA16}, {WS}, {T3} offen sc1', f'a{s}'))
            return u
        U = [aload(s) for s in range(nsteps)]
        NPRE = self.opt.get('sgpre', 11)
        L, left = weave(post, U[:NPRE], gap=self.opt.get('sggap', 56))
        self.run(L); self.run(flat(left))
        self.run(mid)
        self.stamp('issued')
        fill = list(fill)
        U = U[NPRE:] + list(bg)
        for s in range(nsteps):
            a.wait(vm=f'a{s}', lg=f'b{s}')
            if s == 0: self.stamp('a0')
            if s == nsteps - 1: self.stamp('alast')
            for j in range(4):
                k, b = self.breg(s, j, abase)
                a(f'v_mfma_f32_16x16x32_bf16 {vr(ACC+4*j,4)}, {vr(b,4,k)}, {vr(AF+4*s,4)}, {vr(ACC+4*j,4) if (s or cinit) else 0}')
                if U and (j == 0 or (j == 2 and s >= 6 and len(U) >= nsteps - s)): self.run(U.pop(0))
                elif fill: self.run(fill[:2]); fill = fill[2:]
        assert not fill
        return U

    def unpack(self, dst, src, n):
        return flat([[f'v_lshlrev_b32 v{dst+2*k}, 16, v{src+k}', f'v_and_b32 v{dst+2*k+1}, 0xffff0000, v{src+k}'] for k in range(n)])

    def tile_out(self, acc, pk, base, stbase):
        a = self.a
        a(f's_add_u32 {T4}, {TB16}, {base}\ns_add_u32 {T5}, {TB16}, {base + 4096}\ns_add_u32 {T6}, {STO}, {stbase}\nv_lshlrev_b32 v244, 3, {LANE}')
        for p in range(2):
            for k in range(4*p, 4*p+4): a(f'v_cvt_pk_bf16_f32 v{pk+k}, v{acc+2*k}, v{acc+2*k+1}')
            a(f'buffer_store_dwordx4 {vr(pk+4*p,4)}, {VA16}, {WS}, {T5 if p else T4} offen sc1', 'st')
        a(f'v_pk_add_f32 v[240:241], {vr(acc,2)}, {vr(acc+2,2)}\nv_pk_mul_f32 v[242:243], {vr(acc,2)}, {vr(acc,2)}')
        a(f'v_pk_fma_f32 v[242:243], {vr(acc+2,2)}, {vr(acc+2,2)}, v[242:243]')
        for k in range(2, 8):
            a(f'v_pk_add_f32 v[240:241], v[240:241], {vr(acc+2*k,2)}\nv_pk_fma_f32 v[242:243], {vr(acc+2*k,2)}, {vr(acc+2*k,2)}, v[242:243]')
        a('v_add_f32 v240, v240, v241\nv_add_f32 v241, v242, v243')
        for sw in ('16', '32'):
            a('v_mov_b32 v242, v240\nv_mov_b32 v243, v241')
            a(f'v_permlane{sw}_swap_b32 v240, v242\nv_permlane{sw}_swap_b32 v241, v243')
            a('v_pk_add_f32 v[240:241], v[240:241], v[242:243]')
        a('s_mov_b64 exec, 0xffff')
        a(f'buffer_store_dwordx2 v[240:241], v244, {WS}, {T6} offen sc1', 'st')
        a('s_mov_b64 exec, -1')

    def fin_stats(self, sws):
        L = []
        for sw in sws:
            L += ['v_mov_b32 v242, v240', 'v_mov_b32 v243, v241', f'v_permlane{sw}_swap_b32 v240, v242', f'v_permlane{sw}_swap_b32 v241, v243',
                  'v_add_f32 v240, v240, v242', 'v_add_f32 v241, v241, v243']
        L += [f'v_mul_f32 v240, {hf(-1/448)}, v240', f'v_mul_f32 v242, {hf(1/448)}, v241', 'v_fma_f32 v242, -v240, v240, v242', 'v_max_f32 v242, 0, v242']
        return L
    def gelu_consts(self, s):
        return [f'v_mul_f32 v244, {hf(K1)}, v{s}', f'v_mul_f32 v245, v{s}, v{s}', f'v_mul_f32 v245, v245, v{s}', f'v_mul_f32 v245, {hf(K2)}, v245', f'v_rcp_f32 v246, v{s}']
    def gelu_pk(self, acc, n, dst, tmp):
        L = []
        ks = range(n)
        for k in ks: L.append(f'v_pk_mul_f32 {vr(tmp+2*k,2)}, {vr(acc+2*k,2)}, {vr(acc+2*k,2)}')
        for k in ks: L.append(f'v_pk_fma_f32 {vr(tmp+2*k,2)}, {vr(tmp+2*k,2)}, v[244:245], v[244:245] op_sel:[0,1,0] op_sel_hi:[1,1,0]')
        for k in ks: L.append(f'v_pk_mul_f32 {vr(tmp+2*k,2)}, {vr(tmp+2*k,2)}, {vr(acc+2*k,2)}')
        for k in range(2*n): L.append(f'v_exp_f32 v{tmp+k}, v{tmp+k}')
        for k in ks: L.append(f'v_pk_fma_f32 {vr(tmp+2*k,2)}, {vr(tmp+2*k,2)}, v[246:247], v[246:247] op_sel_hi:[1,0,0]')
        for k in range(2*n): L.append(f'v_rcp_f32 v{tmp+k}, v{tmp+k}')
        for k in ks: L.append(f'v_pk_mul_f32 {vr(acc+2*k,2)}, {vr(acc+2*k,2)}, {vr(tmp+2*k,2)}')
        for k in ks: L.append(f'v_cvt_pk_bf16_f32 v{dst+k}, v{acc+2*k}, v{acc+2*k+1}')
        return L
    def gelu_sc(self, acc, n, dst, tmp):
        L = []
        ks = range(2*n)
        for k in ks: L.append(f'v_mul_f32 v{tmp+k}, v{acc+k}, v{acc+k}')
        for k in ks: L.append(f'v_fma_f32 v{tmp+k}, v{tmp+k}, v245, v244')
        for k in ks: L.append(f'v_mul_f32 v{tmp+k}, v{tmp+k}, v{acc+k}')
        for k in ks: L.append(f'v_exp_f32 v{tmp+k}, v{tmp+k}')
        for k in ks: L.append(f'v_fma_f32 v{tmp+k}, v{tmp+k}, v246, v246')
        for k in ks: L.append(f'v_rcp_f32 v{tmp+k}, v{tmp+k}')
        for k in ks: L.append(f'v_mul_f32 v{acc+k}, v{acc+k}, v{tmp+k}')
        for k in range(n): L.append(f'v_cvt_pk_bf16_f32 v{dst+k}, v{acc+2*k}, v{acc+2*k+1}')
        return L

    def p2_finish(self):
        work = self.trA(S0, True) + self.bstream(range(8), True, 96) + self.unpack(96, HPK, 8) + self.w4_read(1)
        work += [f's_lshl_b32 {T3}, {RB}, 16', f's_add_u32 {T3}, {T3}, {O_}', f's_lshl_b32 {T2}, {TEAM}, 4']
        self.finish(1, SLOTB, work, self.img9(W1, S1, 'w1'), split=600)

    def p3(self):
        a = self.a
        ACC = 96
        left = self.small_gemm(16, O_, ACC, (1, T2, '0xffff'), self.bstream(range(8, 16), True, 96), 96, bg=self.w4_units(2))
        self.tile_out(ACC, HPK, H_, STH)
        work = self.trA(S1, False) + [f'v_mov_b32 v{88+d}, {ONES}' for d in range(4)] + self.bstream(range(14), False, 144, 0, 14)
        work += self.w4_read(2)
        work += S(f'''v_lshrrev_b32 v244, 1, {VA16}
            v_add_u32 v245, 2048, v244
            v_lshrrev_b32 v242, 4, {LANE}
            v_add_u32 v242, 1, v242
            v_lshrrev_b32 v242, 2, v242
            v_lshl_add_u32 v245, v242, 30, v245
            s_lshl_b32 {T6}, {RB}, 12
            s_add_u32 {T6}, {T6}, {STH}
            s_add_u32 {T3}, {RB57}, {H_}
            s_lshl_b32 {T2}, {RB}, 3''')
        self.finish(2, SLOTA, work, left + self.img9(W2, S0, 'w2'), split=600)

    def p4(self):
        a = self.a
        ACC = 96
        pre = [(f'buffer_load_dwordx2 v[240:241], v244, {WS}, {T6} offen sc1', 'sl'), (f'buffer_load_dwordx2 v[242:243], v245, {WS}, {T6} offen sc1', 'sl')]
        post = ['v_add_f32 v240, v240, v242', 'v_add_f32 v241, v241, v243'] + self.fin_stats(['16', '32'])
        post += [f'v_add_f32 v243, {hf(EPS)}, v242', 'v_rsq_f32 v241, v243', 'v_mul_f32 v243, v241, v241', f'v_mov_b32 v247, {hf(EPS)}', 'v_fmac_f32 v247, v243, v242',
                 'v_rsq_f32 v247, v247', 'v_mul_f32 v247, v247, v241'] + self.gelu_consts(247)
        p2_ = [f's_lshl_b32 {T4}, {CG}, 13', f's_add_u32 {T4}, {T4}, {G_}', f's_add_u32 {T5}, {T4}, 4096']
        p2_ += [f'v_accvgpr_read_b32 v{88+j}, a{244+j}' for j in range(4)] + [f'v_accvgpr_read_b32 v{92+j}, a{240+j}' for j in range(4)]
        left = self.small_gemm(14, H_, ACC, (2, T2, '0x7f'), p2_, 144, pre=pre, bg=self.w4_units(3), cinit=False, fill=post)
        for pp in range(2):
            for k in range(4*pp, 4*pp+4):
                a(f'v_pk_fma_f32 {vr(ACC+2*k,2)}, {vr(RES+2*k,2)}, v[240:241], {vr(ACC+2*k,2)} op_sel_hi:[1,0,1]')
            self.run(self.gelu_pk(ACC + 8*pp, 4, 32 + 4*pp, 48))
            for q in range(4): a(f'v_and_b32 v{32+4*pp+q}, v{88+2*pp+(q>>1)}, v{32+4*pp+q}')
            Lm = a.label('mix'); Le = a.label('mixe')
            so = T5 if pp else T4
            a(f's_cmp_eq_u32 {CG}, {1 if pp else 5}\ns_cbranch_scc1 {Lm}')
            a(f'buffer_store_dwordx4 {vr(32+4*pp,4)}, v{92+2*pp}, {WS}, {so} offen sc1', 'st')
            a(f's_branch {Le}\n{Lm}:')
            a.raw(f'buffer_store_dwordx2 {vr(32+4*pp,2)}, v{92+2*pp}, {WS}, {so} offen sc1')
            a.raw(f'buffer_store_dwordx2 {vr(34+4*pp,2)}, v{93+2*pp}, {WS}, {so} offen offset:2048 sc1')
            a(f'{Le}:')
        work = self.trA(S0, False) + self.bstream(range(8), False, 144) + self.unpack(RES, HPK, 8)
        for k in range(8):
            work += [f'v_pk_add_f32 {vr(RES+2*k,2)}, {vr(RES+2*k,2)}, v[240:241] op_sel_hi:[1,0]', f'v_pk_mul_f32 {vr(RES+2*k,2)}, {vr(RES+2*k,2)}, v[240:241] op_sel:[0,1] op_sel_hi:[1,1]']
        work += [f'v_lshrrev_b32 v96, 1, {VA16}', f's_add_u32 {T3}, {RB57}, {G_}', f's_lshl_b32 {T2}, {RB}, 3', f's_sub_u32 {T2}, {T2}, 8']
        self.finish(3, SLOTA, work, left + self.img3(0, S1, 'w3a'), split=600)

    AF6, ACC6, CT6 = 32, 144, 208
    def woff(self, i): return (32 * (i >> 1) + 8 * (i & 1)) * 128
    def wread(self, t, i, slot, tag):
        b = 224 + 4 * slot; ar = [6, 7, 4, 5][t]
        return [(f'ds_read_b64_tr_b16 a[{b}:{b+1}], v{ar} offset:{self.woff(i)}', tag), (f'ds_read_b64_tr_b16 a[{b+2}:{b+3}], v{ar} offset:{self.woff(i)+2048}', tag)]
    def colsum6(self, ar, dst, tg):
        L = []
        rd = lambda i: [(f'ds_read_b64_tr_b16 {vr(64+4*(i%8),2)}, v{ar} offset:{self.woff(i)}', f'{tg}{i}'), (f'ds_read_b64_tr_b16 {vr(66+4*(i%8),2)}, v{ar} offset:{self.woff(i)+2048}', f'{tg}{i}')]
        G = []
        for i in range(5): L += rd(i)
        for i in range(28):
            g = [self.W(lg=f'{tg}{i}'), f'v_mfma_f32_32x32x16_bf16 {vr(dst,16)}, {vr(64+4*(i%8),4)}, v[12:15], {vr(dst,16) if i else 0}']
            if i + 5 < 28: g += rd(i + 5)
            G.append(g)
        return L, G

    def p5(self):
        a = self.a
        CT = self.CT6
        left = self.small_gemm(14, G_, RES, (3, T2, '0x7f7f7f'), self.bstream(range(8, 14), False, 144), 144, split8=(3, 10),
                               mid=[self.W(lg='all'), 's_barrier'], bg=self.img3(128, S0, 'w3b'))
        self.run(flat(left))
        self.tile_out(RES, 32, X1_, STX)
        work = self.unpack(48, HPK, 8) + [f'v_pk_add_f32 {vr(RES+2*k,2)}, {vr(RES+2*k,2)}, {vr(48+2*k,2)}' for k in range(8)]
        work += self.w4_read(3)
        u4 = self.w4_units(4)
        self.u4 = u4
        setup4 = [x for x in u4[0] if not (isinstance(x, tuple) or (isinstance(x, str) and 'm0' in x))]
        u4[0] = [x for x in u4[0] if x not in setup4]
        work += setup4
        work += S(f"""v_accvgpr_read_b32 v4, {aB0}
            v_xor_b32 v5, 64, v4
            v_add_u32 v6, {S1}, v4
            v_add_u32 v7, {S1}, v5
            s_and_b32 {T5}, {WAVE}, 1
            s_lshl_b32 {T0}, {T5}, 6
            s_lshr_b32 {T4}, {WAVE}, 1
            s_xor_b32 {T1}, {T4}, 1
            s_mul_i32 {T1}, {T1}, {S1}
            v_xor_b32 v8, {T0}, v4
            v_add_u32 v8, {T1}, v8""")
        work += [f'v_mov_b32 v{12+d}, {ONES}' for d in range(4)]
        misc = S(f"""v_lshrrev_b32 v11, 5, {LANE}
            v_lshlrev_b32 v0, 6, v11
            v_add_u32 v0, {CS}, v0
            s_lshl_b32 {T0}, {WAVE}, 7
            v_add_u32 v9, {T0}, v0
            s_lshl_b32 {T0}, {TEAM}, 1
            s_add_u32 {T4}, {T4}, {T0}
            s_lshl_b32 {T5}, {T5}, 9
            s_mul_i32 {T3}, {T4}, 57344
            s_add_u32 {T3}, {T3}, {T5}
            s_add_u32 {T3}, {T3}, {X1_}
            s_lshl_b32 {T6}, {T4}, 12
            s_lshr_b32 {T7}, {T5}, 1
            s_add_u32 {T6}, {T6}, {T7}
            s_add_u32 {T6}, {T6}, {STX}
            s_mul_i32 {T4}, {T4}, {224*1024}
            s_add_u32 {T4}, {T4}, {T5}
            s_lshl_b32 {T1}, {MEM}, 14
            s_add_u32 {T4}, {T4}, {T1}
            s_add_u32 {T4}, {T4}, {U_}
            v_and_b32 v10, 31, {LANE}
            v_lshlrev_b32 v10, 3, v10
            v_lshl_add_u32 v10, v11, 11, v10
            v_lshl_add_u32 v11, v11, 30, v10
            s_lshl_b32 {T2}, {TEAM}, 4""")
        for i in range(4): misc += self.wread(0, i, 2*i, f'w{i}') + self.wread(1, i, 2*i+1, f'w{i}')
        work.append(self.W(lg='all'))
        L, G = self.colsum6(8, CT, 'c')
        post = L + self.zipper(G, misc)
        post += ['s_mov_b32 exec_lo, 1', 's_mov_b32 exec_hi, 1'] + [(f'ds_write_b128 v9, {vr(CT+4*q,4)} offset:{16*q}', 'cs') for q in range(4)]
        post += ['s_mov_b64 exec, -1', self.W(lg='cs')]
        self.finish(4, SLOTA, work, [], split=10000, post=post)

    def p6(self):
        a = self.a
        AF, ACC, CT, PK = self.AF6, self.ACC6, self.CT6, 8
        self.poll(4, T2, '0x7f7f')
        for q in range(4):
            a(f'buffer_load_dwordx2 {vr(240+2*q,2)}, v{10 if q < 3 else 11}, {WS}, {T6} offen offset:{512*q} sc1', 'sl')
        def aload(i):
            u = [f's_add_u32 {T3}, {T3}, 4096'] if i and i % 2 == 0 else []
            return u + [(f'buffer_load_dwordx4 {vr(AF+4*i,4)}, {V32}, {WS}, {T3} offen offset:{(i&1)*2048} sc1', f'a{i}')]
        U = [aload(i) for i in range(28)]
        M = [(f'ds_read_b128 {vr(ACC+16*t+4*q,4)}, v0 offset:{t*128+16*q}', 'ct') for t in range(4) for q in range(4)]
        L, left = weave(M, U[:6], gap=40)
        self.run(L); self.run(flat(left)); U = U[6:]
        M = [self.W(vm='sl', lg='ct'), 'v_pk_add_f32 v[240:241], v[240:241], v[242:243]', 'v_pk_add_f32 v[244:245], v[244:245], v[246:247]', 'v_pk_add_f32 v[240:241], v[240:241], v[244:245]']
        M += self.fin_stats(['32'])
        M += [f'v_pk_mul_f32 {vr(ACC+2*k,2)}, {vr(ACC+2*k,2)}, v[240:241] op_sel_hi:[1,0]' for k in range(16)]
        PRE = self.opt.get('p6pre', 5)
        L, left = weave(M, U[:PRE], gap=40)
        self.run(L); self.run(flat(left))
        U = U[PRE:] + self.u4
        self.stamp('init')
        p2 = [(2, i) for i in range(28)] + [(3, i) for i in range(28)]
        fill = [f'v_add_f32 v243, {hf(EPS)}, v242', 'v_rsq_f32 v247, v243'] + self.gelu_consts(247) + [f'v_mul_f32 v{ACC+32+k}, v{ACC+32+k}, v240' for k in range(32)]
        for i in range(28):
            a.wait(vm=f'a{i}', lg=f'w{i}')
            sl = 2 * (i % 4)
            for t in range(2):
                a(f'v_mfma_f32_32x32x16_bf16 {vr(ACC+16*t,16)}, a[{224+4*(sl+t)}:{227+4*(sl+t)}], {vr(AF+4*i,4)}, {vr(ACC+16*t,16)}')
                if i + 4 < 28: self.run(self.wread(t, i + 4, sl + t, f'w{i+4}'))
                else:
                    n = 2 * (i - 24) + t
                    self.run(self.wread(p2[n][0], p2[n][1], n % 8, f'y{n}'))
                if t == 0 and U: self.run(U.pop(0))
                if t == 1: self.run(fill[:2]); fill = fill[2:]
        assert not U and not fill
        self.stamp('pass1')
        def st(p): return [(f'buffer_store_dwordx4 {vr(PK+4*p,4)}, {V32}, {WS}, {T0} offen offset:{p*2048} sc1', 'st')]
        def epi(t, f):
            return ([f's_add_u32 {T0}, {T4}, {t*4096}'] + f(ACC + 16*t, 4, PK, CT) + st(0) + f(ACC + 16*t + 8, 4, PK + 4, CT) + st(1))
        mm = []
        for n, (t, i) in enumerate(p2):
            b = 224 + 4 * (n % 8)
            g = [self.W(lg=f'y{n+1}')] if n % 2 == 0 else []
            g += [f'v_mfma_f32_32x32x16_bf16 {vr(ACC+16*t,16)}, a[{b}:{b+3}], {vr(AF+4*i,4)}, {vr(ACC+16*t,16)}']
            if n + 8 < 56: g += self.wread(p2[n+8][0], p2[n+8][1], n % 8, f'y{n+8}')
            mm.append(g)
        self.run(self.zipper(mm, epi(0, self.gelu_sc)))
        self.stamp('pass2')
        for t in (1, 2, 3): self.run(epi(t, self.gelu_pk))
        RP = 16 * 1040
        work = self.w4_read(4)[3:]
        work += S(f'''v_lshrrev_b32 v250, 4, {LANE}
            v_mul_u32_u24 v250, 1040, v250
            v_and_b32 v251, 15, {LANE}
            v_lshl_add_u32 v250, v251, 4, v250
            s_lshl_b32 {T0}, {WAVE}, 8
            s_add_u32 {T0}, {T0}, {4*RP}
            v_add_u32 v250, {T0}, v250''')
        work += [(f'ds_write_b128 v250, {vr(RES+4*j,4)} offset:{4*j*1040}', 'rs') for j in range(4)]
        work += S(f'''v_lshrrev_b32 v4, 5, {LANE}
            v_mul_u32_u24 v4, 1040, v4
            v_and_b32 v251, 31, {LANE}
            v_lshl_add_u32 v4, v251, 4, v4
            s_mul_i32 {T1}, {WAVE}, {RP}
            v_add_u32 v4, {T1}, v4
            v_and_b32 v251, 7, {LANE}
            v_mul_u32_u24 v5, 2080, v251
            v_lshrrev_b32 v7, 3, {LANE}
            v_lshl_add_u32 v5, v7, 4, v5
            s_lshl_b32 {T1}, {WAVE}, 7
            v_add_u32 v5, {T1}, v5
            v_add_u32 v6, {3*RP}, v5
            v_mul_u32_u24 v7, 896, v7
            v_lshl_add_u32 v7, v251, 4, v7
            s_mul_i32 {T6}, {RB}, {224*1024}
            s_mul_i32 {T1}, {WAVE}, 57344
            s_add_u32 {T6}, {T6}, {T1}
            s_add_u32 {T6}, {T6}, {U_}
            s_lshl_b32 {T4}, {RB}, 3
            s_add_u32 {T4}, {T4}, {WAVE}
            s_mul_i32 {T4}, {T4}, {8*896}
            s_lshl_b32 {T5}, {CG}, 7
            s_add_u32 {T4}, {T4}, {T5}
            s_add_u32 {T5}, {T4}, {32*896}
            s_lshl_b32 {T2}, {TEAM}, 4''')
        self.finish(5, SLOTB, work, [], split=600, post=[self.W(lg='all')])

    def p7(self):
        a = self.a
        ACC, AF, NS, R = 32, 144, 24, 96
        RP = 16 * 1040
        self.poll(5, T2, '0x3fff')
        def aload(n):
            tm, i = n // 28, n % 28
            u = []
            if i == 0: u.append(f's_add_u32 {T3}, {T6}, {512*tm}')
            elif i % 2 == 0: u.append(f's_add_u32 {T3}, {T3}, 4096')
            return u + [(f'buffer_load_dwordx4 {vr(AF+4*(n%NS),4)}, {V32}, {WS}, {T3} offen offset:{(i&1)*2048} sc1', f'a{n}')]
        def wr(tm): return [(f'ds_write_b128 v4, {vr(ACC+16*(2*tm+tn)+4*q,4)} offset:{(8*tn+2*q)*1040 + tm*512}', 'rd') for tn in range(2) for q in range(4)]
        def rd(tm):
            return [(f'ds_read_b128 {vr(R+(e*5+w)*4,4)}, {"v5" if w < 3 else "v6"} offset:{(w%3)*RP + e*1040 + tm*512}', 'rr') for e in range(2) for w in range(5)]
        def fin(tm, pk):
            L = []
            for e in range(2):
                b = R + e*20
                if pk:
                    for x, y in ((0, 4), (8, 12), (0, 16), (0, 8)):
                        L += [f'v_pk_add_f32 {vr(b+x+2*hh,2)}, {vr(b+x+2*hh,2)}, {vr(b+y+2*hh,2)}' for hh in range(2)]
                else:
                    for x, y in ((0, 4), (8, 12), (0, 16), (0, 8)):
                        L += [f'v_add_f32 v{b+x+d}, v{b+x+d}, v{b+y+d}' for d in range(4)]
                L += [f'v_cvt_pk_bf16_f32 v{8+4*tm+2*e+hh}, v{b+2*hh}, v{b+2*hh+1}' for hh in range(2)]
            L.append((f'buffer_store_dwordx4 {vr(8+4*tm,4)}, v7, {OUT}, {T5 if tm else T4} offen sc1', 'st'))
            return L
        PRE = self.opt.get('p7pre', 12)
        for n in range(PRE): self.run(aload(n))
        side = {}
        w0 = wr(0)
        for k in range(8): side[29 + k] = [w0[k]]
        side[39] = [self.W(lg='rd'), 's_barrier']
        r0 = rd(0)
        for k in range(5): side[40 + k] = r0[2*k:2*k+2]
        f0 = [self.W(lg='rr')] + fin(0, False)
        for k in range(8): side[46 + k] = f0[(len(f0)*k)//8:(len(f0)*(k+1))//8]
        for n in range(56):
            tm, i = n // 28, n % 28
            a.wait(vm=f'a{n}')
            for tn in range(2):
                b = (i * 2 + tn) * 4; c = ACC + 16 * (2*tm + tn)
                a(f'v_mfma_f32_32x32x16_bf16 {vr(c,16)}, a[{b}:{b+3}], {vr(AF+4*(n%NS),4)}, {vr(c,16) if i else 0}')
                if tn == 0 and n + PRE < 56: self.run(aload(n + PRE))
            self.run(side.get(n, []))
        self.stamp('mm')
        self.run(wr(1))
        a.wait(lg='all')
        a('s_barrier')
        self.run(rd(1))
        a.wait(lg='all')
        self.run(fin(1, True))
        self.stamp('zdone')

    def pf(self, srd, start, nbytes, parts, idx, rot=True, fl='', stride=1):
        a = self.a
        per = -(-nbytes // parts // (128*stride)) * 128*stride
        n = -(-per // (32768*stride))
        a(f's_mul_i32 {T0}, {idx}, {per}\ns_add_u32 {T0}, {T0}, {start}')
        if rot and n > 1:
            a(f's_lshr_b32 {T1}, {TEAM}, 1\ns_mul_i32 {T1}, {T1}, {n}\ns_lshr_b32 {T1}, {T1}, 3')
        else:
            a(f's_mov_b32 {T1}, 0')
        a(f's_mov_b32 {T3}, {n}')
        L = a.label('pf')
        a(f'{L}:')
        lg = stride.bit_length() - 1
        a(f's_lshl_b32 {T2}, {T1}, {15+lg}\nv_lshl_add_u32 v41, v40, {lg}, {T2}\nv_cmp_gt_u32 vcc, {per}, v41')
        a(f's_add_u32 {T1}, {T1}, 1\ns_cmp_ge_u32 {T1}, {n}\ns_cselect_b32 {T1}, 0, {T1}')
        a(f'v_cndmask_b32 v41, v42, v41, vcc')
        a.raw(f'buffer_load_dword v43, v41, {srd}, {T0} offen {fl}')
        a(f's_sub_u32 {T3}, {T3}, 1\ns_cmp_lg_u32 {T3}, 0\ns_cbranch_scc1 {L}')

    def helper_setup(self):
        a = self.a
        a(f'v_lshl_add_u32 v40, {WAVE}, 6, {LANE}\nv_lshlrev_b32 v40, 7, v40\nv_mov_b32 v42, {OOB}')
        a(f's_lshl_b32 {T5}, {TEAM}, 1\ns_add_u32 {T5}, {T5}, {MEM}\ns_sub_u32 {T5}, {T5}, 14\ns_and_b32 {T4}, {T5}, 3')
    def pf_w4(self, rnd):
        t = self.W4R[rnd]
        self.a(f's_mul_i32 {T6}, {T4}, {448*896}\ns_add_u32 {T6}, {T6}, {32*t[0]*896}')
        self.pf(W4, T6, len(t)*32*896, 1, 0)

    def helper_head(self):
        a = self.a
        pf = self.opt.get('pf', 1)
        a(f'buffer_load_dword v4, v255, {WS}, 0 offen sc1', 'epoch')
        self.run(self.common_setup())
        self.helper_setup()
        if pf:
            a(f's_getpc_b64 s[60:61]\nL_pc:\ns_sub_u32 s60, s60, L_pc-{NAME}_kernel\ns_subb_u32 s61, s61, 0')
            a(f's_mov_b32 s62, L_end-{NAME}_kernel\ns_mov_b32 s63, 0x20000')
            self.pf('s[60:63]', 0, 40960, 4, T4, rot=False)
            self.pf(WS, FLAGS, 6*65536, 32, T5, rot=False, fl='sc1', stride=2)
            if self.opt.get('tlb', 0):
                st = self.opt['tlb']
                self.pf(WS, 0, 0x1600000, 4, T4, rot=False, fl='sc1', stride=st)
                self.pf(OUT, 0, 2048*896, 4, T4, rot=False, fl='sc1', stride=st)
                for w, sz in ((WO, 448*896), (W1, 448*896), (W2, 448*896), (W3, 448*3584), (W4, 448*3584)):
                    self.pf(w, 0, sz, 4, T4, rot=False, stride=st)
            self.pf(WO, 0, 448*896, 32, T5, rot=False)
            self.pf(W4, 0, 1792*896, 32, T5, rot=False)
            self.stamp('a')
            self.pf(W1, 0, 448*896, 32, T5, rot=False)
            self.pf(W2, 0, 448*896, 32, T5, rot=False)
            self.pf(W3, 0, 448*3584, 32, T5, rot=False)
            self.stamp('b')
            self.pf_w4(1)
        self.run(self.get_tag())
        self.stamp('c')
        self.run(self.p2_setup())

    def helper_tail(self):
        a = self.a
        self.finish(1, SLOTB)
        self.helper_setup()
        if self.opt.get('pf', 1):
            if self.opt.get('pfg', 1): self.pf(WS, G_, 32*57344, 32, T5, rot=False, fl='sc1')
            self.pf_w4(3)
            self.stamp('d')
            self.pf(W3, 0, 448*3584, 4, T4, stride=2)
            self.stamp('e')
            self.pf(W3, 128, 448*3584, 4, T4, stride=2)
            self.stamp('f')
            self.pf_w4(4)
            a.raw('s_waitcnt vmcnt(0)')
            self.stamp('g')
        a(f's_cmp_lg_u32 {SLOTB}, 15\ns_cbranch_scc1 L_fin')
        for q in range(4):
            a(f's_mov_b32 {T2}, {64*q}')
            self.poll(1, T2, '-1')
        a(f's_cmp_lg_u32 {WAVE}, 0\ns_cbranch_scc1 L_fin')
        a(f'v_mov_b32 v254, {TAG}\nv_mov_b32 v255, 0\ns_mov_b64 exec, 1')
        a.raw(f'buffer_store_dword v254, v255, {WS}, 0 offen sc1')
        a('s_mov_b64 exec, -1')
        a('s_branch L_fin')

    def build(self):
        a = self.a
        self.prologue()
        a('s_cbranch_scc0 L_p1')
        if self.opt.get('pf', 1):
            a.raw(f'buffer_load_dword v43, v40, {WQ}, s68 offen')
            a(f's_add_u32 s68, s68, {38*128}')
            a.raw(f'buffer_load_dword v43, v40, {WQ}, s68 offen')
        a('s_branch L_hh')
        a('L_p1:')
        self.ph = 'p1'
        self.p1()
        a('L_att:')
        self.ph = 'p2'
        self.p2()
        a(f's_cmp_lt_u32 {MEM}, 14\ns_cbranch_scc1 L_p3')
        st = (list(a.vm), list(a.lg))
        self.ph = 'hh'
        self.helper_tail()
        a('L_hh:')
        a.vm, a.lg = [], []
        self.helper_head()
        a('s_branch L_att')
        a('L_p3:')
        a.vm, a.lg = st
        self.ph = 'p2'
        self.p2_finish()
        for n, f in enumerate((self.p3, self.p4, self.p5, self.p6, self.p7)):
            self.ph = f'p{n+3}'
            f()
        a('L_fin:')
        if self.stamps:
            a.raw('s_waitcnt vmcnt(0)')
            a('s_memrealtime s[60:61]\ns_memtime s[62:63]')
            a.raw('s_waitcnt lgkmcnt(0)')
            a(f's_cmp_lg_u32 {WAVE}, 0\ns_cbranch_scc1 L_end')
            a(f's_lshl_b32 {T0}, s2, 8\ns_add_u32 {T0}, {T0}, {STAMPS}\ns_mov_b64 exec, 1\nv_mov_b32 v255, 0')
            for i in range(self.nstamp):
                a(f'v_mov_b32 v254, s{100-2*i}')
                a.raw(f'buffer_store_dword v254, v255, {WS}, {T0} offen offset:{4*i}')
            for i, r in enumerate(('s101', 's60', 's62')):
                a(f'v_mov_b32 v254, {r}')
                a.raw(f'buffer_store_dword v254, v255, {WS}, {T0} offen offset:{240+4*i}')
        a('L_end:')
        a('s_endpgm')
        hdr = open('cdna_kernels/' + NAME + '.s.ref').read().split('; Override')[0]
        hdr += '; Generated by a hand-written generator script (persistent fused kernel, one workgroup per CU).\n'
        hdr += '; @launch grid=(256,1,1) block=(256,1,1) lds=163840\n'
        hdr += f'.amdgcn_target "amdgcn-amd-amdhsa--gfx950"\n.text\n.globl {NAME}_kernel\n.p2align 8\n.type {NAME}_kernel,@function\n{NAME}_kernel:\n'
        kd = f"""
.section .rodata,"a"
.p2align 6
.amdhsa_kernel {NAME}_kernel
  .amdhsa_next_free_vgpr 512
  .amdhsa_next_free_sgpr 102
  .amdhsa_accum_offset 256
  .amdhsa_group_segment_fixed_size 0
  .amdhsa_kernarg_size 88
  .amdhsa_user_sgpr_count 2
  .amdhsa_user_sgpr_kernarg_segment_ptr 1
  .amdhsa_system_sgpr_workgroup_id_x 1
.end_amdhsa_kernel
"""
        return hdr + a.text() + kd

if __name__ == '__main__':
    import argparse
    ap = argparse.ArgumentParser()
    ap.add_argument('-o', default='cdna_kernels/' + NAME + '.s')
    ap.add_argument('--stamps', default='')
    ap.add_argument('opts', nargs='*')
    args = ap.parse_args()
    g = Gen()
    g.stamps = bool(args.stamps)
    g.sel = args.stamps.split(',') if args.stamps != 'z' else [f'p{i}.z' for i in range(8)]
    g.opt = {k: int(v) for k, v in (o.split('=') for o in args.opts)}
    txt = g.build()
    open(args.o, 'w').write(txt)
    if args.stamps: open(args.o + '.stamps', 'w').write('\n'.join(g.stamp_names))
    print('instructions', len(g.a.ins), 'auto nops', g.a.nops, file=sys.stderr)
```

```python
import sys, struct, math
sys.path.insert(0, 'gen')
from asm import Asm, vr

NAME = 'sequential_preLN__sliding_block__mixer_s_mlp__prompt'
def f2u(x): return struct.unpack('<I', struct.pack('<f', x))[0]
def hx(x): return '0x%08x' % (x & 0xffffffff)
def hf(x): return hx(f2u(x))

FLAGS = 0x10000
QKV, O_, H_, G_, X1_, U_ = 0x100000, 0x700000, 0x900000, 0xB00000, 0xD00000, 0xF00000
STH, STX = 0x80000, 0xA0000
STAMPS = 0x2000000
OOB = 0x40000000
S0, S1, S2 = 0, 57344, 114688
KP = 3104
KB, VB = S1, S1 + 8 * KP
CS = S2 + 49152 - 1024
XP = 912
WSL = 64 * XP
RSD = WSL + 12 * 8192
WS, XS, WQ, WO, W1, W2, W3, W4, OUT = 's[4:7]', 's[8:11]', 's[12:15]', 's[16:19]', 's[20:23]', 's[24:27]', 's[28:31]', 's[32:35]', 's[36:39]'
TEAM, MEM, RB, CG, WAVE, TAG, RH, SLOTA, SLOTB = 's40', 's41', 's42', 's43', 's44', 's45', 's46', 's47', 's3'
ONES, LO1, HI1, FL0 = 's48', 's49', 's50', 's51'
T0, T1, T2, T3, T4, T5, T6, T7 = 's52', 's53', 's54', 's55', 's56', 's57', 's58', 's59'
D0, D1 = 's64', 's65'
WV14, WV12, IMG9, W4O, IMG3, TB16, STO, RB57 = 's66', 's67', 's68', 's69', 's70', 's71', 's72', 's73'
NSTAMP = 14
VO = 248
aA0, aB0, aVA, aVB, aVC = 'a248', 'a249', 'a250', 'a251', 'a252'
NBIG = f2u(-1e30)
EPS = 1e-5
QSCALE = (28 ** -0.5) * math.log2(math.e)
K1 = -2 * math.sqrt(2 / math.pi) * math.log2(math.e)
K2 = K1 * 0.044715
LANE, VA16, V32 = 'v1', 'v2', 'v3'
HPK = 8
RES = 16

def S(text): return [l.strip() for l in text.split('\n') if l.strip()]
def flat(G): return [x for g in G for x in g]
def cost(it):
    if callable(it): return 4
    t = it[0] if isinstance(it, tuple) else it
    if t.startswith('v_mfma'): return 24 if '32x32' in t else 10
    if t.startswith(('v_exp', 'v_rcp', 'v_rsq')): return 8
    if t.startswith('ds_read_b128') or t.startswith('ds_write_b128'): return 16
    if t.startswith('ds_'): return 8
    return 4
def weave(main, units, gap=64, first=0):
    out = []; acc = gap - first; units = list(units)
    for it in main:
        if units and acc >= gap:
            out += units.pop(0); acc = 0
        out.append(it); acc += cost(it)
    return out, units

class Gen:
    def __init__(self):
        self.a = Asm()
        self.stamps = False
        self.nstamp = 0
        self.stamp_names = []
        self.ph = 'p0'
        self.sel = []
        self.opt = {}

    def stamp(self, name):
        name = self.ph + '.' + name
        if not self.stamps: return
        if name != 'p0.start' and not any(name.startswith(p) for p in self.sel): return
        i = self.nstamp; self.nstamp += 1
        assert i < NSTAMP
        self.stamp_names.append(name)
        self.a(f's_memtime s[{100-2*i}:{101-2*i}]')
    def ST(self, name): return lambda: self.stamp(name)

    def run(self, items):
        for it in items:
            if callable(it): it()
            elif isinstance(it, tuple): self.a(it[0], it[1])
            else: self.a(it)

    def zipper(self, main, fill):
        n = len(main); out = []; k = 0
        for i, g in enumerate(main):
            out += g
            upto = (len(fill) * (i + 1)) // n
            out += fill[k:upto]; k = upto
        return out

    def W(self, vm=None, lg=None): return lambda: self.a.wait(vm=vm, lg=lg)

    def WN(self, tag, n, lg=None):
        def f():
            assert self.a.cnt.get(tag, 0) == n, (tag, self.a.cnt.get(tag, 0), n)
            self.a.wait(vm=tag, lg=lg)
        return f

    def finish(self, phase, slot, work=[], units=[], split=800, post=[]):
        a = self.a
        self.stamp('st')
        if work or units:
            a.wait(lg='all')
            a('s_barrier')
        L, left = weave(work, units)
        L += flat(left)
        acc = 0; cut = len(L); nd = 0
        for i, it in enumerate(L):
            t = it[0] if isinstance(it, tuple) else (it if isinstance(it, str) else '')
            if t.startswith('buffer_load'): nd += 1
            acc += cost(it)
            if acc >= split or nd > 9: cut = i; break
        self.run(L[:cut])
        self.stamp('bg1')
        a(f's_lshl_b32 {FL0}, {slot}, 8\ns_add_u32 {FL0}, {FL0}, {FLAGS + phase * 65536}')
        a(f'v_mov_b32 v254, {TAG}\nv_lshlrev_b32 v255, 2, {LANE}')
        a.wait(vm='st', lg=(None if (work or units) else 'all'))
        self.stamp('drain')
        a('s_barrier')
        self.stamp('zflag')
        Lb = a.label('sig')
        a(f's_cmp_lg_u32 {WAVE}, 0\ns_cbranch_scc1 {Lb}')
        a('s_mov_b32 exec_hi, 0')
        a.raw(f'buffer_store_dword v254, v255, {WS}, {FL0} offen sc1')
        a('s_mov_b32 exec_hi, -1')
        a(f'{Lb}:')
        self.run(L[cut:])
        self.run(post)
        self.stamp('bg2')

    def flag(self, phase, slot):
        def f():
            a = self.a
            Lb = a.label('sig')
            a(f's_cmp_lg_u32 {WAVE}, 0\ns_cbranch_scc1 {Lb}')
            a(f's_lshl_b32 {FL0}, {slot}, 8\ns_add_u32 {FL0}, {FL0}, {FLAGS + phase * 65536}')
            a(f'v_mov_b32 v242, {TAG}\nv_lshlrev_b32 v243, 2, {LANE}\ns_mov_b32 exec_hi, 0')
            a.raw(f'buffer_store_dword v242, v243, {WS}, {FL0} offen sc1')
            a('s_mov_b32 exec_hi, -1')
            a(f'{Lb}:')
        return f
    def wpoll_issue(self, phase, mask):
        return [f's_mov_b32 {T7}, {FLAGS + phase * 65536}', f's_mov_b64 exec, {mask}', (f'buffer_load_dword v255, v254, {WS}, {T7} offen sc1', 'pl'), 's_mov_b64 exec, -1']
    def wpoll_check(self, mask):
        def f():
            a = self.a
            P = a.label('wp'); K = a.label('wpok')
            a(f's_mov_b32 {T1}, 300000\ns_mov_b64 exec, {mask}')
            a.wait(vm='pl')
            a(f'{P}:')
            a(f'v_cmp_ne_u32 vcc, {TAG}, v255\ns_sub_u32 {T1}, {T1}, 1\ns_cbranch_vccz {K}')
            a.raw(f'buffer_load_dword v255, v254, {WS}, {T7} offen sc1')
            a.raw('s_waitcnt vmcnt(0)')
            a(f's_cmp_gt_i32 {T1}, 0\ns_cbranch_scc1 {P}')
            a(f'{K}:')
            a('s_mov_b64 exec, -1')
        return f

    def poll(self, phase, base, mask, first=None):
        a = self.a
        self.stamp('prepoll')
        L = a.label('pskip'); P = a.label('poll'); K = a.label('pok')
        a(f's_cmp_lg_u32 {WAVE}, 0\ns_cbranch_scc1 {L}')
        a(f'v_add_u32 v254, {base}, {LANE}\nv_and_b32 v254, 255, v254\nv_lshlrev_b32 v254, 8, v254')
        a(f's_mov_b32 {T0}, {FLAGS + phase * 65536}\ns_mov_b32 {T1}, 300000')
        if self.opt.get(f'dl{phase}', 0): a(f's_sleep {self.opt[f"dl{phase}"]}')
        for m in ([first] if first and self.opt.get('two', 1) else []) + [mask]:
            P = a.label('poll'); K = a.label('pok')
            if isinstance(m, tuple): a(f's_mov_b32 exec_lo, {m[0]}\ns_mov_b32 exec_hi, {m[1]}')
            else: a(f's_mov_b64 exec, {m}')
            a(f'{P}:')
            a.raw(f'buffer_load_dword v255, v254, {WS}, {T0} offen sc1')
            a.raw('s_waitcnt vmcnt(0)')
            a(f'v_cmp_ne_u32 vcc, {TAG}, v255')
            a(f's_sub_u32 {T1}, {T1}, 1')
            a(f's_cbranch_vccz {K}')
            if self.opt.get(f'sl{phase}', 0): a(f's_sleep {self.opt[f"sl{phase}"]}')
            a(f's_cmp_gt_i32 {T1}, 0\ns_cbranch_scc1 {P}')
            a(f'{K}:')
        a('s_mov_b64 exec, -1')
        a(f'{L}:')
        a('s_barrier')
        self.stamp('zpoll')

    def voff_calc(self, v, pitch, typ):
        L = [f'v_lshrrev_b32 v252, 3, {LANE}', f'v_mul_u32_u24 {v}, {pitch}, v252']
        if typ == 'A': L += [f'v_lshrrev_b32 v252, 4, {LANE}', 'v_lshlrev_b32 v252, 1, v252']
        else: L += [f'v_bfe_u32 v252, {LANE}, 4, 1', 'v_lshlrev_b32 v252, 2, v252']
        L += [f'v_and_b32 v253, 7, {LANE}', 'v_xor_b32 v252, v252, v253', f'v_lshl_add_u32 {v}, v252, 4, {v}']
        return L
    def dma_units(self, srd, pitch, stash, src, srcadd, dst, dstadd, n, tag, pre=[]):
        if not isinstance(srcadd, list): srcadd = [srcadd + g*32*pitch for g in range((n + 3)//4)]
        U = []
        for i in range(n):
            u = []
            if i == 0:
                u += pre + [f'v_accvgpr_read_b32 v{VO}, {stash}']
                u += [f'v_add_u32 v{VO+k}, {k*(8*pitch-1024)}, v{VO}' for k in range(1, 4)]
            if i % 4 == 0:
                u.append(f's_add_u32 m0, {dst}, {dstadd + i*1024}')
                u.append(f's_add_u32 {D0}, {src}, {srcadd[i//4]}')
            u.append((f'buffer_load_dwordx4 v{VO+(i&3)}, {srd}, {D0} offen offset:{(i&3)*1024} lds', tag))
            U.append(u)
        return U
    def img9(self, srd, base, tag): return self.dma_units(srd, 896, aVA, IMG9, 0, WV14, base, 14, tag)
    def img3(self, col, base, tag): return self.dma_units(W3, 3584, aVC, IMG3, col, WV14, base, 14, tag)
    W4R = [(0, 1, 2), (3, 4, 5), (6, 7, 8), (9, 10), (11, 12, 13)]
    def w4_units(self, rnd):
        t = self.W4R[rnd]
        return self.dma_units(W4, 896, aVB, W4O, [self.w4row(j)*896 for j in t], WV12, 0, 4*len(t), f'w4_{rnd}', pre=[self.W(lg='w4r')])
    def w4row(self, j): return 32*j if j < 7 else 896 + 32*(j - 7)
    def w4_read(self, rnd):
        L = [f'v_accvgpr_read_b32 v253, {aB0}', f'v_add_u32 v253, {WV12}, v253', 'v_xor_b32 v252, 64, v253', self.WN(f'w4_{rnd}', 4*len(self.W4R[rnd]))]
        for n, t in enumerate(self.W4R[rnd]):
            for p in range(2):
                for tn in range(2):
                    b = ((2*t + p) * 2 + tn) * 4
                    off = n*4096 + p*2048
                    L.append((f'ds_read_b64_tr_b16 a[{b}:{b+1}], v{253-tn} offset:{off}', 'w4r'))
                    L.append((f'ds_read_b64_tr_b16 a[{b+2}:{b+3}], v{253-tn} offset:{off+1024}', 'w4r'))
        return L

    def prologue(self):
        a = self.a
        a('s_load_dwordx2 s[8:9], s[0:1], 0\ns_load_dwordx2 s[12:13], s[0:1], 8\ns_load_dwordx2 s[4:5], s[0:1], 80')
        a('s_cmp_ge_u32 s2, 256\ns_cbranch_scc1 L_end')
        self.stamp('start')
        if self.stamps: a('s_memrealtime vcc')
        a(f's_getpc_b64 s[60:61]\nL_pc:\ns_sub_u32 s60, s60, L_pc-{NAME}_kernel\ns_subb_u32 s61, s61, 0')
        a(f's_mov_b32 s62, L_end-{NAME}_kernel\ns_mov_b32 s63, 0x20000\ns_lshr_b32 s59, s2, 3\ns_lshl_b32 s59, s59, 7')
        a('v_lshlrev_b32 v41, 8, v0\nv_and_b32 v41, 0xf000, v41')
        a('buffer_load_dword v41, v41, s[60:63], s59 offen', 'code')
        a(f'v_and_b32 {LANE}, 63, v0\nv_lshlrev_b32 v40, 7, v0\nv_lshrrev_b32 v0, 6, v0')
        a(f's_and_b32 {TEAM}, s2, 7\ns_lshl_b32 {TEAM}, {TEAM}, 1\ns_lshr_b32 {MEM}, s2, 7\ns_add_u32 {TEAM}, {TEAM}, {MEM}')
        a(f's_bfe_u32 {MEM}, s2, 0x40003')
        a(f'v_readfirstlane_b32 {WAVE}, v0')
        a(f's_cmp_ge_u32 {MEM}, 7\ns_cselect_b32 {RH}, 1, 0\ns_mul_i32 {CG}, {RH}, 7\ns_sub_u32 {CG}, {MEM}, {CG}')
        a(f's_lshl_b32 {RB}, {TEAM}, 1\ns_add_u32 {RB}, {RB}, {RH}')
        a(f'v_lshrrev_b32 v250, 3, {LANE}\nv_and_b32 v251, 7, {LANE}\nv_mul_u32_u24 v239, 896, v250\nv_lshl_add_u32 v239, v251, 4, v239')
        a(f's_lshl_b32 {D0}, {RB}, 2\ns_add_u32 {D0}, {D0}, {WAVE}\ns_mul_i32 {D0}, {D0}, {16*896}\ns_add_u32 {D1}, {D0}, {8*896}')
        a(f's_lshl_b32 s66, {CG}, 7\ns_add_u32 s67, s66, {D1}\ns_add_u32 s66, s66, {D0}')
        a(f's_mov_b32 s10, {2048*896}\ns_mov_b32 s11, s63\ns_mov_b32 s14, {448*2688}\ns_mov_b32 s15, s63')
        a(f's_cmp_ge_u32 {MEM}, 14')
        a.raw('s_waitcnt lgkmcnt(0)')
        if self.stamps: a('s_mov_b32 s101, vcc_lo')

    def late_loads(self):
        return S("""s_load_dwordx2 s[16:17], s[0:1], 16
            s_load_dwordx2 s[20:21], s[0:1], 32
            s_load_dwordx2 s[24:25], s[0:1], 40
            s_load_dwordx2 s[28:29], s[0:1], 48
            s_load_dwordx2 s[32:33], s[0:1], 56
            s_load_dwordx2 s[36:37], s[0:1], 64
            s_mov_b32 s6, 0x10000000
            s_mov_b32 s7, 0x20000
            v_mov_b32 v255, 0""") + [(f'buffer_load_dword v4, v255, {WS}, 0 offen sc1', 'epoch')]

    def setup1(self):
        L = []
        for base, size in [(16, 448*896), (20, 448*896), (24, 448*896), (28, 448*3584), (32, 1792*896), (36, 2048*896)]:
            L += S(f's_mov_b32 s{base+2}, {size}\ns_mov_b32 s{base+3}, 0x20000')
        L += S(f"""s_lshl_b32 {SLOTA}, {RB}, 3
            s_add_u32 {SLOTA}, {SLOTA}, {CG}
            s_lshl_b32 {SLOTB}, {TEAM}, 4
            s_add_u32 {SLOTB}, {SLOTB}, {MEM}
            s_mul_i32 {WV14}, {WAVE}, 14336
            s_mul_i32 {WV12}, {WAVE}, 12288
            s_add_u32 {WV12}, {WV12}, {S2}
            s_lshl_b32 {T0}, {CG}, 7""")
        L.append(f's_cmp_ge_u32 {MEM}, 14\ns_cselect_b32 {T0}, {OOB}, {T0}')
        L += S(f"""s_mul_i32 {IMG9}, {WAVE}, {112*896}
            s_add_u32 {IMG9}, {IMG9}, {T0}
            s_mul_i32 {W4O}, {WAVE}, {224*896}
            s_add_u32 {W4O}, {W4O}, {T0}""")
        L += self.voff_calc('v251', 896, 'A') + [f'v_accvgpr_write_b32 {aVA}, v251']
        return L

    def trB_calc(self, v, hrows):
        return S(f"""v_lshrrev_b32 v252, 5, {LANE}
            v_mul_u32_u24 {v}, {hrows*128}, v252
            v_bfe_u32 v252, {LANE}, 2, 2
            v_lshl_add_u32 {v}, v252, 7, {v}
            v_bfe_u32 v252, {LANE}, 4, 1
            v_lshl_add_u32 {v}, v252, 5, {v}
            v_and_b32 v252, 3, {LANE}
            v_lshl_add_u32 {v}, v252, 3, {v}
            v_bfe_u32 v252, {LANE}, 3, 1
            v_lshl_add_u32 {v}, v252, 6, {v}""")

    def setup2(self):
        L = S(f"""s_mul_i32 {IMG3}, {WAVE}, {112*3584}
            s_lshl_b32 {T0}, {MEM}, 7
            s_add_u32 {IMG3}, {IMG3}, {T0}
            s_mul_i32 {RB57}, {RB}, 57344
            s_lshl_b32 {TB16}, {CG}, 13
            s_add_u32 {TB16}, {TB16}, {RB57}
            s_lshl_b32 {STO}, {SLOTA}, 9
            s_lshl_b32 {T0}, {WAVE}, 7
            s_add_u32 {STO}, {STO}, {T0}
            s_mov_b32 {ONES}, 0x3f803f80
            v_lshrrev_b32 v250, 4, {LANE}
            v_and_b32 v251, 15, {LANE}
            v_lshlrev_b32 v251, 4, v251
            v_lshl_add_u32 {VA16}, v250, 10, v251
            v_lshl_add_u32 {VA16}, v0, 8, {VA16}
            v_lshrrev_b32 v250, 5, {LANE}
            v_and_b32 v251, 31, {LANE}
            v_lshlrev_b32 v251, 4, v251
            v_lshl_add_u32 {V32}, v250, 10, v251
            v_lshrrev_b32 v250, 2, {LANE}
            v_lshlrev_b32 v251, 7, v250
            v_and_b32 v250, 6, v250
            v_lshl_add_u32 v251, v250, 4, v251
            v_and_b32 v250, 3, {LANE}
            v_lshl_add_u32 v251, v250, 3, v251
            v_accvgpr_write_b32 {aA0}, v251""")
        L += self.trB_calc('v251', 4) + [f'v_accvgpr_write_b32 {aB0}, v251']
        for st, pitch, typ in ((aVB, 896, 'B'), (aVC, 3584, 'B')):
            L += self.voff_calc('v251', pitch, typ) + [f'v_accvgpr_write_b32 {st}, v251']
        return L + self.gaddr_setup()

    def gaddr_setup(self):
        L = S(f"""v_and_b32 v104, 15, {LANE}
            s_lshl_b32 {T0}, {RB}, 6
            s_lshl_b32 {T1}, {WAVE}, 4
            s_add_u32 {T0}, {T0}, {T1}
            v_add_u32 v104, {T0}, v104
            v_and_b32 v105, 48, {LANE}
            v_lshlrev_b32 v105, 2, v105""")
        for j in range(4):
            mixcg = 5 if j < 2 else 1
            L.append(f's_lshl_b32 {T0}, {CG}, 2\ns_add_u32 {T0}, {T0}, {j}\ns_cmp_ge_u32 {T0}, 7\ns_cselect_b32 {T1}, -1, 1\ns_cmp_ge_u32 {T0}, 14\ns_cselect_b32 {T1}, 2, {T1}\n'
                     f's_cmp_ge_u32 {T0}, 21\ns_cselect_b32 {T1}, -2, {T1}\ns_cmp_eq_u32 {CG}, {mixcg}\ns_cselect_b32 {T0}, 3, 4')
            L += S(f"""v_add_u32 v106, {T1}, v104
                v_bfe_i32 v108, v106, 11, 1
                v_bfe_u32 v107, v106, 6, 5
                v_mul_u32_u24 v107, 57344, v107
                v_and_or_b32 v106, v106, 63, v105
                v_lshl_add_u32 v106, v106, {T0}, v107
                v_not_b32 v108, v108
                v_accvgpr_write_b32 a{240+j}, v106
                v_accvgpr_write_b32 a{244+j}, v108""")
        return L

    def burst(self, srd, start, k, idx, wstride, vreg):
        def f():
            a = self.a
            a(f's_mul_i32 {T0}, {idx}, {k*128 * (4 if wstride is None else 1)}\ns_mul_i32 {T1}, {WAVE}, {k*128 if wstride is None else wstride}\ns_add_u32 {T0}, {T0}, {T1}')
            if start: a(f's_add_u32 {T0}, {T0}, {start}')
            a(f'v_lshlrev_b32 v{vreg}, 7, {LANE}\ns_mov_b64 exec, {hx((1 << k) - 1)}')
            a(f'buffer_load_dword v{vreg}, v{vreg}, {srd}, {T0} offen', 'pf')
            a('s_mov_b64 exec, -1')
        return f

    def get_tag(self):
        return [self.W(vm='epoch'), f'v_readfirstlane_b32 {TAG}, v4', f's_mul_i32 {TAG}, {TAG}, 0x9E3779B1', f's_add_u32 {TAG}, {TAG}, 0x7F4A7C15']

    def p1(self):
        a = self.a
        ACC, XR, XF, PK = 32, 128, 128, 80
        WA, XW, XA = 240, 246, 247
        XL = [[(f'buffer_load_dwordx4 v[184:187], v239, {XS}, s66 offen', 'xt')], [(f'buffer_load_dwordx4 v[188:191], v239, {XS}, s67 offen', 'xt')]]
        XL += [[(f'buffer_load_dwordx4 {vr(128+4*n,4)}, v239, {XS}, {D1 if n >= 7 else D0} offen offset:{128*(n%7)}', f'x{n}')] for n in range(14)]
        def wunits(g):
            U = []
            for k in range(2*g, min(2*g + 2, 21)):
                U.append([f's_add_u32 m0, {D1}, {WSL + (k % 12)*8192}', f's_add_u32 {T7}, {D0}, {64*(k%7)*2688 + (k//7)*128}', (f'buffer_load_dwordx4 v{VO}, {WQ}, {T7} offen lds', f'wq{g}')])
                U.append([(f'buffer_load_dwordx4 v{VO+1}, {WQ}, {T7} offen offset:1024 lds', f'wq{g}')])
            return U
        NX = self.opt.get('p1nx', 10)
        self.run(flat(XL[:NX]))
        self.run(self.late_loads())
        self.run(self.voff_calc(f'v{VO}', 2688, 'B') + [f'v_add_u32 v{VO+1}, {8*2688-1024}, v{VO}'])
        a(f's_mov_b32 {ONES}, 0x3f803f80\ns_mov_b32 {LO1}, 0x00003f80\ns_mov_b32 {HI1}, 0x3f800000')
        a(f's_and_b32 {T4}, {WAVE}, 1\ns_lshr_b32 {T5}, {WAVE}, 1')
        a(f's_mul_i32 {T0}, {WAVE}, {16*XP}\nv_mul_u32_u24 v{XW}, {XP}, v250')
        a(f'v_lshl_add_u32 v{XW}, v251, 4, v{XW}\nv_add_u32 v{XW}, {T0}, v{XW}')
        a(f's_lshl_b32 {T1}, {WAVE}, 6\ns_add_u32 {T1}, {T1}, {RSD}\nv_lshl_add_u32 v92, v250, 2, {T1}')
        a(f'v_and_b32 v250, 15, {LANE}\nv_lshrrev_b32 v251, 4, {LANE}\nv_mul_u32_u24 v93, {XP}, v250\nv_lshl_add_u32 v93, v251, 3, v93\nv_add_u32 v93, {T0}, v93')
        a(f's_mul_i32 {T0}, {T4}, {32*XP}\nv_and_b32 v250, 31, {LANE}\nv_lshrrev_b32 v251, 5, {LANE}\nv_mul_u32_u24 v{XA}, {XP}, v250')
        a(f'v_lshl_add_u32 v{XA}, v251, 4, v{XA}\nv_add_u32 v{XA}, {T0}, v{XA}')
        a(f's_lshl_b32 {T1}, {T4}, 7\ns_add_u32 {T1}, {T1}, {RSD}\nv_lshl_add_u32 v94, v250, 2, {T1}')
        a(f'v_lshlrev_b32 v95, 3, v250\nv_lshl_add_u32 v95, v251, 10, v95')
        self.run(self.trB_calc('v250', 8))
        a(f's_lshl_b32 {T2}, {T5}, 6\nv_xor_b32 v250, {T2}, v250\nv_add_u32 v{WA}, {WSL}, v250\nv_add_u32 v{WA+1}, {WSL + 6*8192}, v250')
        for i in range(8): a(f'v_mov_b32 v{96+i}, 0')
        a.raw('s_waitcnt lgkmcnt(0)')
        self.stamp('setup')
        self.run(flat(XL[NX:]))
        a(f's_mul_i32 {D0}, {WAVE}, {16*2688}\ns_mul_i32 {D1}, {CG}, 384\ns_add_u32 {D0}, {D0}, {D1}\ns_lshl_b32 {D1}, {WAVE}, 11')
        fill = S(f"""s_mul_i32 {T6}, {CG}, 6
            s_add_u32 {T6}, {T6}, {T5}
            s_mul_i32 {T3}, {TEAM}, {336*1024}
            s_lshl_b32 {T2}, {T6}, 13
            s_add_u32 {T3}, {T3}, {T2}
            s_lshl_b32 {T2}, {RH}, 9
            s_add_u32 {T3}, {T3}, {T2}
            s_lshl_b32 {T2}, {T4}, 8
            s_add_u32 {T3}, {T3}, {T2}
            s_add_u32 {T3}, {T3}, {QKV}""")
        for i in range(3):
            fill += [f's_cmp_lt_u32 {T6}, {14 - 2*i}\ns_cselect_b32 {T2}, {hf(QSCALE)}, 1.0', f'v_mul_f32 v{96+2*i}, {T2}, v123']
        WU = flat([wunits(g) for g in range(6)])
        M = [self.W(vm='xt'), self.ST('x0'), (f'ds_write_b128 v{XW}, v[184:187]', 'xw'), (f'ds_write_b128 v{XW}, v[188:191] offset:{8*XP}', 'xw'), self.W(lg='xw')]
        M += [(f'ds_read_b64 {vr(HPK+2*j,2)}, v93 offset:{32*j}', 'xtr') for j in range(4)]
        for n in range(14):
            e = n // 7
            M.append(self.W(vm=f'x{n}'))
            for d in range(4):
                M.append(f'v_dot2c_f32_bf16 v{96+4*e+(d&1)}, {ONES}, v{XR+4*n+d}')
                M.append(f'v_dot2c_f32_bf16 v{98+4*e+(d&1)}, v{XR+4*n+d}, v{XR+4*n+d}')
        M.append(self.ST('x_in'))
        M += [f'v_add_f32 v{96+2*k}, v{96+2*k}, v{97+2*k}' for k in range(4)]
        for dpp in ('quad_perm:[1,0,3,2]', 'quad_perm:[2,3,0,1]', 'row_half_mirror'):
            M += [f'v_add_f32_dpp v{96+2*k}, v{96+2*k}, v{96+2*k} {dpp} row_mask:0xf bank_mask:0xf' for k in range(4)]
        for e in range(2):
            s_, q_ = 96 + 4*e, 98 + 4*e
            M += [f'v_mul_f32 v{s_}, {hf(-1/448)}, v{s_}', f'v_mul_f32 v{q_}, {hf(1/448)}, v{q_}', f'v_fma_f32 v{q_}, -v{s_}, v{s_}, v{q_}', f'v_max_f32 v{q_}, 0, v{q_}',
                  f'v_add_f32 v{q_}, {hf(EPS)}, v{q_}', f'v_rsq_f32 v{q_}, v{q_}']
        M.append(self.W(lg='xtr'))
        for n in range(14):
            e, i = n // 7, n % 7
            for d in range(4):
                M.append(f'v_dot2_f32_bf16 v{112+2*d}, v{XR+4*n+d}, {LO1}, v{96+4*e}')
                M.append(f'v_dot2_f32_bf16 v{113+2*d}, v{XR+4*n+d}, {HI1}, v{96+4*e}')
            M += [f'v_cvt_pk_bf16_f32 v{XR+4*n+d}, v{112+2*d}, v{113+2*d}' for d in range(4)]
            M.append((f'ds_write_b128 v{XW}, {vr(XR+4*n,4)} offset:{e*8*XP + 128*i}', 'xw'))
        M += [('ds_write_b32 v92, v98', 'xw'), ('ds_write_b32 v92, v102 offset:32', 'xw')]
        NW = self.opt.get('p1nw', 16)
        L, left = weave(M, WU[:NW], gap=self.opt.get('p1gap', 56), first=self.opt.get('p1first', 30))
        self.run(L)
        pend = left + WU[NW:]
        self.stamp('norm')
        NB, AH = 8, 4
        def sync(n): return [self.WN(f'wq{n>>3}', 4 if n < 80 else 2), 's_barrier'] if n & 7 == 0 else []
        def reads(n):
            k = n >> 2; sl = k % 12
            ar, off = (WA, sl * 8192) if sl < 6 else (WA + 1, (sl - 6) * 8192)
            off += (n & 3) * 2048
            r0 = (n % NB) * 4
            L = [(f'ds_read_b64_tr_b16 a[{r0}:{r0+1}], v{ar} offset:{off}', f'wf{n}'), (f'ds_read_b64_tr_b16 a[{r0+2}:{r0+3}], v{ar} offset:{off + 512}', f'wf{n}')]
            if n < 28: L.append((f'ds_read_b128 {vr(XF+4*n,4)}, v{XA} offset:{32*n}', f'wf{n}'))
            return L
        def epi(i, pk):
            c = ACC + 16 * i; L = []
            for q in range(4):
                if pk: L += [f'v_pk_mul_f32 {vr(c+4*q+2*k,2)}, {vr(c+4*q+2*k,2)}, {vr(96+2*i,2)} op_sel_hi:[1,0]' for k in range(2)]
                else: L += [f'v_mul_f32 v{c+4*q+k}, v{c+4*q+k}, v{96+2*i}' for k in range(4)]
                L += [f'v_cvt_pk_bf16_f32 v{PK+2*q+k}, v{c+4*q+2*k}, v{c+4*q+2*k+1}' for k in range(2)]
                if q % 2 == 0: L.append(f's_add_u32 {T2}, {T3}, {i*16384 + q*2048}')
                L.append((f'buffer_store_dwordx2 {vr(PK+2*q,2)}, v95, {WS}, {T2} offen offset:{(q%2)*2048} sc1', 'st'))
            return L
        a.wait(lg='all')
        self.run(sync(0))
        a('ds_read_b32 v123, v94', 'rs')
        for q in range(AH): self.run(reads(q))
        for n in range(84):
            img, s = n // 28, n % 28
            if n + AH < 84 and (n + AH) & 7 == 0:
                g = (n + AH) >> 3
                while pend and pend[0][-1][1] <= f'wq{g}' and len(pend[0][-1][1]) <= len(f'wq{g}'): self.run(pend.pop(0))
                self.run(sync(n + AH))
                if 2 <= g <= 6: pend += wunits(g + 4)
            if n % 2 == 0: a.wait(lg=f'wf{n+1}')
            c = ACC + 16 * img; r0 = (n % NB) * 4
            a(f'v_mfma_f32_32x32x16_bf16 {vr(c,16)}, a[{r0}:{r0+3}], {vr(XF+4*s,4)}, {vr(c,16) if s else 0}')
            if n + AH < 84: self.run(reads(n + AH))
            if n in (13, 28, 42, 56, 70): self.stamp(f'n{n}')
            if n == 24: fill += self.setup1() + self.get_tag()
            if n == self.opt.get('e0n', 30): fill += epi(0, False)
            if n == self.opt.get('e1n', 58): fill += epi(1, False)
            if n == self.opt.get('b1n', 58):
                if self.opt.get('b1', 0):
                    fill += [f's_and_b32 {T4}, {RB}, 3', f's_mul_i32 {T4}, {T4}, 7', f's_add_u32 {T4}, {T4}, {CG}', self.burst(WO, 0, 28, T4, None, 104), self.burst(W4, 0, 24, T4, 224*896, 105)]
            if pend and n % 2 == 1: self.run(pend.pop(0))
            elif fill:
                k = 1 if n < 24 else 3
                self.run(fill[:k]); fill = fill[k:]
        self.stamp('mm')
        self.run(fill)
        if self.opt.get('e0n', 30) > 83: self.run(epi(0, True))
        if self.opt.get('e1n', 58) > 83: self.run(epi(1, True))
        self.run(epi(2, True))
        self.finish(0, SLOTA, self.p2_setup(), self.img9(WO, S0, 'wo'), split=self.opt.get('sp0', 380))

    def p2_setup(self):
        MD, MO = 176, 192
        a = self.a
        L = S(f'''v_lshl_add_u32 v240, {WAVE}, 6, {LANE}
            s_sub_u32 {T5}, 2, {TEAM}
            s_max_i32 {T5}, {T5}, 0
            s_cmp_lt_u32 {WAVE}, {T5}
            s_cselect_b32 {T1}, {hx(NBIG >> 16)}, 0''')
        L = ['\n'.join(L)]
        L += S(f'''v_mov_b32 v244, {T1}
            v_mov_b32 v245, 0
            v_mov_b32 v246, {T1}
            v_mov_b32 v247, 0
            v_mov_b32 v236, 0x3f80
            v_mov_b32 v237, 0
            v_mov_b32 v238, 0x3f80
            v_mov_b32 v239, 0
            v_lshlrev_b32 v240, 4, v240
            v_add_u32 v240, {KB + 7*KP}, v240''')
        def cr():
            Lb = a.label('cr')
            a(f's_cmp_ge_u32 {WAVE}, 3\ns_cbranch_scc1 {Lb}')
            a.raw(f'ds_write_b128 v240, v[244:247]\nds_write_b128 v240, v[236:239] offset:{8*KP}')
            a(f'{Lb}:')
        L.append(cr)
        L += S(f'''v_and_b32 v240, 31, {LANE}
            v_lshrrev_b32 v241, 5, {LANE}
            v_lshlrev_b32 v242, 2, v241
            v_sub_u32 v240, v240, v242
            v_mov_b32 v242, {hx(NBIG)}''')
        for r in range(16):
            kk = 8*(r >> 2) + (r & 3)
            L += [f'v_subrev_u32 v243, {kk}, v240', 'v_ashrrev_i32 v243, 31, v243', f'v_and_b32 v{MD+r}, v242, v243', f'v_xor_b32 v{MO+r}, v242, v{MD+r}']
        L += S(f'''v_and_b32 v240, 31, {LANE}
            v_lshlrev_b32 v240, 3, v240
            v_mul_u32_u24 v232, {KP}, v241
            v_add_u32 v232, v232, v240
            v_lshl_add_u32 v234, v241, 10, v240
            s_lshl_b32 {T1}, {WAVE}, 8
            s_add_u32 {T2}, {T1}, {KB}
            v_add_u32 v232, {T2}, v232
            v_bfe_u32 v240, {LANE}, 4, 1
            v_and_b32 v242, 3, {LANE}
            v_lshl_add_u32 v240, v240, 2, v242
            v_mul_u32_u24 v233, {KP}, v240
            v_lshl_add_u32 v233, v241, 5, v233
            v_bfe_u32 v240, {LANE}, 2, 2
            v_lshl_add_u32 v233, v240, 3, v233
            s_add_u32 {T2}, {T1}, {VB}
            v_add_u32 v233, {T2}, v233
            v_lshlrev_b32 v235, 4, {LANE}
            s_mul_i32 {T3}, {TEAM}, {336*1024}
            s_mul_i32 {T2}, {MEM}, 7168
            s_add_u32 {T3}, {T3}, {T2}
            s_add_u32 {T3}, {T3}, {QKV}
            s_sub_u32 {T4}, 2, {WAVE}
            s_mul_i32 {T4}, {T4}, {336*1024}
            s_sub_u32 {T4}, {T3}, {T4}''')
        L.append(f's_cmp_lt_u32 {WAVE}, {T5}\ns_cselect_b32 {T4}, {OOB}, {T4}')
        L += S(f'''s_add_u32 {T3}, {T3}, {T1}
            s_mov_b32 {T6}, 0x7f7f7f7f
            s_mov_b32 {T7}, 0x7f7f
            s_lshl_b32 {T1}, {T5}, 4
            s_lshr_b64 s[58:59], s[58:59], {T1}
            s_lshl_b64 s[58:59], s[58:59], {T1}
            s_lshl_b32 {T2}, {TEAM}, 4
            s_sub_u32 {T2}, {T2}, 32''')
        return L

    def p2(self):
        a = self.a
        S_, MD, MO, Q, OA = 32, 176, 192, 208, 216
        KA, VA = 'v232', 'v233'
        FB = 200
        a.raw('s_waitcnt lgkmcnt(0)')
        self.poll(0, T2, 's[58:59]', first=(0, '0x7f7f'))
        a(f's_add_u32 {T2}, {T3}, 4096')
        for q in range(4):
            a(f'buffer_load_dwordx2 {vr(Q+2*q,2)}, v234, {WS}, {T3 if q < 2 else T2} offen offset:{(q%2)*2048} sc1', 'q')
        L = a.label('kv')
        a(f's_cmp_ge_u32 {WAVE}, 3\ns_cbranch_scc1 {L}')
        a(f's_lshl_b32 {T2}, {WAVE}, 10')
        for part, lb in ((1, KB), (2, VB)):
            for q in range(7):
                if q % 4 == 0: a(f's_add_u32 {T3}, {T4}, {part*112*1024 + q*1024}')
                a(f's_add_u32 m0, {T2}, {lb + q*KP - (q%4)*1024}')
                a.raw(f'buffer_load_dwordx4 v235, {WS}, {T3} offen offset:{(q%4)*1024} sc1 lds')
        a(f'{L}:')
        self.run(self.setup2())
        a(f's_lshl_b32 {T4}, {TEAM}, 1\ns_lshr_b32 {T1}, {WAVE}, 1\ns_add_u32 {T4}, {T4}, {T1}\ns_lshl_b32 {T4}, {T4}, 16')
        a(f's_lshl_b32 {T1}, {MEM}, 12\ns_add_u32 {T4}, {T4}, {T1}\ns_and_b32 {T1}, {WAVE}, 1\ns_lshl_b32 {T1}, {T1}, 9\ns_add_u32 {T4}, {T4}, {T1}\ns_add_u32 {T4}, {T4}, {O_}')
        a.raw('s_waitcnt vmcnt(7)')
        L = a.label('kv2')
        a(f's_cmp_lt_u32 {WAVE}, 3\ns_cbranch_scc1 {L}')
        a.raw('s_waitcnt vmcnt(0)')
        a(f'{L}:')
        a('s_barrier')
        self.stamp('k')
        def kread(i):
            b = FB + (i % 3) * 8
            return [(f'ds_read_b64 a[{b+4*p+2*s}:{b+4*p+2*s+1}], {KA} offset:{(4*p+2*s)*KP + 256*i}', f'k{i}') for p in range(2) for s in range(2)]
        self.run(kread(0)); self.run(kread(1))
        nb2 = 0
        if self.opt.get('b2', 1):
            a(f's_and_b32 {T5}, {SLOTB}, 31')
            self.burst(W1, 0, 25, T5, None, 240)(); self.burst(W4, 96*896, 21, T5, 224*896, 241)(); self.burst(W2, 0, 25, T5, None, 242)()
            nb2 = 3
        a(f's_mov_b32 exec_lo, 0\nv_mov_b32 v{Q+6}, 0x3f80\nv_mov_b32 v{Q+7}, 0\ns_mov_b32 exec_lo, -1')
        MX = 236
        def maxes(i):
            L = []
            r = S_ + 16*i
            for k in range(8):
                if i == 0 and k < 2: L.append(f'v_max_f32 v{MX+k}, v{r+2*k}, v{r+2*k+1}')
                else: L.append(f'v_max3_f32 v{MX+(k&1)}, v{r+2*k}, v{r+2*k+1}, v{MX+(k&1)}')
            return L
        for i in range(9):
            a.wait(lg=f'k{i}')
            b = FB + (i % 3) * 8
            c0 = vr(MO, 16) if i == 0 else (vr(MD, 16) if i == 8 else '0')
            kr = kread(i + 2) if i + 2 < 9 else []
            mx = maxes(i - 2) if i >= 2 else []
            a(f'v_mfma_f32_32x32x16_bf16 {vr(S_+16*i,16)}, a[{b}:{b+3}], {vr(Q,4)}, {c0}')
            self.run(kr[:2] + mx[:4])
            a(f'v_mfma_f32_32x32x16_bf16 {vr(S_+16*i,16)}, a[{b+4}:{b+7}], {vr(Q+4,4)}, {vr(S_+16*i,16)}')
            self.run(kr[2:] + mx[4:])
        self.stamp('qk')
        self.run(maxes(7)); self.run(maxes(8))
        a(f'v_max_f32 v{MX}, v{MX}, v{MX+1}\nv_mov_b32 v{MX+1}, v{MX}\nv_permlane32_swap_b32 v{MX}, v{MX+1}\nv_max_f32 v{MX}, v{MX}, v{MX+1}')
        def vread(i):
            b = FB + (i % 3) * 8
            return [(f'ds_read_b64_tr_b16 a[{b+4*m+2*e}:{b+4*m+2*e+1}], {VA} offset:{256*i + 128*m + 64*e}', f'v{i}') for m in range(2) for e in range(2)]
        def sub(i):
            r = S_ + 16*i
            return [f'v_pk_add_f32 {vr(r+2*k,2)}, {vr(r+2*k,2)}, {vr(MX,2)} op_sel_hi:[1,0] neg_lo:[0,1] neg_hi:[0,1]' for k in range(8)]
        def ex(i):
            r = S_ + 16*i
            return [f'v_exp_f32 v{r+k}, v{r+k}' for k in range(16)] + [f'v_cvt_pk_bf16_f32 v{r+k}, v{r+2*k}, v{r+2*k+1}' for k in range(8)]
        self.stamp('max')
        self.run(sub(0) + ex(0)[:16])
        a.raw(f's_waitcnt vmcnt({nb2})'); a.vm = ['pf'] * nb2
        a('s_barrier')
        self.run(vread(0)); self.run(vread(1))
        self.run(ex(0)[16:])
        U = self.w4_units(0)
        for i in range(9):
            if i + 1 < 9: self.run(sub(i + 1))
            a.wait(lg=f'v{i}')
            b = FB + (i % 3) * 8
            r = S_ + 16*i
            e = ex(i + 1) if i + 1 < 9 else []
            a(f'v_mfma_f32_32x32x16_bf16 {vr(OA,16)}, a[{b}:{b+3}], {vr(r,4)}, {vr(OA,16) if i else 0}')
            if i + 2 < 9: self.run(vread(i + 2))
            self.run(e[:1])
            a(f'v_mfma_f32_32x32x16_bf16 {vr(OA,16)}, a[{b+4}:{b+7}], {vr(r+4,4)}, {vr(OA,16)}')
            if U: self.run(U.pop(0))
            self.run(e[1:12])
            if U: self.run(U.pop(0))
            self.run(e[12:])
        assert not U
        a(f'v_mov_b32 v{MX}, v{OA+12}\nv_mov_b32 v{MX+1}, v{OA+12}\nv_permlane32_swap_b32 v{MX}, v{MX+1}\nv_rcp_f32 v{MX}, v{MX+1}')
        for p in range(2):
            for k in range(4*p, 4*p+4):
                a(f'v_pk_mul_f32 {vr(OA+2*k,2)}, {vr(OA+2*k,2)}, {vr(MX,2)} op_sel_hi:[1,0]')
            for k in range(4*p, 4*p+4):
                a(f'v_cvt_pk_bf16_f32 v{S_+k}, v{OA+2*k}, v{OA+2*k+1}')
            if p: a(f's_mov_b32 exec_lo, 0\nv_mov_b32 v{S_+6}, 0\nv_mov_b32 v{S_+7}, 0\ns_mov_b32 exec_lo, -1')
            a(f'buffer_store_dwordx4 {vr(S_+4*p,4)}, {V32}, {WS}, {T4} offen offset:{p*2048} sc1', 'st')

    def trA(self, base, omap):
        L = [f'v_accvgpr_read_b32 v4, {aA0}']
        if omap: L += [f'v_and_b32 v5, 1024, {V32}', 'v_add_u32 v4, v4, v5']
        if base: L.append(f'v_add_u32 v4, {base}, v4')
        L += [f'v_xor_b32 v{4+j}, {32*j}, v4' for j in range(1, 4)]
        return L
    def breg(self, s, j, abase):
        return ('v', 112 + 16*s + 4*j) if s < 8 else ('a', abase + 16*(s - 8) + 4*j)
    def breads(self, s, omap, abase, cs=False):
        L = []
        for j in range(4):
            if omap: ar = 4 + (j ^ (2 if s & 1 else 0)); off = 28 * s * 128; d2 = 8 * 128
            else: ar = 4 + j; off = 32 * s * 128; d2 = 16 * 128
            k, b = self.breg(s, j, abase)
            L.append((f'ds_read_b64_tr_b16 {vr(b,2,k)}, v{ar} offset:{off}', f'b{s}'))
            L.append((f'ds_read_b64_tr_b16 {vr(b+2,2,k)}, v{ar} offset:{off+d2}', f'b{s}'))
        return L
    def bstream(self, steps, omap, abase, cs_from=None, cs_upto=None):
        L = []
        def csm(s):
            out = [self.W(lg=f'b{s}')]
            for j in range(4):
                k, b = self.breg(s, j, abase)
                out.append(f'v_mfma_f32_16x16x32_bf16 {vr(RES+4*j,4)}, {vr(b,4,k)}, v[88:91], {vr(RES+4*j,4) if s else 0}')
            return out
        c = cs_from
        for s in steps:
            br = self.breads(s, omap, abase)
            if c is not None and c <= s - 1 and c < cs_upto:
                m = csm(c); c += 1
                L.append(m[0])
                for j in range(4): L += [m[1+j]] + br[2*j:2*j+2]
            else: L += br
        while c is not None and c < cs_upto:
            L += csm(c); c += 1
        return L

    def small_gemm(self, nsteps, abase_g, ACC, pollargs, post, abase, pre=[], bg=[], split8=(), cinit=True, fill=[], mid=[]):
        a = self.a
        AF = 32
        self.poll(*pollargs)
        self.run(pre)
        def aload(s):
            u = [f's_add_u32 {T3}, {T3}, 4096'] if s else []
            if s in split8:
                u += [(f'buffer_load_dwordx2 {vr(AF+4*s+2*h,2)}, v96, {WS}, {T3} offen offset:{2048*h} sc1', f'a{s}') for h in range(2)]
            else:
                u.append((f'buffer_load_dwordx4 {vr(AF+4*s,4)}, {VA16}, {WS}, {T3} offen sc1', f'a{s}'))
            return u
        U = [aload(s) for s in range(nsteps)]
        NPRE = self.opt.get('sgpre', 11)
        L, left = weave(post, U[:NPRE], gap=self.opt.get('sggap', 56))
        self.run(L); self.run(flat(left))
        self.run(mid)
        self.stamp('issued')
        fill = list(fill)
        U = U[NPRE:] + list(bg)
        for s in range(nsteps):
            a.wait(vm=f'a{s}', lg=f'b{s}')
            if s == 0: self.stamp('a0')
            if s == nsteps - 1: self.stamp('alast')
            for j in range(4):
                k, b = self.breg(s, j, abase)
                a(f'v_mfma_f32_16x16x32_bf16 {vr(ACC+4*j,4)}, {vr(b,4,k)}, {vr(AF+4*s,4)}, {vr(ACC+4*j,4) if (s or cinit) else 0}')
                if U and (j == 0 or (j == 2 and s >= 6 and len(U) >= nsteps - s)): self.run(U.pop(0))
                elif fill: self.run(fill[:2]); fill = fill[2:]
        assert not fill
        return U

    def unpack(self, dst, src, n):
        return flat([[f'v_lshlrev_b32 v{dst+2*k}, 16, v{src+k}', f'v_and_b32 v{dst+2*k+1}, 0xffff0000, v{src+k}'] for k in range(n)])

    def tile_out(self, acc, pk, base, stbase):
        a = self.a
        a(f's_add_u32 {T4}, {TB16}, {base}\ns_add_u32 {T5}, {TB16}, {base + 4096}\ns_add_u32 {T6}, {STO}, {stbase}\nv_lshlrev_b32 v244, 3, {LANE}')
        for p in range(2):
            for k in range(4*p, 4*p+4): a(f'v_cvt_pk_bf16_f32 v{pk+k}, v{acc+2*k}, v{acc+2*k+1}')
            a(f'buffer_store_dwordx4 {vr(pk+4*p,4)}, {VA16}, {WS}, {T5 if p else T4} offen sc1', 'st')
        a(f'v_pk_add_f32 v[240:241], {vr(acc,2)}, {vr(acc+2,2)}\nv_pk_mul_f32 v[242:243], {vr(acc,2)}, {vr(acc,2)}')
        a(f'v_pk_fma_f32 v[242:243], {vr(acc+2,2)}, {vr(acc+2,2)}, v[242:243]')
        for k in range(2, 8):
            a(f'v_pk_add_f32 v[240:241], v[240:241], {vr(acc+2*k,2)}\nv_pk_fma_f32 v[242:243], {vr(acc+2*k,2)}, {vr(acc+2*k,2)}, v[242:243]')
        a('v_add_f32 v240, v240, v241\nv_add_f32 v241, v242, v243')
        for sw in ('16', '32'):
            a('v_mov_b32 v242, v240\nv_mov_b32 v243, v241')
            a(f'v_permlane{sw}_swap_b32 v240, v242\nv_permlane{sw}_swap_b32 v241, v243')
            a('v_pk_add_f32 v[240:241], v[240:241], v[242:243]')
        a('s_mov_b64 exec, 0xffff')
        a(f'buffer_store_dwordx2 v[240:241], v244, {WS}, {T6} offen sc1', 'st')
        a('s_mov_b64 exec, -1')

    def fin_stats(self, sws):
        L = []
        for sw in sws:
            L += ['v_mov_b32 v242, v240', 'v_mov_b32 v243, v241', f'v_permlane{sw}_swap_b32 v240, v242', f'v_permlane{sw}_swap_b32 v241, v243',
                  'v_add_f32 v240, v240, v242', 'v_add_f32 v241, v241, v243']
        L += [f'v_mul_f32 v240, {hf(-1/448)}, v240', f'v_mul_f32 v242, {hf(1/448)}, v241', 'v_fma_f32 v242, -v240, v240, v242', 'v_max_f32 v242, 0, v242']
        return L
    def gelu_consts(self, s):
        return [f'v_mul_f32 v244, {hf(K1)}, v{s}', f'v_mul_f32 v245, v{s}, v{s}', f'v_mul_f32 v245, v245, v{s}', f'v_mul_f32 v245, {hf(K2)}, v245', f'v_rcp_f32 v246, v{s}']
    def gelu_pk(self, acc, n, dst, tmp):
        L = []
        ks = range(n)
        for k in ks: L.append(f'v_pk_mul_f32 {vr(tmp+2*k,2)}, {vr(acc+2*k,2)}, {vr(acc+2*k,2)}')
        for k in ks: L.append(f'v_pk_fma_f32 {vr(tmp+2*k,2)}, {vr(tmp+2*k,2)}, v[244:245], v[244:245] op_sel:[0,1,0] op_sel_hi:[1,1,0]')
        for k in ks: L.append(f'v_pk_mul_f32 {vr(tmp+2*k,2)}, {vr(tmp+2*k,2)}, {vr(acc+2*k,2)}')
        for k in range(2*n): L.append(f'v_exp_f32 v{tmp+k}, v{tmp+k}')
        for k in ks: L.append(f'v_pk_fma_f32 {vr(tmp+2*k,2)}, {vr(tmp+2*k,2)}, v[246:247], v[246:247] op_sel_hi:[1,0,0]')
        for k in range(2*n): L.append(f'v_rcp_f32 v{tmp+k}, v{tmp+k}')
        for k in ks: L.append(f'v_pk_mul_f32 {vr(acc+2*k,2)}, {vr(acc+2*k,2)}, {vr(tmp+2*k,2)}')
        for k in ks: L.append(f'v_cvt_pk_bf16_f32 v{dst+k}, v{acc+2*k}, v{acc+2*k+1}')
        return L
    def gelu_sc(self, acc, n, dst, tmp):
        L = []
        ks = range(2*n)
        for k in ks: L.append(f'v_mul_f32 v{tmp+k}, v{acc+k}, v{acc+k}')
        for k in ks: L.append(f'v_fma_f32 v{tmp+k}, v{tmp+k}, v245, v244')
        for k in ks: L.append(f'v_mul_f32 v{tmp+k}, v{tmp+k}, v{acc+k}')
        for k in ks: L.append(f'v_exp_f32 v{tmp+k}, v{tmp+k}')
        for k in ks: L.append(f'v_fma_f32 v{tmp+k}, v{tmp+k}, v246, v246')
        for k in ks: L.append(f'v_rcp_f32 v{tmp+k}, v{tmp+k}')
        for k in ks: L.append(f'v_mul_f32 v{acc+k}, v{acc+k}, v{tmp+k}')
        for k in range(n): L.append(f'v_cvt_pk_bf16_f32 v{dst+k}, v{acc+2*k}, v{acc+2*k+1}')
        return L

    def p2_finish(self):
        work = self.trA(S0, True) + self.bstream(range(8), True, 96) + self.unpack(96, HPK, 8) + self.w4_read(0)
        work += [f's_lshl_b32 {T3}, {RB}, 16', f's_add_u32 {T3}, {T3}, {O_}', f's_lshl_b32 {T2}, {TEAM}, 4']
        self.finish(1, SLOTB, work, self.img9(W1, S1, 'w1'), split=600)

    def p3(self):
        a = self.a
        ACC = 96
        left = self.small_gemm(16, O_, ACC, (1, T2, '0xffff'), self.bstream(range(8, 16), True, 96), 96, bg=self.w4_units(1))
        self.tile_out(ACC, HPK, H_, STH)
        work = self.trA(S1, False) + [f'v_mov_b32 v{88+d}, {ONES}' for d in range(4)] + self.bstream(range(14), False, 144, 0, 14)
        work += S(f'''v_lshrrev_b32 v244, 1, {VA16}
            v_add_u32 v245, 2048, v244
            v_lshrrev_b32 v242, 4, {LANE}
            v_add_u32 v242, 1, v242
            v_lshrrev_b32 v242, 2, v242
            v_lshl_add_u32 v245, v242, 30, v245
            s_lshl_b32 {T6}, {RB}, 12
            s_add_u32 {T6}, {T6}, {STH}
            s_add_u32 {T3}, {RB57}, {H_}
            s_lshl_b32 {T2}, {RB}, 3''')
        self.finish(2, SLOTA, work, left + self.img9(W2, S0, 'w2'), split=600)

    def p4(self):
        a = self.a
        ACC = 96
        pre = [(f'buffer_load_dwordx2 v[240:241], v244, {WS}, {T6} offen sc1', 'sl'), (f'buffer_load_dwordx2 v[242:243], v245, {WS}, {T6} offen sc1', 'sl')]
        post = ['v_add_f32 v240, v240, v242', 'v_add_f32 v241, v241, v243'] + self.fin_stats(['16', '32'])
        post += [f'v_add_f32 v243, {hf(EPS)}, v242', 'v_rsq_f32 v241, v243', 'v_mul_f32 v243, v241, v241', f'v_mov_b32 v247, {hf(EPS)}', 'v_fmac_f32 v247, v243, v242',
                 'v_rsq_f32 v247, v247', 'v_mul_f32 v247, v247, v241'] + self.gelu_consts(247)
        p2_ = self.w4_read(1) + [f's_lshl_b32 {T4}, {CG}, 13', f's_add_u32 {T4}, {T4}, {G_}', f's_add_u32 {T5}, {T4}, 4096']
        p2_ += [f'v_accvgpr_read_b32 v{88+j}, a{244+j}' for j in range(4)] + [f'v_accvgpr_read_b32 v{92+j}, a{240+j}' for j in range(4)]
        left = self.small_gemm(14, H_, ACC, (2, T2, '0x7f'), p2_, 144, pre=pre, bg=self.w4_units(2), cinit=False, fill=post)
        for pp in range(2):
            for k in range(4*pp, 4*pp+4):
                a(f'v_pk_fma_f32 {vr(ACC+2*k,2)}, {vr(RES+2*k,2)}, v[240:241], {vr(ACC+2*k,2)} op_sel_hi:[1,0,1]')
            self.run(self.gelu_pk(ACC + 8*pp, 4, 32 + 4*pp, 48))
            for q in range(4): a(f'v_and_b32 v{32+4*pp+q}, v{88+2*pp+(q>>1)}, v{32+4*pp+q}')
            Lm = a.label('mix'); Le = a.label('mixe')
            so = T5 if pp else T4
            a(f's_cmp_eq_u32 {CG}, {1 if pp else 5}\ns_cbranch_scc1 {Lm}')
            a(f'buffer_store_dwordx4 {vr(32+4*pp,4)}, v{92+2*pp}, {WS}, {so} offen sc1', 'st')
            a(f's_branch {Le}\n{Lm}:')
            a.raw(f'buffer_store_dwordx2 {vr(32+4*pp,2)}, v{92+2*pp}, {WS}, {so} offen sc1')
            a.raw(f'buffer_store_dwordx2 {vr(34+4*pp,2)}, v{93+2*pp}, {WS}, {so} offen offset:2048 sc1')
            a(f'{Le}:')
        work = self.trA(S0, False) + self.bstream(range(8), False, 144) + self.unpack(RES, HPK, 8) + self.w4_read(2)
        for k in range(8):
            work += [f'v_pk_add_f32 {vr(RES+2*k,2)}, {vr(RES+2*k,2)}, v[240:241] op_sel_hi:[1,0]', f'v_pk_mul_f32 {vr(RES+2*k,2)}, {vr(RES+2*k,2)}, v[240:241] op_sel:[0,1] op_sel_hi:[1,1]']
        work += [f'v_lshrrev_b32 v96, 1, {VA16}', f's_add_u32 {T3}, {RB57}, {G_}', f's_lshl_b32 {T2}, {RB}, 3', f's_sub_u32 {T2}, {T2}, 8']
        self.finish(3, SLOTA, work, left + self.img3(0, S1, 'w3a'), split=600)

    AF6, ACC6, CT6 = 32, 144, 208
    def woff(self, i): return (32 * (i >> 1) + 8 * (i & 1)) * 128
    def wread(self, t, i, slot, tag):
        b = 224 + 4 * slot; ar = [6, 7, 4, 5][t]
        return [(f'ds_read_b64_tr_b16 a[{b}:{b+1}], v{ar} offset:{self.woff(i)}', tag), (f'ds_read_b64_tr_b16 a[{b+2}:{b+3}], v{ar} offset:{self.woff(i)+2048}', tag)]
    def colsum6(self, ar, dst, tg):
        L = []
        rd = lambda i: [(f'ds_read_b64_tr_b16 {vr(64+4*(i%8),2)}, v{ar} offset:{self.woff(i)}', f'{tg}{i}'), (f'ds_read_b64_tr_b16 {vr(66+4*(i%8),2)}, v{ar} offset:{self.woff(i)+2048}', f'{tg}{i}')]
        G = []
        for i in range(5): L += rd(i)
        for i in range(28):
            g = [self.W(lg=f'{tg}{i}'), f'v_mfma_f32_32x32x16_bf16 {vr(dst,16)}, {vr(64+4*(i%8),4)}, v[12:15], {vr(dst,16) if i else 0}']
            if i + 5 < 28: g += rd(i + 5)
            G.append(g)
        return L, G

    def p5(self):
        a = self.a
        CT = self.CT6
        left = self.small_gemm(14, G_, RES, (3, T2, '0x7f7f7f', '0x7f00'), self.bstream(range(8, 14), False, 144), 144, split8=(3, 10),
                               mid=[self.W(lg='all'), 's_barrier'], bg=self.img3(1792, S0, 'w3b'))
        self.run(flat(left))
        self.tile_out(RES, 32, X1_, STX)
        work = self.unpack(48, HPK, 8) + [f'v_pk_add_f32 {vr(RES+2*k,2)}, {vr(RES+2*k,2)}, {vr(48+2*k,2)}' for k in range(8)]
        work += self.w4_read(3)[:3]
        u4 = self.w4_units(3)
        self.u4 = u4
        setup4 = [x for x in u4[0] if not (isinstance(x, tuple) or (isinstance(x, str) and x.startswith('s_')))]
        u4[0] = [x for x in u4[0] if x not in setup4]
        work += setup4
        work += S(f"""v_accvgpr_read_b32 v4, {aB0}
            v_xor_b32 v5, 64, v4
            v_add_u32 v6, {S1}, v4
            v_add_u32 v7, {S1}, v5
            s_and_b32 {T5}, {WAVE}, 1
            s_lshl_b32 {T0}, {T5}, 6
            s_lshr_b32 {T4}, {WAVE}, 1
            s_xor_b32 {T1}, {T4}, 1
            s_mul_i32 {T1}, {T1}, {S1}
            v_xor_b32 v8, {T0}, v4
            v_add_u32 v8, {T1}, v8""")
        work += [f'v_mov_b32 v{12+d}, {ONES}' for d in range(4)]
        misc = S(f"""v_lshrrev_b32 v11, 5, {LANE}
            v_lshlrev_b32 v0, 6, v11
            v_add_u32 v0, {CS}, v0
            s_lshl_b32 {T0}, {WAVE}, 7
            v_add_u32 v9, {T0}, v0
            s_lshl_b32 {T0}, {TEAM}, 1
            s_add_u32 {T4}, {T4}, {T0}
            s_lshl_b32 {T5}, {T5}, 9
            s_mul_i32 {T3}, {T4}, 57344
            s_add_u32 {T3}, {T3}, {T5}
            s_add_u32 {T3}, {T3}, {X1_}
            s_lshl_b32 {T6}, {T4}, 12
            s_lshr_b32 {T7}, {T5}, 1
            s_add_u32 {T6}, {T6}, {T7}
            s_add_u32 {T6}, {T6}, {STX}
            s_mul_i32 {T4}, {T4}, {224*1024}
            s_add_u32 {T4}, {T4}, {T5}
            s_lshl_b32 {T1}, {MEM}, 13
            s_add_u32 {T4}, {T4}, {T1}
            s_add_u32 {T4}, {T4}, {U_}
            v_and_b32 v10, 31, {LANE}
            v_lshlrev_b32 v10, 3, v10
            v_lshl_add_u32 v10, v11, 11, v10
            v_lshl_add_u32 v11, v11, 30, v10
            s_lshl_b32 {T2}, {TEAM}, 4""")
        for i in range(4): misc += self.wread(0, i, 2*i, f'w{i}') + self.wread(1, i, 2*i+1, f'w{i}')
        work.append(self.W(lg='all'))
        L, G = self.colsum6(8, CT, 'c')
        post = L + self.zipper(G, misc)
        post += ['s_mov_b32 exec_lo, 1', 's_mov_b32 exec_hi, 1'] + [(f'ds_write_b128 v9, {vr(CT+4*q,4)} offset:{16*q}', 'cs') for q in range(4)]
        post += ['s_mov_b64 exec, -1', self.W(lg='cs')]
        self.finish(4, SLOTA, work, [], split=10000, post=post)

    def p6(self):
        a = self.a
        AF, ACC, CT, PK = self.AF6, self.ACC6, self.CT6, 8
        self.poll(4, T2, '0x7f7f')
        for q in range(4):
            a(f'buffer_load_dwordx2 {vr(240+2*q,2)}, v{10 if q < 3 else 11}, {WS}, {T6} offen offset:{512*q} sc1', 'sl')
        def aload(i):
            u = [f's_add_u32 {T3}, {T3}, 4096'] if i and i % 2 == 0 else []
            return u + [(f'buffer_load_dwordx4 {vr(AF+4*i,4)}, {V32}, {WS}, {T3} offen offset:{(i&1)*2048} sc1', f'a{i}')]
        U = [aload(i) for i in range(28)]
        M = [(f'ds_read_b128 {vr(ACC+16*t+4*q,4)}, v0 offset:{t*128+16*q}', 'ct') for t in range(4) for q in range(4)]
        L, left = weave(M, U[:6], gap=40)
        self.run(L); self.run(flat(left)); U = U[6:]
        M = [self.W(vm='sl', lg='ct'), 'v_pk_add_f32 v[240:241], v[240:241], v[242:243]', 'v_pk_add_f32 v[244:245], v[244:245], v[246:247]', 'v_pk_add_f32 v[240:241], v[240:241], v[244:245]']
        M += self.fin_stats(['32'])
        M += [f'v_pk_mul_f32 {vr(ACC+2*k,2)}, {vr(ACC+2*k,2)}, v[240:241] op_sel_hi:[1,0]' for k in range(16)]
        PRE = self.opt.get('p6pre', 5)
        L, left = weave(M, U[:PRE], gap=40)
        self.run(L); self.run(flat(left))
        U = U[PRE:] + self.u4
        self.stamp('init')
        p2 = [(2, i) for i in range(28)] + [(3, i) for i in range(28)]
        fill = [f'v_add_f32 v243, {hf(EPS)}, v242', 'v_rsq_f32 v247, v243'] + self.gelu_consts(247) + [f'v_mul_f32 v{ACC+32+k}, v{ACC+32+k}, v240' for k in range(32)]
        for i in range(28):
            a.wait(vm=f'a{i}', lg=f'w{i}')
            sl = 2 * (i % 4)
            for t in range(2):
                a(f'v_mfma_f32_32x32x16_bf16 {vr(ACC+16*t,16)}, a[{224+4*(sl+t)}:{227+4*(sl+t)}], {vr(AF+4*i,4)}, {vr(ACC+16*t,16)}')
                if i + 4 < 28: self.run(self.wread(t, i + 4, sl + t, f'w{i+4}'))
                else:
                    n = 2 * (i - 24) + t
                    self.run(self.wread(p2[n][0], p2[n][1], n % 8, f'y{n}'))
                if t == 0 and U: self.run(U.pop(0))
                if t == 1: self.run(fill[:2]); fill = fill[2:]
        assert not U and not fill
        self.stamp('pass1')
        def half(t, p, f):
            L = [f's_add_u32 {T0}, {T4}, {(t>>1)*114688 + (t&1)*4096}'] if p == 0 else []
            return L + f(ACC + 16*t + 8*p, 4, PK + 4*p, CT) + [(f'buffer_store_dwordx4 {vr(PK+4*p,4)}, {V32}, {WS}, {T0} offen offset:{p*2048} sc1', 'st')]
        for t in range(2):
            for p in range(2): self.run(half(t, p, self.gelu_pk))
        self.stamp('early')
        mm = []
        for n, (t, i) in enumerate(p2):
            b = 224 + 4 * (n % 8)
            g = [self.W(lg=f'y{n+1}')] if n % 2 == 0 else []
            g += [f'v_mfma_f32_32x32x16_bf16 {vr(ACC+16*t,16)}, a[{b}:{b+3}], {vr(AF+4*i,4)}, {vr(ACC+16*t,16)}']
            if n + 8 < 56: g += self.wread(p2[n+8][0], p2[n+8][1], n % 8, f'y{n+8}')
            mm.append(g)
        r3 = self.w4_read(3)[3:]
        u5 = self.w4_units(4)
        u5[0] = [x for x in u5[0] if not (isinstance(x, str) and x.startswith('v_'))]
        for k in range(16): mm[k] += ([r3[0]] if k == 0 else []) + [r3[1+k]]
        mm[17] += [f's_lshl_b32 {T2}, {TEAM}, 4', f'v_add_u32 v254, {T2}, {LANE}', 'v_lshlrev_b32 v254, 8, v254']
        EF = self.opt.get('p6ef', 22)
        mm[EF] += [self.W(vm='st'), 's_barrier', self.flag(5, SLOTB)]
        for k in range(12): mm[EF + 2 + 2*k] += u5[k]
        self.run(flat(mm[:30]))
        self.run(self.zipper(mm[30:], half(2, 0, self.gelu_sc)))
        self.stamp('pass2')
        self.run(half(2, 1, self.gelu_pk))
        self.run(half(3, 0, self.gelu_pk))
        self.run(self.wpoll_issue(5, '0x3fff'))
        self.run(half(3, 1, self.gelu_pk))
        self.stamp('st')
        RP = 16 * 1040
        work = self.w4_read(4)[3:]
        work += S(f'''v_lshrrev_b32 v250, 4, {LANE}
            v_mul_u32_u24 v250, 1040, v250
            v_and_b32 v251, 15, {LANE}
            v_lshl_add_u32 v250, v251, 4, v250
            s_lshl_b32 {T0}, {WAVE}, 8
            s_add_u32 {T0}, {T0}, {4*RP}
            v_add_u32 v250, {T0}, v250''')
        work += [(f'ds_write_b128 v250, {vr(RES+4*j,4)} offset:{4*j*1040}', 'rs') for j in range(4)]
        work += S(f'''v_lshrrev_b32 v4, 5, {LANE}
            v_mul_u32_u24 v4, 1040, v4
            v_and_b32 v251, 31, {LANE}
            v_lshl_add_u32 v4, v251, 4, v4
            s_mul_i32 {T1}, {WAVE}, {RP}
            v_add_u32 v4, {T1}, v4
            v_and_b32 v251, 7, {LANE}
            v_mul_u32_u24 v5, 2080, v251
            v_lshrrev_b32 v7, 3, {LANE}
            v_lshl_add_u32 v5, v7, 4, v5
            s_lshl_b32 {T1}, {WAVE}, 7
            v_add_u32 v5, {T1}, v5
            v_add_u32 v6, {3*RP}, v5
            v_mul_u32_u24 v7, 896, v7
            v_lshl_add_u32 v7, v251, 4, v7
            s_mul_i32 {T6}, {RB}, {224*1024}
            s_mul_i32 {T1}, {WAVE}, 28672
            s_add_u32 {T6}, {T6}, {T1}
            s_add_u32 {T6}, {T6}, {U_}
            s_lshl_b32 {T4}, {RB}, 3
            s_add_u32 {T4}, {T4}, {WAVE}
            s_mul_i32 {T4}, {T4}, {8*896}
            s_lshl_b32 {T5}, {CG}, 7
            s_add_u32 {T4}, {T4}, {T5}
            s_add_u32 {T5}, {T4}, {32*896}
            s_lshl_b32 {T2}, {TEAM}, 4''')
        self.p7work = work

    def p7(self):
        a = self.a
        ACC, AF, NS, R = 32, 144, 24, 96
        RP = 16 * 1040
        seq = [(tm, 14*hf_ + k) for hf_ in range(2) for tm in range(2) for k in range(14)]
        def aload(n):
            tm, i = seq[n]
            u = []
            if n % 14 == 0: u.append(f's_add_u32 {T3}, {T6}, {512*tm + (114688 if i >= 14 else 0)}')
            elif i % 2 == 0: u.append(f's_add_u32 {T3}, {T3}, 4096')
            return u + [(f'buffer_load_dwordx4 {vr(AF+4*(n%NS),4)}, {V32}, {WS}, {T3} offen offset:{(i&1)*2048} sc1', f'a{n}')]
        def wr(tm): return [(f'ds_write_b128 v4, {vr(ACC+16*(2*tm+tn)+4*q,4)} offset:{(8*tn+2*q)*1040 + tm*512}', 'rd') for tn in range(2) for q in range(4)]
        def rd(tm):
            return [(f'ds_read_b128 {vr(R+(e*5+w)*4,4)}, {"v5" if w < 3 else "v6"} offset:{(w%3)*RP + e*1040 + tm*512}', 'rr') for e in range(2) for w in range(5)]
        def fin(tm, pk):
            L = []
            for e in range(2):
                b = R + e*20
                if pk:
                    for x, y in ((0, 4), (8, 12), (0, 16), (0, 8)):
                        L += [f'v_pk_add_f32 {vr(b+x+2*hh,2)}, {vr(b+x+2*hh,2)}, {vr(b+y+2*hh,2)}' for hh in range(2)]
                else:
                    for x, y in ((0, 4), (8, 12), (0, 16), (0, 8)):
                        L += [f'v_add_f32 v{b+x+d}, v{b+x+d}, v{b+y+d}' for d in range(4)]
                L += [f'v_cvt_pk_bf16_f32 v{8+4*tm+2*e+hh}, v{b+2*hh}, v{b+2*hh+1}' for hh in range(2)]
            L.append((f'buffer_store_dwordx4 {vr(8+4*tm,4)}, v7, {OUT}, {T5 if tm else T4} offen sc1', 'st'))
            return L
        PRE = self.opt.get('p7pre', 11)
        work = self.p7work
        k = next(i for i, x in enumerate(work) if isinstance(x, str) and x.startswith(f's_mul_i32 {T6}'))
        self.run(work[k:k+4]); work = work[:k] + work[k+4:]
        self.run([self.wpoll_check('0x3fff')])
        self.stamp('zpoll')
        L, left = weave(['s_barrier'] + work, [aload(n) for n in range(PRE)], gap=40)
        self.run(L); self.run(flat(left))
        a.wait(vm='st')
        a('s_barrier')
        self.flag(6, SLOTB)()
        a.wait(lg='all')
        self.stamp('zgo')
        side = {}
        w0 = wr(0); r0 = rd(0); f0 = [self.W(lg='rr')] + fin(0, False)
        for k in range(4): side[43 + k] = w0[2*k:2*k+2]
        side[48] = [self.W(lg='rd'), 's_barrier'] + r0[:5]
        side[49] = r0[5:]
        for k in range(5): side[51 + k] = f0[(len(f0)*k)//5:(len(f0)*(k+1))//5]
        PI, PC = self.opt.get('p7pi', 13), self.opt.get('p7pc', 22)
        nxt = PRE
        for n in range(56):
            tm, i = seq[n]
            a.wait(vm=f'a{n}')
            for tn in range(2):
                b = (i * 2 + tn) * 4; c = ACC + 16 * (2*tm + tn)
                a(f'v_mfma_f32_32x32x16_bf16 {vr(c,16)}, a[{b}:{b+3}], {vr(AF+4*(n%NS),4)}, {vr(c,16) if i else 0}')
                if n == PI and tn == 0: self.run(self.wpoll_issue(6, '0x3fff'))
                if n == PC and tn == 0: self.run([self.wpoll_check('0x3fff'), self.ST('zlate')])
                lim = 56 if n >= PC else 28
                if nxt < min(lim, n + PRE + 1) : self.run(aload(nxt)); nxt += 1
            self.run(side.get(n, []))
        self.stamp('mm')
        self.run(wr(1))
        a.wait(lg='all')
        a('s_barrier')
        self.run(rd(1))
        a.wait(lg='all')
        self.run(fin(1, True))
        self.stamp('zdone')

    def pf(self, srd, start, nbytes, parts, idx, rot=True, fl='', stride=1):
        a = self.a
        per = -(-nbytes // parts // (128*stride)) * 128*stride
        n = -(-per // (32768*stride))
        a(f's_mul_i32 {T0}, {idx}, {per}\ns_add_u32 {T0}, {T0}, {start}')
        if rot and n > 1:
            a(f's_lshr_b32 {T1}, {TEAM}, 1\ns_mul_i32 {T1}, {T1}, {n}\ns_lshr_b32 {T1}, {T1}, 3')
        else:
            a(f's_mov_b32 {T1}, 0')
        a(f's_mov_b32 {T3}, {n}')
        L = a.label('pf')
        a(f'{L}:')
        lg = stride.bit_length() - 1
        a(f's_lshl_b32 {T2}, {T1}, {15+lg}\nv_lshl_add_u32 v41, v40, {lg}, {T2}\nv_cmp_gt_u32 vcc, {per}, v41')
        a(f's_add_u32 {T1}, {T1}, 1\ns_cmp_ge_u32 {T1}, {n}\ns_cselect_b32 {T1}, 0, {T1}')
        a(f'v_cndmask_b32 v41, v42, v41, vcc')
        a.raw(f'buffer_load_dword v43, v41, {srd}, {T0} offen {fl}')
        a(f's_sub_u32 {T3}, {T3}, 1\ns_cmp_lg_u32 {T3}, 0\ns_cbranch_scc1 {L}')

    def helper_setup(self):
        a = self.a
        a(f'v_lshl_add_u32 v40, {WAVE}, 6, {LANE}\nv_lshlrev_b32 v40, 7, v40\nv_mov_b32 v42, {OOB}')
        a(f's_lshl_b32 {T5}, {TEAM}, 1\ns_add_u32 {T5}, {T5}, {MEM}\ns_sub_u32 {T5}, {T5}, 14\ns_and_b32 {T4}, {T5}, 3')
    def pf_w4(self, j0, j1):
        self.a(f's_mul_i32 {T6}, {T4}, {224*896}\ns_add_u32 {T6}, {T6}, {self.w4row(j0)*896}')
        self.pf(W4, T6, (j1 - j0)*32*896, 1, 0)
    def pf_w3(self, half):
        a = self.a
        a(f'v_lshrrev_b32 v41, 11, v40\nv_mul_u32_u24 v41, 3584, v41\nv_and_b32 v44, 0x780, v40\nv_add_u32 v41, v41, v44\nv_cmp_gt_u32 vcc, 0x700, v44')
        a(f's_mul_i32 {T0}, {T4}, {112*3584}\ns_add_u32 {T0}, {T0}, {1792*half}\nv_cndmask_b32 v41, v42, v41, vcc')
        for k in range(7):
            a.raw(f'buffer_load_dword v43, v41, {W3}, {T0} offen')
            a(f's_add_u32 {T0}, {T0}, {16*3584}')

    def helper_head(self):
        a = self.a
        pf = self.opt.get('pf', 1)
        self.run(self.late_loads())
        self.run(self.setup1())
        self.helper_setup()
        a.raw('s_waitcnt lgkmcnt(0)')
        if pf:
            self.pf(WO, 0, 448*896, 32, T5, rot=False)
            self.pf(WS, FLAGS, 7*65536, 32, T5, rot=False, fl='sc1', stride=2)
            self.pf(W4, 0, 1792*896, 32, T5, rot=False)
            self.pf(W1, 0, 448*896, 32, T5, rot=False)
            self.pf(W2, 0, 448*896, 32, T5, rot=False)
            self.pf(W3, 0, 448*3584, 32, T5, rot=False)
        self.run(self.p2_setup())
        self.run(self.get_tag())
        if self.opt.get('hsl', 0): a(f's_sleep {self.opt["hsl"]}')
        self.stamp('c')

    def helper_tail(self):
        a = self.a
        self.finish(1, SLOTB)
        self.helper_setup()
        if self.opt.get('pf', 1):
            if self.opt.get('pfg', 1): self.pf(WS, G_, 32*57344, 32, T5, rot=False, fl='sc1')
            self.pf_w4(6, 7); self.pf_w4(7, 9)
            self.stamp('d')
            self.pf_w3(0)
            self.stamp('e')
            self.pf_w3(1)
            self.stamp('f')
            self.pf_w4(9, 14)
            a.raw('s_waitcnt vmcnt(0)')
            self.stamp('g')
        a(f's_cmp_lg_u32 {SLOTB}, 15\ns_cbranch_scc1 L_fin')
        for q in range(4):
            a(f's_mov_b32 {T2}, {64*q}')
            self.poll(1, T2, '-1')
        a(f's_cmp_lg_u32 {WAVE}, 0\ns_cbranch_scc1 L_fin')
        a(f'v_mov_b32 v254, {TAG}\nv_mov_b32 v255, 0\ns_mov_b64 exec, 1')
        a.raw(f'buffer_store_dword v254, v255, {WS}, 0 offen sc1')
        a('s_mov_b64 exec, -1')
        a('s_branch L_fin')

    def build(self):
        a = self.a
        self.prologue()
        a('s_cbranch_scc0 L_p1')
        if self.opt.get('pf', 1):
            a(f's_lshl_b32 s68, {TEAM}, 1\ns_add_u32 s68, s68, {MEM}\ns_sub_u32 s68, s68, 14\ns_mul_i32 s68, s68, {294*128}')
            a.raw(f'buffer_load_dword v43, v40, {WQ}, s68 offen')
            a(f's_add_u32 s68, s68, {256*128}\nv_cmp_gt_u32 vcc, {38*128}, v40\ns_and_saveexec_b64 s[58:59], vcc\ns_cbranch_execz L_hx')
            a.raw(f'buffer_load_dword v43, v40, {WQ}, s68 offen')
            a('L_hx:\ns_mov_b64 exec, -1')
        a('s_branch L_hh')
        a('L_p1:')
        self.ph = 'p1'
        self.p1()
        a('L_att:')
        self.ph = 'p2'
        self.p2()
        a(f's_cmp_lt_u32 {MEM}, 14\ns_cbranch_scc1 L_p3')
        st = (list(a.vm), list(a.lg))
        self.ph = 'hh'
        self.helper_tail()
        a('L_hh:')
        a.vm, a.lg = [], []
        self.helper_head()
        a('s_branch L_att')
        a('L_p3:')
        a.vm, a.lg = st
        self.ph = 'p2'
        self.p2_finish()
        for n, f in enumerate((self.p3, self.p4, self.p5, self.p6, self.p7)):
            self.ph = f'p{n+3}'
            f()
        a('L_fin:')
        if self.stamps:
            a.raw('s_waitcnt vmcnt(0)')
            a('s_memrealtime s[60:61]\ns_memtime s[62:63]')
            a.raw('s_waitcnt lgkmcnt(0)')
            a(f's_cmp_lg_u32 {WAVE}, 0\ns_cbranch_scc1 L_end')
            a(f's_lshl_b32 {T0}, s2, 8\ns_add_u32 {T0}, {T0}, {STAMPS}\ns_mov_b64 exec, 1\nv_mov_b32 v255, 0')
            for i in range(self.nstamp):
                a(f'v_mov_b32 v254, s{100-2*i}')
                a.raw(f'buffer_store_dword v254, v255, {WS}, {T0} offen offset:{4*i}')
            for i, r in enumerate(('s101', 's60', 's62')):
                a(f'v_mov_b32 v254, {r}')
                a.raw(f'buffer_store_dword v254, v255, {WS}, {T0} offen offset:{240+4*i}')
        a('L_end:')
        a('s_endpgm')
        hdr = open('cdna_kernels/' + NAME + '.s.ref').read().split('; Override')[0]
        hdr += '; Generated by a hand-written generator script (persistent fused kernel, one workgroup per CU).\n'
        hdr += '; @launch grid=(256,1,1) block=(256,1,1) lds=163840\n'
        hdr += f'.amdgcn_target "amdgcn-amd-amdhsa--gfx950"\n.text\n.globl {NAME}_kernel\n.p2align 8\n.type {NAME}_kernel,@function\n{NAME}_kernel:\n'
        kd = f"""
.section .rodata,"a"
.p2align 6
.amdhsa_kernel {NAME}_kernel
  .amdhsa_next_free_vgpr 512
  .amdhsa_next_free_sgpr 102
  .amdhsa_accum_offset 256
  .amdhsa_group_segment_fixed_size 0
  .amdhsa_kernarg_size 88
  .amdhsa_user_sgpr_count 2
  .amdhsa_user_sgpr_kernarg_segment_ptr 1
  .amdhsa_system_sgpr_workgroup_id_x 1
.end_amdhsa_kernel
"""
        return hdr + a.text() + kd

if __name__ == '__main__':
    import argparse
    ap = argparse.ArgumentParser()
    ap.add_argument('-o', default='cdna_kernels/' + NAME + '.s')
    ap.add_argument('--stamps', default='')
    ap.add_argument('opts', nargs='*')
    args = ap.parse_args()
    g = Gen()
    g.stamps = bool(args.stamps)
    g.sel = args.stamps.split(',') if args.stamps != 'z' else [f'p{i}.z' for i in range(8)]
    g.opt = {k: int(v) for k, v in (o.split('=') for o in args.opts)}
    txt = g.build()
    open(args.o, 'w').write(txt)
    if args.stamps: open(args.o + '.stamps', 'w').write('\n'.join(g.stamp_names))
    print('instructions', len(g.a.ins), 'auto nops', g.a.nops, file=sys.stderr)
```

```python
import sys, struct, math
sys.path.insert(0, 'gen')
from asm import Asm, vr

NAME = 'sequential_preLN__sliding_block__mixer_s_mlp__prompt'
def f2u(x): return struct.unpack('<I', struct.pack('<f', x))[0]
def hx(x): return '0x%08x' % (x & 0xffffffff)
def hf(x): return hx(f2u(x))

FLAGS = 0x10000
QKV, O_, H_, G_, X1_, U_ = 0x100000, 0x700000, 0x900000, 0xB00000, 0x900000, 0xF00000
STH, STX = 0x80000, 0x80000
STAMPS = 0x2000000
OOB = 0x40000000
S0, S1, S2 = 0, 57344, 114688
KP = 3104
KB, VB = S1, S1 + 8 * KP
CS = S2 + 49152 - 1024
XP = 912
WSL = 64 * XP
RSD = WSL + 12 * 8192
WS, XS, WQ, WO, W1, W2, W3, W4, OUT = 's[4:7]', 's[8:11]', 's[12:15]', 's[16:19]', 's[20:23]', 's[24:27]', 's[28:31]', 's[32:35]', 's[36:39]'
TEAM, MEM, RB, CG, WAVE, TAG, RH, SLOTA, SLOTB = 's40', 's41', 's42', 's43', 's44', 's45', 's46', 's47', 's3'
ONES, LO1, HI1, FL0 = 's48', 's49', 's50', 's51'
T0, T1, T2, T3, T4, T5, T6, T7 = 's52', 's53', 's54', 's55', 's56', 's57', 's58', 's59'
D0, D1 = 's64', 's65'
FAST, XCC, PC0, PC1 = 's60', 's61', 's62', 's63'
FSC = S1 + 16 * KP
WV14, WV12, IMG9, W4O, IMG3, TB16, STO, RB57 = 's66', 's67', 's68', 's69', 's70', 's71', 's72', 's73'
NSTAMP = 14
VO = 248
aA0, aB0, aVA, aVB, aVC = 'a248', 'a249', 'a250', 'a251', 'a252'
NBIG = f2u(-1e30)
EPS = 1e-5
QSCALE = (28 ** -0.5) * math.log2(math.e)
K1 = -2 * math.sqrt(2 / math.pi) * math.log2(math.e)
K2 = K1 * 0.044715
LANE, VA16, V32 = 'v1', 'v2', 'v3'
HPK = 8
RES = 16

def S(text): return [l.strip() for l in text.split('\n') if l.strip()]
def flat(G): return [x for g in G for x in g]
def cost(it):
    if callable(it): return 4
    t = it[0] if isinstance(it, tuple) else it
    if '\n' in t: return sum(cost(x) for x in t.split('\n'))
    if t.startswith('v_mfma'): return 18 if '32x32' in t else 6
    if t.startswith(('v_exp', 'v_rcp', 'v_rsq')): return 8
    if t.startswith('ds_read_b128'): return 16
    if t.startswith('ds_write_b128'): return 28
    if t.startswith('ds_'): return 8
    if t.startswith('buffer_'): return 22
    return 4.5
def weave(main, units, gap=64, first=0):
    out = []; acc = gap - first; units = list(units)
    for it in main:
        if units and acc >= gap:
            u = units.pop(0); out += u; acc = sum(cost(x) for x in u)
        out.append(it); acc += cost(it)
    return out, units

class Gen:
    def __init__(self):
        self.a = Asm()
        self.stamps = False
        self.nstamp = 0
        self.stamp_names = []
        self.ph = 'p0'
        self.sel = []
        self.opt = {}

    def stamp(self, name):
        name = self.ph + '.' + name
        if not self.stamps: return
        if name != 'p0.start' and not any(name.startswith(p) for p in self.sel): return
        i = self.nstamp; self.nstamp += 1
        assert i < NSTAMP
        self.stamp_names.append(name)
        self.a(f's_memtime s[{100-2*i}:{101-2*i}]')
    def ST(self, name): return lambda: self.stamp(name)

    def run(self, items):
        for it in items:
            if callable(it): it()
            elif isinstance(it, tuple): self.a(it[0], it[1])
            else: self.a(it)

    def zipper(self, main, fill):
        n = len(main); out = []; k = 0
        for i, g in enumerate(main):
            out += g
            upto = (len(fill) * (i + 1)) // n
            out += fill[k:upto]; k = upto
        return out

    def W(self, vm=None, lg=None): return lambda: self.a.wait(vm=vm, lg=lg)

    def WR(self, rnd):
        def f():
            assert self.a.cnt.get('w4r', 0) == 8 * sum(len(t) for t in self.W4R[:rnd]), ('w4r', rnd, self.a.cnt.get('w4r', 0))
            self.a.wait(lg='w4r')
        return f
    def WN(self, tag, n, lg=None):
        def f():
            assert self.a.cnt.get(tag, 0) == n, (tag, self.a.cnt.get(tag, 0), n)
            self.a.wait(vm=tag, lg=lg)
        return f

    def finish(self, phase, slot, work=[], units=[], split=800, post=[], fast=False):
        a = self.a
        self.stamp('st')
        if work or units:
            a.wait(lg='all')
            a('s_barrier')
        L, left = weave(work, units)
        L += flat(left)
        acc = 0; cut = len(L); nd = 0
        for i, it in enumerate(L):
            t = it[0] if isinstance(it, tuple) else (it if isinstance(it, str) else '')
            if t.startswith('buffer_load'): nd += 1
            acc += cost(it)
            if acc >= split or nd > 9: cut = i; break
        self.run(L[:cut])
        self.stamp('bg1')
        a(f's_lshl_b32 {FL0}, {slot}, 8\ns_add_u32 {FL0}, {FL0}, {FLAGS + phase * 65536}')
        a(f'v_mov_b32 v254, {TAG}\nv_lshlrev_b32 v255, 2, {LANE}')
        if phase == 0: a(f'v_or_b32 v254, {XCC}, v254')
        a.wait(vm='st', lg=(None if (work or units) else 'all'))
        self.stamp('drain')
        a('s_barrier')
        self.stamp('zflag')
        Lb = a.label('sig')
        a(f's_cmp_lg_u32 {WAVE}, 0\ns_cbranch_scc1 {Lb}')
        a('s_mov_b32 exec_hi, 0')
        if fast: self.fstore([f'buffer_store_dword v254, v255, {WS}, {FL0} offen'], None)
        else: a.raw(f'buffer_store_dword v254, v255, {WS}, {FL0} offen sc1')
        a('s_mov_b32 exec_hi, -1')
        a(f'{Lb}:')
        self.run(L[cut:])
        self.run(post)
        self.stamp('bg2')

    def fstore(self, stores, tag='st'):
        a = self.a
        if not self.opt.get('fast', 1):
            for t in stores: (a(t + ' sc1', tag) if tag else a.raw(t + ' sc1'))
            return
        Lf = a.label('fs'); Le = a.label('fe')
        a(f's_cmp_lg_u32 {FAST}, 0\ns_cbranch_scc0 {Lf}')
        for t in stores: (a(t, tag) if tag else a.raw(t))
        a(f's_branch {Le}\n{Lf}:')
        for t in stores: a.raw(t + ' sc1')
        a(f'{Le}:')

    def flag(self, phase, slot):
        def f():
            a = self.a
            Lb = a.label('sig')
            a(f's_cmp_lg_u32 {WAVE}, 0\ns_cbranch_scc1 {Lb}')
            a(f's_lshl_b32 {FL0}, {slot}, 8\ns_add_u32 {FL0}, {FL0}, {FLAGS + phase * 65536}')
            a(f'v_mov_b32 v242, {TAG}\nv_lshlrev_b32 v243, 2, {LANE}\ns_mov_b32 exec_hi, 0')
            a.raw(f'buffer_store_dword v242, v243, {WS}, {FL0} offen sc1')
            a('s_mov_b32 exec_hi, -1')
            a(f'{Lb}:')
        return f
    def wpoll_issue(self, phase, mask):
        return [f's_mov_b32 {PC1}, {FLAGS + phase * 65536}', f's_mov_b64 exec, {mask}', (f'buffer_load_dword v255, v254, {WS}, {PC1} offen sc1', 'pl'), 's_mov_b64 exec, -1']
    def wpoll_check(self, mask):
        def f():
            a = self.a
            P = a.label('wp'); K = a.label('wpok')
            a(f's_mov_b32 {PC0}, 300000\ns_mov_b64 exec, {mask}')
            a.wait(vm='pl')
            a(f'{P}:')
            a(f'v_cmp_ne_u32 vcc, {TAG}, v255\ns_sub_u32 {PC0}, {PC0}, 1\ns_cbranch_vccz {K}')
            a.raw(f'buffer_load_dword v255, v254, {WS}, {PC1} offen sc1')
            a.raw('s_waitcnt vmcnt(0)')
            a(f's_cmp_gt_i32 {PC0}, 0\ns_cbranch_scc1 {P}')
            a(f'{K}:')
            a('s_mov_b64 exec, -1')
        return f

    def hop(self, phase, slot, work, units, base, mask, after=[], t=(380, 800, 1100)):
        a = self.a
        self.stamp('st')
        if units:
            a.wait(lg='all')
            a('s_barrier')
        L, left = weave(work, units)
        L += flat(left)
        acc = [0]
        def upto(lim):
            while L and acc[0] < lim:
                it = L.pop(0); acc[0] += cost(it); self.run([it])
        upto(t[0] if not after else 1e9)
        acc[0] = max(acc[0], t[0])
        L += after
        a(f's_lshl_b32 {FL0}, {slot}, 8\ns_add_u32 {FL0}, {FL0}, {FLAGS + phase * 65536}')
        a(f'v_mov_b32 v254, {TAG}\nv_lshlrev_b32 v255, 2, {LANE}')
        a.wait(vm='st')
        self.stamp('drain')
        a('s_barrier')
        self.stamp('zflag')
        Lb = a.label('sig')
        a(f's_cmp_lg_u32 {WAVE}, 0\ns_cbranch_scc1 {Lb}')
        a('s_mov_b32 exec_hi, 0')
        self.fstore([f'buffer_store_dword v254, v255, {WS}, {FL0} offen'], None)
        a('s_mov_b32 exec_hi, -1')
        a(f'{Lb}:')
        upto(t[1])
        a(f's_lshl_b32 {PC0}, {base[0]}, {base[1]}\nv_add_lshl_u32 v254, {PC0}, {LANE}, 8')
        self.run(self.wpoll_issue(phase, mask))
        upto(t[2])
        self.stamp('chk')
        self.run([self.wpoll_check(mask)])
        self.stamp('zpoll')
        return L

    def poll(self, phase, base, mask, first=None):
        a = self.a
        self.stamp('prepoll')
        L = a.label('pskip'); P = a.label('poll'); K = a.label('pok')
        a(f's_cmp_lg_u32 {WAVE}, 0\ns_cbranch_scc1 {L}')
        a(f'v_add_u32 v254, {base}, {LANE}\nv_and_b32 v254, 255, v254\nv_lshlrev_b32 v254, 8, v254')
        a(f's_mov_b32 {T0}, {FLAGS + phase * 65536}\ns_mov_b32 {T1}, 300000')
        if self.opt.get(f'dl{phase}', 0): a(f's_sleep {self.opt[f"dl{phase}"]}')
        for m in ([first] if first else []) + [mask]:
            P = a.label('poll'); K = a.label('pok')
            if phase == 0 and m is first: a(f's_cmp_lt_u32 {MEM}, 14\ns_cbranch_scc1 {K}')
            if isinstance(m, tuple): a(f's_mov_b32 exec_lo, {m[0]}\ns_mov_b32 exec_hi, {m[1]}')
            else: a(f's_mov_b64 exec, {m}')
            a(f'{P}:')
            a.raw(f'buffer_load_dword v255, v254, {WS}, {T0} offen sc1')
            a.raw('s_waitcnt vmcnt(0)')
            if phase == 0: a(f'v_xor_b32 v255, {TAG}, v255\nv_cmp_lt_u32 vcc, 15, v255')
            else: a(f'v_cmp_ne_u32 vcc, {TAG}, v255')
            a(f's_sub_u32 {T1}, {T1}, 1')
            a(f's_cbranch_vccz {K}')
            if self.opt.get(f'sl{phase}', 0): a(f's_sleep {self.opt[f"sl{phase}"]}')
            a(f's_cmp_gt_i32 {T1}, 0\ns_cbranch_scc1 {P}')
            a(f'{K}:')
        if phase == 0 and first:
            a(f's_mov_b32 exec_lo, 0\nv_cmp_ne_u32 vcc, {XCC}, v255\nv_mov_b32 v253, {FSC}\ns_cmp_eq_u64 vcc, 0\ns_cselect_b32 {FAST}, 1, 0\nv_mov_b32 v252, {FAST}')
            a.raw('ds_write_b32 v253, v252')
            a.raw('s_waitcnt lgkmcnt(0)')
        a('s_mov_b64 exec, -1')
        a(f'{L}:')
        a('s_barrier')
        self.stamp('zpoll')

    def voff_calc(self, v, pitch, typ):
        L = [f'v_lshrrev_b32 v252, 3, {LANE}', f'v_mul_u32_u24 {v}, {pitch}, v252']
        if typ == 'A': L += [f'v_lshrrev_b32 v252, 4, {LANE}', 'v_lshlrev_b32 v252, 1, v252']
        else: L += [f'v_bfe_u32 v252, {LANE}, 4, 1', 'v_lshlrev_b32 v252, 2, v252']
        L += [f'v_and_b32 v253, 7, {LANE}', 'v_xor_b32 v252, v252, v253', f'v_lshl_add_u32 {v}, v252, 4, {v}']
        return L
    def dma_units(self, srd, pitch, stash, src, srcadd, dst, dstadd, n, tag, pre=[]):
        if not isinstance(srcadd, list): srcadd = [srcadd + g*32*pitch for g in range((n + 3)//4)]
        U = []
        for i in range(n):
            u = []
            if i == 0:
                u += pre + [f'v_accvgpr_read_b32 v{VO}, {stash}']
                u += [f'v_add_u32 v{VO+k}, {k*(8*pitch-1024)}, v{VO}' for k in range(1, 4)]
            if i % 4 == 0:
                u.append(f's_add_u32 m0, {dst}, {dstadd + i*1024}')
                u.append(f's_add_u32 {D0}, {src}, {srcadd[i//4]}')
            u.append((f'buffer_load_dwordx4 v{VO+(i&3)}, {srd}, {D0} offen offset:{(i&3)*1024} lds', tag))
            U.append(u)
        return U
    def img9(self, srd, base, tag): return self.dma_units(srd, 896, aVA, IMG9, 0, WV14, base, 14, tag)
    def img3(self, col, base, tag): return self.dma_units(W3, 3584, aVC, IMG3, col, WV14, base, 14, tag)
    W4R = [(0, 1, 2), (3, 4, 5), (6, 7, 8), (9, 10), (11, 12, 13)]
    def w4_units(self, rnd):
        t = self.W4R[rnd]
        return self.dma_units(W4, 896, aVB, W4O, [self.w4row(j)*896 for j in t], WV12, 0, 4*len(t), f'w4_{rnd}', pre=[self.WR(rnd)])
    def w4row(self, j): return 32*j if j < 7 else 896 + 32*(j - 7)
    def w4_read(self, rnd):
        L = [f'v_accvgpr_read_b32 v253, {aB0}', f'v_add_u32 v253, {WV12}, v253', 'v_xor_b32 v252, 64, v253', self.WN(f'w4_{rnd}', 4*len(self.W4R[rnd]))]
        for n, t in enumerate(self.W4R[rnd]):
            for p in range(2):
                for tn in range(2):
                    b = ((2*t + p) * 2 + tn) * 4
                    off = n*4096 + p*2048
                    L.append((f'ds_read_b64_tr_b16 a[{b}:{b+1}], v{253-tn} offset:{off}', 'w4r'))
                    L.append((f'ds_read_b64_tr_b16 a[{b+2}:{b+3}], v{253-tn} offset:{off+1024}', 'w4r'))
        return L

    def prologue(self):
        a = self.a
        a('s_load_dwordx2 s[8:9], s[0:1], 0\ns_load_dwordx2 s[12:13], s[0:1], 8\ns_load_dwordx2 s[4:5], s[0:1], 80')
        a('s_cmp_ge_u32 s2, 256\ns_cbranch_scc1 L_end')
        self.stamp('start')
        if self.stamps: a('s_memrealtime vcc')
        a(f's_getpc_b64 s[60:61]\nL_pc:\ns_sub_u32 s60, s60, L_pc-{NAME}_kernel\ns_subb_u32 s61, s61, 0')
        a(f's_mov_b32 s62, L_end-{NAME}_kernel\ns_mov_b32 s63, 0x20000\ns_lshr_b32 s59, s2, 3\ns_lshl_b32 s59, s59, 7')
        a('v_lshlrev_b32 v41, 8, v0\nv_and_b32 v41, 0xf000, v41')
        a('buffer_load_dword v41, v41, s[60:63], s59 offen', 'code')
        a(f'v_and_b32 {LANE}, 63, v0\nv_lshlrev_b32 v40, 7, v0\nv_lshrrev_b32 v0, 6, v0')
        a(f's_and_b32 {TEAM}, s2, 7\ns_lshl_b32 {TEAM}, {TEAM}, 1\ns_lshr_b32 {MEM}, s2, 7\ns_add_u32 {TEAM}, {TEAM}, {MEM}')
        a(f's_bfe_u32 {MEM}, s2, 0x40003')
        a(f'v_readfirstlane_b32 {WAVE}, v0')
        a(f's_cmp_ge_u32 {MEM}, 7\ns_cselect_b32 {RH}, 1, 0\ns_mul_i32 {CG}, {RH}, 7\ns_sub_u32 {CG}, {MEM}, {CG}')
        a(f's_lshl_b32 {RB}, {TEAM}, 1\ns_add_u32 {RB}, {RB}, {RH}')
        a(f'v_lshrrev_b32 v250, 3, {LANE}\nv_and_b32 v251, 7, {LANE}\nv_mul_u32_u24 v239, 896, v250\nv_lshl_add_u32 v239, v251, 4, v239')
        a(f's_lshl_b32 {D0}, {RB}, 2\ns_add_u32 {D0}, {D0}, {WAVE}\ns_mul_i32 {D0}, {D0}, {16*896}\ns_add_u32 {D1}, {D0}, {8*896}')
        a(f's_lshl_b32 s66, {CG}, 7\ns_add_u32 s67, s66, {D1}\ns_add_u32 s66, s66, {D0}')
        a(f's_mov_b32 s10, {2048*896}\ns_mov_b32 s11, s63\ns_mov_b32 s14, {448*2688}\ns_mov_b32 s15, s63')
        a(f's_cmp_ge_u32 {MEM}, 14')
        a.raw('s_waitcnt lgkmcnt(0)')
        if self.stamps: a('s_mov_b32 s101, vcc_lo')

    def late_loads(self):
        return S("""s_load_dwordx2 s[16:17], s[0:1], 16
            s_load_dwordx2 s[20:21], s[0:1], 32
            s_load_dwordx2 s[24:25], s[0:1], 40
            s_load_dwordx2 s[28:29], s[0:1], 48
            s_load_dwordx2 s[32:33], s[0:1], 56
            s_load_dwordx2 s[36:37], s[0:1], 64
            s_mov_b32 s6, 0x10000000
            s_mov_b32 s7, 0x20000
            v_mov_b32 v255, 0""") + [(f'buffer_load_dword v4, v255, {WS}, 0 offen sc1', 'epoch')]

    def setup1(self):
        L = []
        for base, size in [(16, 448*896), (20, 448*896), (24, 448*896), (28, 448*3584), (32, 1792*896), (36, 2048*896)]:
            L += S(f's_mov_b32 s{base+2}, {size}\ns_mov_b32 s{base+3}, 0x20000')
        L += S(f"""s_lshl_b32 {SLOTA}, {RB}, 3
            s_add_u32 {SLOTA}, {SLOTA}, {CG}
            s_lshl_b32 {SLOTB}, {TEAM}, 4
            s_add_u32 {SLOTB}, {SLOTB}, {MEM}
            s_mul_i32 {WV14}, {WAVE}, 14336
            s_mul_i32 {WV12}, {WAVE}, 12288
            s_add_u32 {WV12}, {WV12}, {S2}
            s_lshl_b32 {T0}, {CG}, 7""")
        L.append(f's_cmp_ge_u32 {MEM}, 14\ns_cselect_b32 {T0}, {OOB}, {T0}')
        L += S(f"""s_mul_i32 {IMG9}, {WAVE}, {112*896}
            s_add_u32 {IMG9}, {IMG9}, {T0}
            s_mul_i32 {W4O}, {WAVE}, {224*896}
            s_add_u32 {W4O}, {W4O}, {T0}""")
        L += self.voff_calc('v251', 896, 'A') + [f'v_accvgpr_write_b32 {aVA}, v251']
        L += self.voff_calc('v251', 896, 'B') + [f'v_accvgpr_write_b32 {aVB}, v251']
        return L

    def trB_calc(self, v, hrows):
        return S(f"""v_lshrrev_b32 v252, 5, {LANE}
            v_mul_u32_u24 {v}, {hrows*128}, v252
            v_bfe_u32 v252, {LANE}, 2, 2
            v_lshl_add_u32 {v}, v252, 7, {v}
            v_bfe_u32 v252, {LANE}, 4, 1
            v_lshl_add_u32 {v}, v252, 5, {v}
            v_and_b32 v252, 3, {LANE}
            v_lshl_add_u32 {v}, v252, 3, {v}
            v_bfe_u32 v252, {LANE}, 3, 1
            v_lshl_add_u32 {v}, v252, 6, {v}""")

    def setup2(self):
        L = S(f"""s_mul_i32 {IMG3}, {WAVE}, {112*3584}
            s_lshl_b32 {T0}, {MEM}, 7
            s_add_u32 {IMG3}, {IMG3}, {T0}
            s_mul_i32 {RB57}, {RB}, 57344
            s_lshl_b32 {TB16}, {CG}, 13
            s_add_u32 {TB16}, {TB16}, {RB57}
            s_lshl_b32 {STO}, {SLOTA}, 9
            s_lshl_b32 {T0}, {WAVE}, 7
            s_add_u32 {STO}, {STO}, {T0}
            s_mov_b32 {ONES}, 0x3f803f80
            v_lshrrev_b32 v110, 4, {LANE}
            v_and_b32 v111, 15, {LANE}
            v_lshlrev_b32 v111, 4, v111
            v_lshl_add_u32 {VA16}, v110, 10, v111
            v_lshl_add_u32 {VA16}, v0, 8, {VA16}
            v_lshrrev_b32 v110, 5, {LANE}
            v_and_b32 v111, 31, {LANE}
            v_lshlrev_b32 v111, 4, v111
            v_lshl_add_u32 {V32}, v110, 10, v111
            v_lshrrev_b32 v110, 2, {LANE}
            v_lshlrev_b32 v111, 7, v110
            v_and_b32 v110, 6, v110
            v_lshl_add_u32 v111, v110, 4, v111
            v_and_b32 v110, 3, {LANE}
            v_lshl_add_u32 v111, v110, 3, v111
            v_accvgpr_write_b32 {aA0}, v111""")
        L += self.trB_calc('v111', 4) + [f'v_accvgpr_write_b32 {aB0}, v111']
        for st, pitch, typ in ((aVC, 3584, 'B'),):
            L += self.voff_calc('v111', pitch, typ) + [f'v_accvgpr_write_b32 {st}, v111']
        return L + self.gaddr_setup()

    def gaddr_setup(self):
        L = S(f"""v_and_b32 v104, 15, {LANE}
            s_lshl_b32 {T0}, {RB}, 6
            s_lshl_b32 {T1}, {WAVE}, 4
            s_add_u32 {T0}, {T0}, {T1}
            v_add_u32 v104, {T0}, v104
            v_and_b32 v105, 48, {LANE}
            v_lshlrev_b32 v105, 2, v105""")
        for j in range(4):
            mixcg = 5 if j < 2 else 1
            L.append(f's_lshl_b32 {T0}, {CG}, 2\ns_add_u32 {T0}, {T0}, {j}\ns_cmp_ge_u32 {T0}, 7\ns_cselect_b32 {T1}, -1, 1\ns_cmp_ge_u32 {T0}, 14\ns_cselect_b32 {T1}, 2, {T1}\n'
                     f's_cmp_ge_u32 {T0}, 21\ns_cselect_b32 {T1}, -2, {T1}\ns_cmp_eq_u32 {CG}, {mixcg}\ns_cselect_b32 {T0}, 3, 4')
            L += S(f"""v_add_u32 v106, {T1}, v104
                v_bfe_i32 v108, v106, 11, 1
                v_bfe_u32 v107, v106, 6, 5
                v_mul_u32_u24 v107, 57344, v107
                v_and_or_b32 v106, v106, 63, v105
                v_lshl_add_u32 v106, v106, {T0}, v107
                v_not_b32 v108, v108
                v_accvgpr_write_b32 a{240+j}, v106
                v_accvgpr_write_b32 a{244+j}, v108""")
        return L

    def burst(self, srd, start, k, idx, wstride, vreg):
        def f():
            a = self.a
            a(f's_mul_i32 {T0}, {idx}, {k*128 * (4 if wstride is None else 1)}\ns_mul_i32 {T1}, {WAVE}, {k*128 if wstride is None else wstride}\ns_add_u32 {T0}, {T0}, {T1}')
            if start: a(f's_add_u32 {T0}, {T0}, {start}')
            a(f'v_lshlrev_b32 v{vreg}, 7, {LANE}\ns_mov_b64 exec, {hx((1 << k) - 1)}')
            a(f'buffer_load_dword v{vreg}, v{vreg}, {srd}, {T0} offen', 'pf')
            a('s_mov_b64 exec, -1')
        return f

    def get_tag(self):
        return [self.W(vm='epoch'), f'v_readfirstlane_b32 {TAG}, v4', f's_getreg_b32 {XCC}, hwreg(HW_REG_XCC_ID, 0, 4)', f's_lshr_b32 {TAG}, {TAG}, 4',
                f's_mul_i32 {TAG}, {TAG}, 0x9E3779B1', f's_add_u32 {TAG}, {TAG}, 0x7F4A7C15', f's_lshl_b32 {TAG}, {TAG}, 4']

    def p1(self):
        a = self.a
        ACC, XR, XF, PK = 32, 128, 128, 80
        WA, XW, XA = 240, 246, 247
        XNT = 'nt' if self.opt.get('xnt', 1) else ''
        XL = [[(f'buffer_load_dwordx4 v[184:187], v239, {XS}, s66 offen {XNT}', 'xt')], [(f'buffer_load_dwordx4 v[188:191], v239, {XS}, s67 offen {XNT}', 'xt')]]
        XL += [[(f'buffer_load_dwordx4 {vr(128+4*n,4)}, v239, {XS}, {D1 if n >= 7 else D0} offen offset:{128*(n%7)} {XNT}', f'x{n}')] for n in range(14)]
        def wunits(g):
            U = []
            for k in range(2*g, min(2*g + 2, 21)):
                U.append([f's_add_u32 m0, {D1}, {WSL + (k % 12)*8192}', f's_add_u32 {T7}, {D0}, {64*(k%7)*2688 + (k//7)*128}', (f'buffer_load_dwordx4 v{VO}, {WQ}, {T7} offen lds', f'wq{g}')])
                U.append([(f'buffer_load_dwordx4 v{VO+1}, {WQ}, {T7} offen offset:1024 lds', f'wq{g}')])
            return U
        NX = self.opt.get('p1nx', 10)
        self.run(flat(XL[:NX]))
        self.run(self.late_loads())
        self.run(self.voff_calc(f'v{VO}', 2688, 'B') + [f'v_add_u32 v{VO+1}, {8*2688-1024}, v{VO}'])
        a(f's_mov_b32 {ONES}, 0x3f803f80\ns_mov_b32 {LO1}, 0x00003f80\ns_mov_b32 {HI1}, 0x3f800000')
        a(f's_and_b32 {T4}, {WAVE}, 1\ns_lshr_b32 {T5}, {WAVE}, 1')
        a(f's_mul_i32 {T0}, {WAVE}, {16*XP}\nv_mul_u32_u24 v{XW}, {XP}, v250')
        a(f'v_lshl_add_u32 v{XW}, v251, 4, v{XW}\nv_add_u32 v{XW}, {T0}, v{XW}')
        a(f's_lshl_b32 {T1}, {WAVE}, 6\ns_add_u32 {T1}, {T1}, {RSD}\nv_lshl_add_u32 v92, v250, 2, {T1}')
        a(f'v_and_b32 v250, 15, {LANE}\nv_lshrrev_b32 v251, 4, {LANE}\nv_mul_u32_u24 v93, {XP}, v250\nv_lshl_add_u32 v93, v251, 3, v93\nv_add_u32 v93, {T0}, v93')
        a(f's_mul_i32 {T0}, {T4}, {32*XP}\nv_and_b32 v250, 31, {LANE}\nv_lshrrev_b32 v251, 5, {LANE}\nv_mul_u32_u24 v{XA}, {XP}, v250')
        a(f'v_lshl_add_u32 v{XA}, v251, 4, v{XA}\nv_add_u32 v{XA}, {T0}, v{XA}')
        a(f's_lshl_b32 {T1}, {T4}, 7\ns_add_u32 {T1}, {T1}, {RSD}\nv_lshl_add_u32 v94, v250, 2, {T1}')
        a(f'v_lshlrev_b32 v95, 3, v250\nv_lshl_add_u32 v95, v251, 10, v95')
        self.run(self.trB_calc('v250', 8))
        a(f's_lshl_b32 {T2}, {T5}, 6\nv_xor_b32 v250, {T2}, v250\nv_add_u32 v{WA}, {WSL}, v250\nv_add_u32 v{WA+1}, {WSL + 6*8192}, v250')
        for i in range(8): a(f'v_mov_b32 v{96+i}, 0')
        a.raw('s_waitcnt lgkmcnt(0)')
        self.stamp('setup')
        self.run(flat(XL[NX:]))
        a(f's_mul_i32 {D0}, {WAVE}, {16*2688}\ns_mul_i32 {D1}, {CG}, 384\ns_add_u32 {D0}, {D0}, {D1}\ns_lshl_b32 {D1}, {WAVE}, 11')
        fill = S(f"""s_mul_i32 {T6}, {CG}, 6
            s_add_u32 {T6}, {T6}, {T5}
            s_mul_i32 {T3}, {TEAM}, {336*1024}
            s_lshl_b32 {T2}, {T6}, 13
            s_add_u32 {T3}, {T3}, {T2}
            s_lshl_b32 {T2}, {RH}, 9
            s_add_u32 {T3}, {T3}, {T2}
            s_lshl_b32 {T2}, {T4}, 8
            s_add_u32 {T3}, {T3}, {T2}
            s_add_u32 {T3}, {T3}, {QKV}""")
        for i in range(3):
            fill += [f's_cmp_lt_u32 {T6}, {14 - 2*i}\ns_cselect_b32 {T2}, {hf(QSCALE)}, 1.0', f'v_mul_f32 v{96+2*i}, {T2}, v123']
        WU = flat([wunits(g) for g in range(6)])
        M = [self.W(vm='xt'), self.ST('x0'), (f'ds_write_b128 v{XW}, v[184:187]', 'xw'), (f'ds_write_b128 v{XW}, v[188:191] offset:{8*XP}', 'xw'), self.W(lg='xw')]
        M += [(f'ds_read_b64 {vr(HPK+2*j,2)}, v93 offset:{32*j}', 'xtr') for j in range(4)]
        for n in range(14):
            e = n // 7
            M.append(self.W(vm=f'x{n}'))
            for d in range(4):
                M.append(f'v_dot2c_f32_bf16 v{96+4*e+(d&1)}, {ONES}, v{XR+4*n+d}')
                M.append(f'v_dot2c_f32_bf16 v{98+4*e+(d&1)}, v{XR+4*n+d}, v{XR+4*n+d}')
        M.append(self.ST('x_in'))
        M += [f'v_add_f32 v{96+2*k}, v{96+2*k}, v{97+2*k}' for k in range(4)]
        for dpp in ('quad_perm:[1,0,3,2]', 'quad_perm:[2,3,0,1]', 'row_half_mirror'):
            M += [f'v_add_f32_dpp v{96+2*k}, v{96+2*k}, v{96+2*k} {dpp} row_mask:0xf bank_mask:0xf' for k in range(4)]
        for e in range(2):
            s_, q_ = 96 + 4*e, 98 + 4*e
            M += [f'v_mul_f32 v{s_}, {hf(-1/448)}, v{s_}', f'v_mul_f32 v{q_}, {hf(1/448)}, v{q_}', f'v_fma_f32 v{q_}, -v{s_}, v{s_}, v{q_}', f'v_max_f32 v{q_}, 0, v{q_}',
                  f'v_add_f32 v{q_}, {hf(EPS)}, v{q_}', f'v_rsq_f32 v{q_}, v{q_}']
        M.append(self.W(lg='xtr'))
        for n in range(14):
            e, i = n // 7, n % 7
            for d in range(4):
                M.append(f'v_dot2_f32_bf16 v{112+2*d}, v{XR+4*n+d}, {LO1}, v{96+4*e}')
                M.append(f'v_dot2_f32_bf16 v{113+2*d}, v{XR+4*n+d}, {HI1}, v{96+4*e}')
            M += [f'v_cvt_pk_bf16_f32 v{XR+4*n+d}, v{112+2*d}, v{113+2*d}' for d in range(4)]
            M.append((f'ds_write_b128 v{XW}, {vr(XR+4*n,4)} offset:{e*8*XP + 128*i}', 'xw'))
        M += [('ds_write_b32 v92, v98', 'xw'), ('ds_write_b32 v92, v102 offset:32', 'xw')]
        NW = self.opt.get('p1nw', 16)
        L, left = weave(M, WU[:NW], gap=self.opt.get('p1gap', 90), first=self.opt.get('p1first', 30))
        self.run(L)
        pend = left + WU[NW:]
        self.stamp('norm')
        NB, AH = 8, 4
        def sync(n): return [self.WN(f'wq{n>>3}', 4 if n < 80 else 2), 's_barrier'] if n & 7 == 0 else []
        def reads(n):
            k = n >> 2; sl = k % 12
            ar, off = (WA, sl * 8192) if sl < 6 else (WA + 1, (sl - 6) * 8192)
            off += (n & 3) * 2048
            r0 = (n % NB) * 4
            L = [(f'ds_read_b64_tr_b16 a[{r0}:{r0+1}], v{ar} offset:{off}', f'wf{n}'), (f'ds_read_b64_tr_b16 a[{r0+2}:{r0+3}], v{ar} offset:{off + 512}', f'wf{n}')]
            if n < 28: L.append((f'ds_read_b128 {vr(XF+4*n,4)}, v{XA} offset:{32*n}', f'wf{n}'))
            return L
        def epi(i, pk):
            c = ACC + 16 * i; L = []
            for q in range(4):
                if pk: L += [f'v_pk_mul_f32 {vr(c+4*q+2*k,2)}, {vr(c+4*q+2*k,2)}, {vr(96+2*i,2)} op_sel_hi:[1,0]' for k in range(2)]
                else: L += [f'v_mul_f32 v{c+4*q+k}, v{c+4*q+k}, v{96+2*i}' for k in range(4)]
                L += [f'v_cvt_pk_bf16_f32 v{PK+2*q+k}, v{c+4*q+2*k}, v{c+4*q+2*k+1}' for k in range(2)]
                if q % 2 == 0: L.append(f's_add_u32 {T2}, {T3}, {i*16384 + q*2048}')
                L.append((f'buffer_store_dwordx2 {vr(PK+2*q,2)}, v95, {WS}, {T2} offen offset:{(q%2)*2048} sc1', 'st'))
            return L
        a.wait(lg='all')
        self.run(sync(0))
        a('ds_read_b32 v123, v94', 'rs')
        for q in range(AH): self.run(reads(q))
        for n in range(84):
            img, s = n // 28, n % 28
            if n + AH < 84 and (n + AH) & 7 == 0:
                g = (n + AH) >> 3
                while pend and pend[0][-1][1] <= f'wq{g}' and len(pend[0][-1][1]) <= len(f'wq{g}'): self.run(pend.pop(0))
                self.run(sync(n + AH))
                if 2 <= g <= 6: pend += wunits(g + 4)
            if n % 2 == 0: a.wait(lg=f'wf{n+1}')
            c = ACC + 16 * img; r0 = (n % NB) * 4
            a(f'v_mfma_f32_32x32x16_bf16 {vr(c,16)}, a[{r0}:{r0+3}], {vr(XF+4*s,4)}, {vr(c,16) if s else 0}')
            if n + AH < 84: self.run(reads(n + AH))
            if n in (13, 28, 42, 56, 70): self.stamp(f'n{n}')
            if n == 24: fill += self.setup1() + self.get_tag()
            if n == self.opt.get('e0n', 30): fill += epi(0, False)
            if n == self.opt.get('e1n', 58): fill += epi(1, False)
            if n == self.opt.get('b1n', 58):
                if self.opt.get('b1', 0):
                    fill += [f's_and_b32 {T4}, {RB}, 3', f's_mul_i32 {T4}, {T4}, 7', f's_add_u32 {T4}, {T4}, {CG}', self.burst(WO, 0, 28, T4, None, 104), self.burst(W4, 0, 24, T4, 224*896, 105)]
            if pend and n % 2 == 1: self.run(pend.pop(0))
            elif fill:
                k = 1 if n < 24 else 3
                self.run(fill[:k]); fill = fill[k:]
        self.stamp('mm')
        self.run(fill)
        if self.opt.get('e0n', 30) > 83: self.run(epi(0, True))
        if self.opt.get('e1n', 58) > 83: self.run(epi(1, True))
        self.run(epi(2, True))
        self.finish(0, SLOTA, self.p2_setup() + self.setup2(), self.img9(WO, S0, 'wo') + self.w4_units(0), split=self.opt.get('sp0', 520))

    def p2_setup(self):
        MD, MO = 176, 192
        a = self.a
        L = S(f'''v_lshl_add_u32 v240, {WAVE}, 6, {LANE}
            s_sub_u32 {T5}, 2, {TEAM}
            s_max_i32 {T5}, {T5}, 0
            s_cmp_lt_u32 {WAVE}, {T5}
            s_cselect_b32 {T1}, {hx(NBIG >> 16)}, 0''')
        L = ['\n'.join(L)]
        L += S(f'''v_mov_b32 v244, {T1}
            v_mov_b32 v245, 0
            v_mov_b32 v246, {T1}
            v_mov_b32 v247, 0
            v_mov_b32 v236, 0x3f80
            v_mov_b32 v237, 0
            v_mov_b32 v238, 0x3f80
            v_mov_b32 v239, 0
            v_lshlrev_b32 v240, 4, v240
            v_add_u32 v240, {KB + 7*KP}, v240''')
        def cr():
            Lb = a.label('cr')
            a(f's_cmp_ge_u32 {WAVE}, 3\ns_cbranch_scc1 {Lb}')
            a.raw(f'ds_write_b128 v240, v[244:247]\nds_write_b128 v240, v[236:239] offset:{8*KP}')
            a(f'{Lb}:')
        L.append(cr)
        L += S(f'''v_and_b32 v240, 31, {LANE}
            v_lshrrev_b32 v241, 5, {LANE}
            v_lshlrev_b32 v242, 2, v241
            v_sub_u32 v240, v240, v242
            v_mov_b32 v242, {hx(NBIG)}''')
        for r in range(16):
            kk = 8*(r >> 2) + (r & 3)
            L += [f'v_subrev_u32 v243, {kk}, v240', 'v_ashrrev_i32 v243, 31, v243', f'v_and_b32 v{MD+r}, v242, v243', f'v_xor_b32 v{MO+r}, v242, v{MD+r}']
        L += S(f'''v_and_b32 v240, 31, {LANE}
            v_lshlrev_b32 v240, 3, v240
            v_mul_u32_u24 v232, {KP}, v241
            v_add_u32 v232, v232, v240
            v_lshl_add_u32 v234, v241, 10, v240
            s_lshl_b32 {T1}, {WAVE}, 8
            s_add_u32 {T2}, {T1}, {KB}
            v_add_u32 v232, {T2}, v232
            v_bfe_u32 v240, {LANE}, 4, 1
            v_and_b32 v242, 3, {LANE}
            v_lshl_add_u32 v240, v240, 2, v242
            v_mul_u32_u24 v233, {KP}, v240
            v_lshl_add_u32 v233, v241, 5, v233
            v_bfe_u32 v240, {LANE}, 2, 2
            v_lshl_add_u32 v233, v240, 3, v233
            s_add_u32 {T2}, {T1}, {VB}
            v_add_u32 v233, {T2}, v233
            v_lshlrev_b32 v235, 4, {LANE}
            s_mul_i32 {T3}, {TEAM}, {336*1024}
            s_mul_i32 {T2}, {MEM}, 7168
            s_add_u32 {T3}, {T3}, {T2}
            s_add_u32 {T3}, {T3}, {QKV}
            s_sub_u32 {T4}, 2, {WAVE}
            s_mul_i32 {T4}, {T4}, {336*1024}
            s_sub_u32 {T4}, {T3}, {T4}''')
        L.append(f's_cmp_lt_u32 {WAVE}, {T5}\ns_cselect_b32 {T4}, {OOB}, {T4}')
        L += S(f'''s_add_u32 {T3}, {T3}, {T1}
            s_mov_b32 {T6}, 0x7f7f7f7f
            s_mov_b32 {T7}, 0x7f7f
            s_lshl_b32 {T1}, {T5}, 4
            s_lshr_b64 s[58:59], s[58:59], {T1}
            s_lshl_b64 s[58:59], s[58:59], {T1}
            s_lshl_b32 {T2}, {TEAM}, 4
            s_sub_u32 {T2}, {T2}, 32''')
        return L

    def p2(self):
        a = self.a
        S_, MD, MO, Q, OA = 32, 176, 192, 208, 216
        KA, VA = 'v232', 'v233'
        FB = 200
        a.raw('s_waitcnt lgkmcnt(0)')
        self.poll(0, T2, 's[58:59]', first=(0, '0x7f7f'))
        a.wait(vm='w4_0')
        a(f's_add_u32 {T2}, {T3}, 4096')
        for q in range(4):
            a(f'buffer_load_dwordx2 {vr(Q+2*q,2)}, v234, {WS}, {T3 if q < 2 else T2} offen offset:{(q%2)*2048} sc1', 'q')
        L = a.label('kv')
        a(f's_cmp_ge_u32 {WAVE}, 3\ns_cbranch_scc1 {L}')
        a(f's_lshl_b32 {T2}, {WAVE}, 10')
        for part, lb in ((1, KB), (2, VB)):
            for q in range(7):
                if q % 4 == 0: a(f's_add_u32 {T3}, {T4}, {part*112*1024 + q*1024}')
                a(f's_add_u32 m0, {T2}, {lb + q*KP - (q%4)*1024}')
                a.raw(f'buffer_load_dwordx4 v235, {WS}, {T3} offen offset:{(q%4)*1024} sc1 lds')
        a(f'{L}:')
        a(f'v_mov_b32 v240, {FSC}')
        a('ds_read_b32 v240, v240', 'fs')
        self.run(self.w4_read(0))
        a.wait(lg='fs')
        a(f'v_readfirstlane_b32 {FAST}, v240')
        nw = 0
        if self.opt.get('fast', 1):
            a(f's_lshl_b32 {T0}, {TEAM}, 1\ns_lshr_b32 {T1}, {WAVE}, 1\ns_add_u32 {T0}, {T0}, {T1}\ns_lshl_b32 {T0}, {T0}, 16\ns_lshl_b32 {T1}, {MEM}, 12\ns_add_u32 {T0}, {T0}, {T1}')
            a(f's_and_b32 {T1}, {WAVE}, 1\ns_lshl_b32 {T1}, {T1}, 11\ns_add_u32 {T0}, {T0}, {T1}\ns_add_u32 {T0}, {T0}, {O_}')
            a(f's_lshl_b32 {T1}, {WAVE}, 11\ns_add_u32 {T1}, {T1}, {TB16}\ns_add_u32 {T1}, {T1}, {H_ - 2048}')
            a(f'v_lshlrev_b32 v240, 7, {LANE}\nv_mov_b32 v241, {T0}\nv_mov_b32 v242, {T1}\nv_cmp_gt_u32 vcc, 16, {LANE}')
            a(f's_add_u32 {T0}, {STO}, {STH}\ns_cmp_eq_u32 {WAVE}, 0\ns_cselect_b32 {T1}, {SLOTB}, {SLOTA}\ns_lshl_b32 {T1}, {T1}, 8')
            a(f'v_cndmask_b32 v241, v242, v241, vcc\nv_add_u32 v240, v240, v241')
            a(f's_lshl_b32 {T2}, 0x10000, {WAVE}\ns_add_u32 {T1}, {T1}, {T2}\ns_add_u32 {T1}, {T1}, {FLAGS}')
            a(f'v_writelane_b32 v240, {T0}, 32\nv_writelane_b32 v240, {T1}, 33')
        a(f's_lshl_b32 {T4}, {TEAM}, 1\ns_lshr_b32 {T1}, {WAVE}, 1\ns_add_u32 {T4}, {T4}, {T1}\ns_lshl_b32 {T4}, {T4}, 16')
        a(f's_lshl_b32 {T1}, {MEM}, 12\ns_add_u32 {T4}, {T4}, {T1}\ns_and_b32 {T1}, {WAVE}, 1\ns_lshl_b32 {T1}, {T1}, 9\ns_add_u32 {T4}, {T4}, {T1}\ns_add_u32 {T4}, {T4}, {O_}')
        a(f's_and_b32 {T5}, {SLOTB}, 31\ns_lshl_b32 {T5}, {T5}, 2\ns_add_u32 {T5}, {T5}, {WAVE}\ns_mul_i32 {T5}, {T5}, {25*128}\nv_lshlrev_b32 v241, 7, {LANE}')
        a.raw(f's_waitcnt vmcnt({7 + nw})')
        L = a.label('kv2')
        a(f's_cmp_lt_u32 {WAVE}, 3\ns_cbranch_scc1 {L}')
        a.raw(f's_waitcnt vmcnt({nw})')
        a(f'{L}:')
        a('s_barrier')
        self.stamp('k')
        def kread(i):
            b = FB + (i % 3) * 8
            return [(f'ds_read_b64 a[{b+4*p+2*s}:{b+4*p+2*s+1}], {KA} offset:{(4*p+2*s)*KP + 256*i}', f'k{i}') for p in range(2) for s in range(2)]
        self.run(kread(0)); self.run(kread(1))
        a(f's_mov_b32 exec_lo, 0\nv_mov_b32 v{Q+6}, 0x3f80\nv_mov_b32 v{Q+7}, 0\ns_mov_b32 exec_lo, -1')
        MX = 236
        def maxes(i):
            L = []
            r = S_ + 16*i
            for k in range(8):
                if i == 0 and k < 2: L.append(f'v_max_f32 v{MX+k}, v{r+2*k}, v{r+2*k+1}')
                else: L.append(f'v_max3_f32 v{MX+(k&1)}, v{r+2*k}, v{r+2*k+1}, v{MX+(k&1)}')
            return L
        for i in range(9):
            a.wait(lg=f'k{i}')
            b = FB + (i % 3) * 8
            c0 = vr(MO, 16) if i == 0 else (vr(MD, 16) if i == 8 else '0')
            kr = kread(i + 2) if i + 2 < 9 else []
            mx = maxes(i - 2) if i >= 2 else []
            a(f'v_mfma_f32_32x32x16_bf16 {vr(S_+16*i,16)}, a[{b}:{b+3}], {vr(Q,4)}, {c0}')
            self.run(kr[:2] + mx[:4])
            a(f'v_mfma_f32_32x32x16_bf16 {vr(S_+16*i,16)}, a[{b+4}:{b+7}], {vr(Q+4,4)}, {vr(S_+16*i,16)}')
            self.run(kr[2:] + mx[4:])
        self.stamp('qk')
        self.run(maxes(7)); self.run(maxes(8))
        a(f'v_max_f32 v{MX}, v{MX}, v{MX+1}\nv_mov_b32 v{MX+1}, v{MX}\nv_permlane32_swap_b32 v{MX}, v{MX+1}\nv_max_f32 v{MX}, v{MX}, v{MX+1}')
        def vread(i):
            b = FB + (i % 3) * 8
            return [(f'ds_read_b64_tr_b16 a[{b+4*m+2*e}:{b+4*m+2*e+1}], {VA} offset:{256*i + 128*m + 64*e}', f'v{i}') for m in range(2) for e in range(2)]
        def sub(i):
            r = S_ + 16*i
            return [f'v_pk_add_f32 {vr(r+2*k,2)}, {vr(r+2*k,2)}, {vr(MX,2)} op_sel_hi:[1,0] neg_lo:[0,1] neg_hi:[0,1]' for k in range(8)]
        def ex(i):
            r = S_ + 16*i
            return [f'v_exp_f32 v{r+k}, v{r+k}' for k in range(16)] + [f'v_cvt_pk_bf16_f32 v{r+k}, v{r+2*k}, v{r+2*k+1}' for k in range(8)]
        self.stamp('max')
        self.run(sub(0) + ex(0)[:16])
        a.raw(f's_waitcnt vmcnt(0)'); a.vm = []
        a('s_barrier')
        self.run(vread(0)); self.run(vread(1))
        if self.opt.get('fast', 1):
            a('s_mov_b32 exec_hi, 3')
            a(f'buffer_load_dword v240, v240, {WS}, 0 offen sc1', 'pf')
        if self.opt.get('b2', 1):
            a('s_mov_b64 exec, 0x1ffffff')
            a(f'buffer_load_dword v242, v241, {W1}, {T5} offen', 'pf')
            a(f'buffer_load_dword v243, v241, {W2}, {T5} offen', 'pf')
        a('s_mov_b64 exec, -1')
        self.run(ex(0)[16:])
        U = []
        A1 = 0
        for i in range(9):
            if i + 1 < 9: self.run(sub(i + 1))
            a.wait(lg=f'v{i}')
            b = FB + (i % 3) * 8
            r = S_ + 16*i
            e = ex(i + 1) if i + 1 < 9 else []
            a(f'v_mfma_f32_32x32x16_bf16 {vr(OA,16)}, a[{b}:{b+3}], {vr(r,4)}, {vr(OA,16) if i else 0}')
            if i + 2 < 9: self.run(vread(i + 2))
            self.run(e[:1])
            a(f'v_mfma_f32_32x32x16_bf16 {vr(OA,16)}, a[{b+4}:{b+7}], {vr(r+4,4)}, {vr(OA,16)}')
            if U and i >= A1: self.run(U.pop(0))
            self.run(e[1:8])
            if U and i >= A1: self.run(U.pop(0))
            self.run(e[8:16])
            if U and i >= A1: self.run(U.pop(0))
            self.run(e[16:])
        assert not U
        a(f'v_mov_b32 v{MX}, v{OA+12}\nv_mov_b32 v{MX+1}, v{OA+12}\nv_permlane32_swap_b32 v{MX}, v{MX+1}\nv_rcp_f32 v{MX}, v{MX+1}')
        for p in range(2):
            for k in range(4*p, 4*p+4):
                a(f'v_pk_mul_f32 {vr(OA+2*k,2)}, {vr(OA+2*k,2)}, {vr(MX,2)} op_sel_hi:[1,0]')
            for k in range(4*p, 4*p+4):
                a(f'v_cvt_pk_bf16_f32 v{S_+k}, v{OA+2*k}, v{OA+2*k+1}')
            if p: a(f's_mov_b32 exec_lo, 0\nv_mov_b32 v{S_+6}, 0\nv_mov_b32 v{S_+7}, 0\ns_mov_b32 exec_lo, -1')
        self.fstore([f'buffer_store_dwordx4 {vr(S_+4*p,4)}, {V32}, {WS}, {T4} offen offset:{p*2048}' for p in range(2)])

    def trA(self, base, omap):
        L = [f'v_accvgpr_read_b32 v4, {aA0}']
        if omap: L += [f'v_and_b32 v5, 1024, {V32}', 'v_add_u32 v4, v4, v5']
        if base: L.append(f'v_add_u32 v4, {base}, v4')
        L += [f'v_xor_b32 v{4+j}, {32*j}, v4' for j in range(1, 4)]
        return L
    def breg(self, s, j, abase):
        return ('v', 112 + 16*s + 4*j) if s < 8 else ('a', abase + 16*(s - 8) + 4*j)
    def breads(self, s, omap, abase, cs=False):
        L = []
        for j in range(4):
            if omap: ar = 4 + (j ^ (2 if s & 1 else 0)); off = 28 * s * 128; d2 = 8 * 128
            else: ar = 4 + j; off = 32 * s * 128; d2 = 16 * 128
            k, b = self.breg(s, j, abase)
            L.append((f'ds_read_b64_tr_b16 {vr(b,2,k)}, v{ar} offset:{off}', f'b{s}'))
            L.append((f'ds_read_b64_tr_b16 {vr(b+2,2,k)}, v{ar} offset:{off+d2}', f'b{s}'))
        return L
    def bstream(self, steps, omap, abase, cs_from=None, cs_upto=None):
        L = []
        def csm(s):
            out = [self.W(lg=f'b{s}')]
            for j in range(4):
                k, b = self.breg(s, j, abase)
                out.append(f'v_mfma_f32_16x16x32_bf16 {vr(RES+4*j,4)}, {vr(b,4,k)}, v[88:91], {vr(RES+4*j,4) if s else 0}')
            return out
        c = cs_from
        for s in steps:
            br = self.breads(s, omap, abase)
            if c is not None and c <= s - 2 and c < cs_upto:
                m = csm(c); c += 1
                L.append(m[0])
                for j in range(4): L += [m[1+j]] + br[2*j:2*j+2]
            else: L += br
        while c is not None and c < cs_upto:
            L += csm(c); c += 1
        return L

    def small_gemm(self, nsteps, abase_g, ACC, pollargs, post, abase, pre=[], bg=[], split8=(), cinit=True, fill=[], mid=[], npre=11):
        a = self.a
        AF = 32
        if pollargs: self.poll(*pollargs)
        self.run(pre)
        def aload(s):
            u = [f's_add_u32 {T3}, {T3}, 4096'] if s else []
            if s in split8:
                u += [(f'buffer_load_dwordx2 {vr(AF+4*s+2*h,2)}, v96, {WS}, {T3} offen offset:{2048*h} sc1', f'a{s}') for h in range(2)]
            else:
                u.append((f'buffer_load_dwordx4 {vr(AF+4*s,4)}, {VA16}, {WS}, {T3} offen sc1', f'a{s}'))
            return u
        U = [aload(s) for s in range(nsteps)]
        L, left = weave(post, U, gap=self.opt.get('sggap', 64))
        self.run(L)
        NPRE = max(npre, nsteps - len(left))
        self.run(flat(U[nsteps - len(left):NPRE]))
        self.run(mid)
        self.stamp('issued')
        fill = list(fill)
        U = U[NPRE:]
        for s in range(nsteps):
            if s == (5 if fill else 0) or (s == 5 and bg): U = U + list(bg); bg = []
            a.wait(vm=f'a{s}', lg=f'b{s}')
            if s == 0: self.stamp('a0')
            if s == nsteps - 1: self.stamp('alast')
            for j in range(4):
                k, b = self.breg(s, j, abase)
                a(f'v_mfma_f32_16x16x32_bf16 {vr(ACC+4*j,4)}, {vr(b,4,k)}, {vr(AF+4*s,4)}, {vr(ACC+4*j,4) if (s or cinit) else 0}')
                if U and (j == 0 or (j == 2 and s >= 6 and len(U) >= nsteps - s)): self.run(U.pop(0))
                elif fill: self.run(fill[:2]); fill = fill[2:]
        self.run(fill)
        return U

    def unpack(self, dst, src, n):
        return flat([[f'v_lshlrev_b32 v{dst+2*k}, 16, v{src+k}', f'v_and_b32 v{dst+2*k+1}, 0xffff0000, v{src+k}'] for k in range(n)])

    def tile_out(self, acc, pk, base, stbase):
        a = self.a
        a(f's_add_u32 {T4}, {TB16}, {base}\ns_add_u32 {T5}, {TB16}, {base + 4096}\ns_add_u32 {T6}, {STO}, {stbase}\nv_lshlrev_b32 v244, 3, {LANE}')
        for p in range(2):
            for k in range(4*p, 4*p+4): a(f'v_cvt_pk_bf16_f32 v{pk+k}, v{acc+2*k}, v{acc+2*k+1}')
        self.fstore([f'buffer_store_dwordx4 {vr(pk+4*p,4)}, {VA16}, {WS}, {T5 if p else T4} offen' for p in range(2)])
        a(f'v_pk_add_f32 v[240:241], {vr(acc,2)}, {vr(acc+2,2)}\nv_pk_mul_f32 v[242:243], {vr(acc,2)}, {vr(acc,2)}')
        a(f'v_pk_fma_f32 v[242:243], {vr(acc+2,2)}, {vr(acc+2,2)}, v[242:243]')
        for k in range(2, 8):
            a(f'v_pk_add_f32 v[240:241], v[240:241], {vr(acc+2*k,2)}\nv_pk_fma_f32 v[242:243], {vr(acc+2*k,2)}, {vr(acc+2*k,2)}, v[242:243]')
        a('v_add_f32 v240, v240, v241\nv_add_f32 v241, v242, v243')
        for sw in ('16', '32'):
            a('v_mov_b32 v242, v240\nv_mov_b32 v243, v241')
            a(f'v_permlane{sw}_swap_b32 v240, v242\nv_permlane{sw}_swap_b32 v241, v243')
            a('v_pk_add_f32 v[240:241], v[240:241], v[242:243]')
        a('s_mov_b64 exec, 0xffff')
        self.fstore([f'buffer_store_dwordx2 v[240:241], v244, {WS}, {T6} offen'])
        a('s_mov_b64 exec, -1')

    def fin_stats(self, sws):
        L = []
        for sw in sws:
            L += ['v_mov_b32 v242, v240', 'v_mov_b32 v243, v241', f'v_permlane{sw}_swap_b32 v240, v242', f'v_permlane{sw}_swap_b32 v241, v243',
                  'v_add_f32 v240, v240, v242', 'v_add_f32 v241, v241, v243']
        L += [f'v_mul_f32 v240, {hf(-1/448)}, v240', f'v_mul_f32 v242, {hf(1/448)}, v241', 'v_fma_f32 v242, -v240, v240, v242', 'v_max_f32 v242, 0, v242']
        return L
    def gelu_consts(self, s):
        return [f'v_mul_f32 v244, {hf(K1)}, v{s}', f'v_mul_f32 v245, v{s}, v{s}', f'v_mul_f32 v245, v245, v{s}', f'v_mul_f32 v245, {hf(K2)}, v245', f'v_rcp_f32 v246, v{s}']
    def gelu_pk(self, acc, n, dst, tmp):
        L = []
        ks = range(n)
        for k in ks: L.append(f'v_pk_mul_f32 {vr(tmp+2*k,2)}, {vr(acc+2*k,2)}, {vr(acc+2*k,2)}')
        for k in ks: L.append(f'v_pk_fma_f32 {vr(tmp+2*k,2)}, {vr(tmp+2*k,2)}, v[244:245], v[244:245] op_sel:[0,1,0] op_sel_hi:[1,1,0]')
        for k in ks: L.append(f'v_pk_mul_f32 {vr(tmp+2*k,2)}, {vr(tmp+2*k,2)}, {vr(acc+2*k,2)}')
        for k in range(2*n): L.append(f'v_exp_f32 v{tmp+k}, v{tmp+k}')
        for k in ks: L.append(f'v_pk_fma_f32 {vr(tmp+2*k,2)}, {vr(tmp+2*k,2)}, v[246:247], v[246:247] op_sel_hi:[1,0,0]')
        for k in range(2*n): L.append(f'v_rcp_f32 v{tmp+k}, v{tmp+k}')
        for k in ks: L.append(f'v_pk_mul_f32 {vr(acc+2*k,2)}, {vr(acc+2*k,2)}, {vr(tmp+2*k,2)}')
        for k in ks: L.append(f'v_cvt_pk_bf16_f32 v{dst+k}, v{acc+2*k}, v{acc+2*k+1}')
        return L
    def gelu_sc(self, acc, n, dst, tmp):
        L = []
        ks = range(2*n)
        for k in ks: L.append(f'v_mul_f32 v{tmp+k}, v{acc+k}, v{acc+k}')
        for k in ks: L.append(f'v_fma_f32 v{tmp+k}, v{tmp+k}, v245, v244')
        for k in ks: L.append(f'v_mul_f32 v{tmp+k}, v{tmp+k}, v{acc+k}')
        for k in ks: L.append(f'v_exp_f32 v{tmp+k}, v{tmp+k}')
        for k in ks: L.append(f'v_fma_f32 v{tmp+k}, v{tmp+k}, v246, v246')
        for k in ks: L.append(f'v_rcp_f32 v{tmp+k}, v{tmp+k}')
        for k in ks: L.append(f'v_mul_f32 v{acc+k}, v{acc+k}, v{tmp+k}')
        for k in range(n): L.append(f'v_cvt_pk_bf16_f32 v{dst+k}, v{acc+2*k}, v{acc+2*k+1}')
        return L

    def HT(self): return (self.opt.get('t1', 380), self.opt.get('t2', 800), self.opt.get('t3', 1100))
    def p2_finish(self):
        work = [f's_lshl_b32 {T3}, {RB}, 16', f's_add_u32 {T3}, {T3}, {O_}'] + self.trA(S0, True) + self.unpack(96, HPK, 8) + self.bstream(range(16), True, 96)
        self.rest = self.hop(1, SLOTB, work, self.img9(W1, S1, 'w1'), (TEAM, 4), '0xffff', t=self.HT())

    def p3(self):
        a = self.a
        ACC = 96
        left = self.small_gemm(16, O_, ACC, None, self.rest, 96, npre=self.opt.get('fpre', 6))
        self.tile_out(ACC, HPK, H_, STH)
        work = S(f"""v_lshrrev_b32 v244, 1, {VA16}
            v_add_u32 v245, 2048, v244
            v_lshrrev_b32 v242, 4, {LANE}
            v_add_u32 v242, 1, v242
            v_lshrrev_b32 v242, 2, v242
            v_lshl_add_u32 v245, v242, 30, v245
            s_lshl_b32 {T6}, {RB}, 12
            s_add_u32 {T6}, {T6}, {STH}
            s_add_u32 {T3}, {RB57}, {H_}""")
        work += self.trA(S1, False) + [f'v_mov_b32 v{88+d}, {ONES}' for d in range(4)] + self.bstream(range(14), False, 144, 0, 14)
        self.rest = self.hop(2, SLOTA, work, left + self.img9(W2, S0, 'w2'), (RB, 3), '0x7f', t=self.HT())

    def p4(self):
        a = self.a
        ACC = 96
        pre = [(f'buffer_load_dwordx2 v[240:241], v244, {WS}, {T6} offen sc1', 'sl'), (f'buffer_load_dwordx2 v[242:243], v245, {WS}, {T6} offen sc1', 'sl')]
        post = ['v_add_f32 v240, v240, v242', 'v_add_f32 v241, v241, v243'] + self.fin_stats(['16', '32'])
        post += [f'v_add_f32 v243, {hf(EPS)}, v242', 'v_rsq_f32 v241, v243', 'v_mul_f32 v243, v241, v241', f'v_mov_b32 v247, {hf(EPS)}', 'v_fmac_f32 v247, v243, v242',
                 'v_rsq_f32 v247, v247', 'v_mul_f32 v247, v247, v241'] + self.gelu_consts(247)
        post += [f's_lshl_b32 {T4}, {CG}, 13', f's_add_u32 {T4}, {T4}, {G_}', f's_add_u32 {T5}, {T4}, 4096']
        post += [f'v_accvgpr_read_b32 v{88+j}, a{244+j}' for j in range(4)] + [f'v_accvgpr_read_b32 v{92+j}, a{240+j}' for j in range(4)]
        left = self.small_gemm(14, H_, ACC, None, self.rest, 144, pre=pre, bg=self.w4_units(1), cinit=False, fill=post, npre=self.opt.get('fpre', 6))
        for pp in range(2):
            for k in range(4*pp, 4*pp+4):
                a(f'v_pk_fma_f32 {vr(ACC+2*k,2)}, {vr(RES+2*k,2)}, v[240:241], {vr(ACC+2*k,2)} op_sel_hi:[1,0,1]')
            self.run(self.gelu_pk(ACC + 8*pp, 4, 32 + 4*pp, 48))
            for q in range(4): a(f'v_and_b32 v{32+4*pp+q}, v{88+2*pp+(q>>1)}, v{32+4*pp+q}')
            Lm = a.label('mix'); Le = a.label('mixe')
            so = T5 if pp else T4
            a(f's_cmp_eq_u32 {CG}, {1 if pp else 5}\ns_cbranch_scc1 {Lm}')
            a(f'buffer_store_dwordx4 {vr(32+4*pp,4)}, v{92+2*pp}, {WS}, {so} offen sc1', 'st')
            a(f's_branch {Le}\n{Lm}:')
            a.raw(f'buffer_store_dwordx2 {vr(32+4*pp,2)}, v{92+2*pp}, {WS}, {so} offen sc1')
            a.raw(f'buffer_store_dwordx2 {vr(34+4*pp,2)}, v{93+2*pp}, {WS}, {so} offen offset:2048 sc1')
            a(f'{Le}:')
        work = self.trA(S0, False) + self.bstream(range(5), False, 144) + self.w4_read(1) + self.bstream(range(5, 14), False, 144) + self.unpack(RES, HPK, 8)
        for k in range(8):
            work += [f'v_pk_add_f32 {vr(RES+2*k,2)}, {vr(RES+2*k,2)}, v[240:241] op_sel_hi:[1,0]', f'v_pk_mul_f32 {vr(RES+2*k,2)}, {vr(RES+2*k,2)}, v[240:241] op_sel:[0,1] op_sel_hi:[1,1]']
        work += [f'v_lshrrev_b32 v96, 1, {VA16}', f's_add_u32 {T3}, {RB57}, {G_}', f's_lshl_b32 {T2}, {RB}, 3', f's_sub_u32 {T2}, {T2}, 8', self.W(lg='all')]
        self.finish(3, SLOTA, work, left + self.img3(0, S1, 'w3a') + self.w4_units(2), split=self.opt.get('sp3', 650))

    AF6, ACC6, CT6 = 32, 144, 208
    def woff(self, i): return (32 * (i >> 1) + 8 * (i & 1)) * 128
    def wread(self, t, i, slot, tag):
        b = 224 + 4 * slot; ar = [6, 7, 4, 5][t]
        return [(f'ds_read_b64_tr_b16 a[{b}:{b+1}], v{ar} offset:{self.woff(i)}', tag), (f'ds_read_b64_tr_b16 a[{b+2}:{b+3}], v{ar} offset:{self.woff(i)+2048}', tag)]
    def colsum6(self, ar, dst, tg):
        L = []
        rd = lambda i: [(f'ds_read_b64_tr_b16 {vr(176+4*(i%8),2)}, v{ar} offset:{self.woff(i)}', f'{tg}{i}'), (f'ds_read_b64_tr_b16 {vr(178+4*(i%8),2)}, v{ar} offset:{self.woff(i)+2048}', f'{tg}{i}')]
        G = []
        for i in range(5): L += rd(i)
        for i in range(28):
            g = [self.W(lg=f'{tg}{i}'), f'v_mfma_f32_32x32x16_bf16 {vr(dst,16)}, {vr(176+4*(i%8),4)}, v[12:15], {vr(dst,16) if i else 0}']
            if i + 5 < 28: g += rd(i + 5)
            G.append(g)
        return L, G

    def p5(self):
        a = self.a
        CT = self.CT6
        left = self.small_gemm(14, G_, RES, (3, T2, '0x7f7f7f', '0x7f00'), self.w4_read(2), 144, split8=(3, 10),
                               bg=self.img3(1792, S0, 'w3b'))
        self.run(flat(left))
        self.tile_out(RES, 32, X1_, STX)
        work = self.unpack(48, HPK, 8) + [f'v_pk_add_f32 {vr(RES+2*k,2)}, {vr(RES+2*k,2)}, {vr(48+2*k,2)}' for k in range(8)]
        work += self.w4_read(3)[:3]
        u4 = self.w4_units(3)
        self.u4 = u4
        setup4 = [x for x in u4[0] if not (isinstance(x, tuple) or (isinstance(x, str) and x.startswith('s_')))]
        u4[0] = [x for x in u4[0] if x not in setup4]
        work += setup4
        work += S(f"""v_accvgpr_read_b32 v4, {aB0}
            v_xor_b32 v5, 64, v4
            v_add_u32 v6, {S1}, v4
            v_add_u32 v7, {S1}, v5
            s_and_b32 {T5}, {WAVE}, 1
            s_lshl_b32 {T0}, {T5}, 6
            s_lshr_b32 {T4}, {WAVE}, 1
            s_xor_b32 {T1}, {T4}, 1
            s_mul_i32 {T1}, {T1}, {S1}
            v_xor_b32 v8, {T0}, v4
            v_add_u32 v8, {T1}, v8""")
        work += [f'v_mov_b32 v{12+d}, {ONES}' for d in range(4)]
        misc = S(f"""v_lshrrev_b32 v11, 5, {LANE}
            v_lshlrev_b32 v0, 6, v11
            v_add_u32 v0, {CS}, v0
            s_lshl_b32 {T0}, {WAVE}, 7
            v_add_u32 v9, {T0}, v0
            s_lshl_b32 {T0}, {TEAM}, 1
            s_add_u32 {T4}, {T4}, {T0}
            s_lshl_b32 {T5}, {T5}, 9
            s_mul_i32 {T3}, {T4}, 57344
            s_add_u32 {T3}, {T3}, {T5}
            s_add_u32 {T3}, {T3}, {X1_}
            s_lshl_b32 {T6}, {T4}, 12
            s_lshr_b32 {T7}, {T5}, 1
            s_add_u32 {T6}, {T6}, {T7}
            s_add_u32 {T6}, {T6}, {STX}
            s_mul_i32 {T4}, {T4}, {224*1024}
            s_add_u32 {T4}, {T4}, {T5}
            s_lshl_b32 {T1}, {MEM}, 13
            s_add_u32 {T4}, {T4}, {T1}
            s_add_u32 {T4}, {T4}, {U_}
            v_and_b32 v10, 31, {LANE}
            v_lshlrev_b32 v10, 3, v10
            v_lshl_add_u32 v10, v11, 11, v10
            v_lshl_add_u32 v11, v11, 30, v10
            s_lshl_b32 {T2}, {TEAM}, 4""")
        work += misc
        wr0 = []
        for i in range(4): wr0 += self.wread(0, i, 2*i, f'w{i}') + self.wread(1, i, 2*i+1, f'w{i}')
        L, G = self.colsum6(8, CT, 'c')
        self.rest = self.hop(4, SLOTA, work, [], (TEAM, 4), '0x7f7f', after=L + self.zipper(G, wr0), t=self.HT())

    def p6(self):
        a = self.a
        AF, ACC, CT, PK = self.AF6, self.ACC6, self.CT6, 8
        def aload(i):
            u = [f's_add_u32 {T3}, {T3}, 4096'] if i and i % 2 == 0 else []
            return u + [(f'buffer_load_dwordx4 {vr(AF+4*i,4)}, {V32}, {WS}, {T3} offen offset:{(i&1)*2048} sc1', f'a{i}')]
        U = [aload(i) for i in range(28)]
        SL = [[(f'buffer_load_dwordx2 {vr(240+2*q,2)}, v{10 if q < 3 else 11}, {WS}, {T6} offen offset:{512*q} sc1', 'sl')] for q in range(4)]
        U = U[:8] + SL + U[8:]
        L, left = weave(self.rest, U, gap=64)
        self.run(L)
        PRE = max(self.opt.get('p6pre', 7), len(U) - len(left))
        self.run(flat(U[len(U) - len(left):PRE]))
        U = U[PRE:] + self.u4
        self.stamp('init')
        p2 = [(2, i) for i in range(28)] + [(3, i) for i in range(28)]
        fill = [f'v_add_f32 v{240+k}, v{240+k}, v{242+k}' for k in range(2)] + [f'v_add_f32 v{244+k}, v{244+k}, v{246+k}' for k in range(2)] + [f'v_add_f32 v{240+k}, v{240+k}, v{244+k}' for k in range(2)]
        fill += self.fin_stats(['32']) + [f'v_add_f32 v243, {hf(EPS)}, v242', 'v_rsq_f32 v247, v243'] + self.gelu_consts(247)
        fill += [self.W(lg='ct')] + [f'v_mul_f32 v{ACC+32+k}, v{ACC+32+k}, v240' for k in range(32)]
        side = {1: ['s_mov_b32 exec_lo, 1', 's_mov_b32 exec_hi, 1'] + [(f'ds_write_b128 v9, {vr(CT+4*q,4)} offset:{16*q}', 'cs') for q in range(4)] + ['s_mov_b64 exec, -1'],
                3: [self.W(lg='cs'), 's_barrier']}
        for t in range(4):
            d = CT + 16*t if t < 2 else ACC + 16*t
            for hh in range(2): side[4 + 2*t + hh] = [(f'ds_read_b128 {vr(d+4*q,4)}, v0 offset:{t*128+16*q}', 'ct') for q in (2*hh, 2*hh+1)]
        for i in range(28):
            a.wait(vm=f'a{i}', lg=f'w{i}')
            sl = 2 * (i % 4)
            for t in range(2):
                a(f'v_mfma_f32_32x32x16_bf16 {vr(ACC+16*t,16)}, a[{224+4*(sl+t)}:{227+4*(sl+t)}], {vr(AF+4*i,4)}, {vr(ACC+16*t,16) if i else 0}')
                if i + 4 < 28: self.run(self.wread(t, i + 4, sl + t, f'w{i+4}'))
                else:
                    n = 2 * (i - 24) + t
                    self.run(self.wread(p2[n][0], p2[n][1], n % 8, f'y{n}'))
                if U and (t == 0 or i < 6 or len(U) >= 28 - i): self.run(U.pop(0))
                if t == 1:
                    self.run(side.get(i, []))
                    if i >= 9: self.run(fill[:3]); fill = fill[3:]
        assert not U and not fill, (len(U), len(fill))
        for k in range(16): a(f'v_pk_fma_f32 {vr(ACC+2*k,2)}, {vr(CT+2*k,2)}, v[240:241], {vr(ACC+2*k,2)} op_sel_hi:[1,0,1]')
        self.stamp('pass1')
        def half(t, p, f):
            L = [f's_add_u32 {T0}, {T4}, {(t>>1)*114688 + (t&1)*4096}'] if p == 0 else []
            return L + f(ACC + 16*t + 8*p, 4, PK + 4*p, CT) + [(f'buffer_store_dwordx4 {vr(PK+4*p,4)}, {V32}, {WS}, {T0} offen offset:{p*2048} sc1', 'st')]
        for t in range(2):
            for p in range(2): self.run(half(t, p, self.gelu_pk))
        self.stamp('early')
        mm = []
        for n, (t, i) in enumerate(p2):
            b = 224 + 4 * (n % 8)
            g = [self.W(lg=f'y{n+1}')] if n % 2 == 0 else []
            g += [f'v_mfma_f32_32x32x16_bf16 {vr(ACC+16*t,16)}, a[{b}:{b+3}], {vr(AF+4*i,4)}, {vr(ACC+16*t,16)}']
            if n + 8 < 56: g += self.wread(p2[n+8][0], p2[n+8][1], n % 8, f'y{n+8}')
            mm.append(g)
        r3 = self.w4_read(3)[3:]
        u5 = self.w4_units(4)
        u5[0] = [x for x in u5[0] if not (isinstance(x, str) and x.startswith('v_'))]
        for k in range(16): mm[k] += ([r3[0]] if k == 0 else []) + [r3[1+k]]
        mm[17] += [f's_lshl_b32 {T2}, {TEAM}, 4', f'v_add_u32 v254, {T2}, {LANE}', 'v_lshlrev_b32 v254, 8, v254']
        EF = self.opt.get('p6ef', 22)
        mm[EF] += [self.W(vm='st'), 's_barrier', self.flag(5, SLOTB)]
        for k in range(12): mm[EF + 2 + 2*k] += u5[k]
        self.run(flat(mm[:30]))
        self.run(self.zipper(mm[30:], half(2, 0, self.gelu_sc)))
        self.stamp('pass2')
        self.run(half(2, 1, self.gelu_pk))
        self.run(half(3, 0, self.gelu_pk))
        self.run(self.wpoll_issue(5, '0x3fff'))
        self.run(half(3, 1, self.gelu_pk))
        self.stamp('st')
        RP = 16 * 1040
        work = self.w4_read(4)[3:]
        work += S(f'''v_lshrrev_b32 v250, 4, {LANE}
            v_mul_u32_u24 v250, 1040, v250
            v_and_b32 v251, 15, {LANE}
            v_lshl_add_u32 v250, v251, 4, v250
            s_lshl_b32 {T0}, {WAVE}, 8
            s_add_u32 {T0}, {T0}, {4*RP}
            v_add_u32 v250, {T0}, v250''')
        work += [(f'ds_write_b128 v250, {vr(RES+4*j,4)} offset:{4*j*1040}', 'rs') for j in range(4)]
        work += S(f'''v_lshrrev_b32 v4, 5, {LANE}
            v_mul_u32_u24 v4, 1040, v4
            v_and_b32 v251, 31, {LANE}
            v_lshl_add_u32 v4, v251, 4, v4
            s_mul_i32 {T1}, {WAVE}, {RP}
            v_add_u32 v4, {T1}, v4
            v_and_b32 v251, 7, {LANE}
            v_mul_u32_u24 v5, 2080, v251
            v_lshrrev_b32 v7, 3, {LANE}
            v_lshl_add_u32 v5, v7, 4, v5
            s_lshl_b32 {T1}, {WAVE}, 7
            v_add_u32 v5, {T1}, v5
            v_add_u32 v6, {3*RP}, v5
            v_mul_u32_u24 v7, 896, v7
            v_lshl_add_u32 v7, v251, 4, v7
            s_mul_i32 {T6}, {RB}, {224*1024}
            s_mul_i32 {T1}, {WAVE}, 28672
            s_add_u32 {T6}, {T6}, {T1}
            s_add_u32 {T6}, {T6}, {U_}
            s_lshl_b32 {T4}, {RB}, 3
            s_add_u32 {T4}, {T4}, {WAVE}
            s_mul_i32 {T4}, {T4}, {8*896}
            s_lshl_b32 {T5}, {CG}, 7
            s_add_u32 {T4}, {T4}, {T5}
            s_add_u32 {T5}, {T4}, {32*896}
            s_lshl_b32 {T2}, {TEAM}, 4''')
        self.p7work = work

    def p7(self):
        a = self.a
        ACC, AF, NS, R = 32, 144, 24, 96
        RP = 16 * 1040
        seq = [(tm, 14*hf_ + k) for hf_ in range(2) for tm in range(2) for k in range(14)]
        def aload(n):
            tm, i = seq[n]
            u = []
            if n % 14 == 0: u.append(f's_add_u32 {T3}, {T6}, {512*tm + (114688 if i >= 14 else 0)}')
            elif i % 2 == 0: u.append(f's_add_u32 {T3}, {T3}, 4096')
            return u + [(f'buffer_load_dwordx4 {vr(AF+4*(n%NS),4)}, {V32}, {WS}, {T3} offen offset:{(i&1)*2048} sc1', f'a{n}')]
        def wr(tm): return [(f'ds_write_b128 v4, {vr(ACC+16*(2*tm+tn)+4*q,4)} offset:{(8*tn+2*q)*1040 + tm*512}', 'rd') for tn in range(2) for q in range(4)]
        def rd(tm):
            return [(f'ds_read_b128 {vr(R+(e*5+w)*4,4)}, {"v5" if w < 3 else "v6"} offset:{(w%3)*RP + e*1040 + tm*512}', 'rr') for e in range(2) for w in range(5)]
        def fin(tm, pk):
            L = []
            for e in range(2):
                b = R + e*20
                if pk:
                    for x, y in ((0, 4), (8, 12), (0, 16), (0, 8)):
                        L += [f'v_pk_add_f32 {vr(b+x+2*hh,2)}, {vr(b+x+2*hh,2)}, {vr(b+y+2*hh,2)}' for hh in range(2)]
                else:
                    for x, y in ((0, 4), (8, 12), (0, 16), (0, 8)):
                        L += [f'v_add_f32 v{b+x+d}, v{b+x+d}, v{b+y+d}' for d in range(4)]
                L += [f'v_cvt_pk_bf16_f32 v{8+4*tm+2*e+hh}, v{b+2*hh}, v{b+2*hh+1}' for hh in range(2)]
            L.append((f'buffer_store_dwordx4 {vr(8+4*tm,4)}, v7, {OUT}, {T5 if tm else T4} offen sc1', 'st'))
            return L
        PRE = self.opt.get('p7pre', 11)
        work = self.p7work
        k = next(i for i, x in enumerate(work) if isinstance(x, str) and x.startswith(f's_mul_i32 {T6}'))
        self.run(work[k:k+4]); work = work[:k] + work[k+4:]
        self.run([self.wpoll_check('0x3fff')])
        self.stamp('zpoll')
        L, left = weave(['s_barrier'] + work, [aload(n) for n in range(PRE)], gap=40)
        self.run(L); self.run(flat(left))
        a.wait(vm='st')
        a('s_barrier')
        self.flag(6, SLOTB)()
        a.wait(lg='all')
        self.stamp('zgo')
        side = {}
        w0 = wr(0); r0 = rd(0); f0 = [self.W(lg='rr')] + fin(0, False)
        for k in range(4): side[43 + k] = w0[2*k:2*k+2]
        side[48] = [self.W(lg='rd'), 's_barrier'] + r0[:5]
        side[49] = r0[5:]
        for k in range(5): side[51 + k] = f0[(len(f0)*k)//5:(len(f0)*(k+1))//5]
        PI, PC = self.opt.get('p7pi', 13), self.opt.get('p7pc', 22)
        nxt = PRE
        for n in range(56):
            tm, i = seq[n]
            a.wait(vm=f'a{n}')
            for tn in range(2):
                b = (i * 2 + tn) * 4; c = ACC + 16 * (2*tm + tn)
                a(f'v_mfma_f32_32x32x16_bf16 {vr(c,16)}, a[{b}:{b+3}], {vr(AF+4*(n%NS),4)}, {vr(c,16) if i else 0}')
                if n == PI and tn == 0: self.run(self.wpoll_issue(6, '0x3fff'))
                if n == PC and tn == 0: self.run([self.wpoll_check('0x3fff'), self.ST('zlate')])
                lim = 56 if n >= PC else 28
                if nxt < min(lim, n + PRE + 1) : self.run(aload(nxt)); nxt += 1
            self.run(side.get(n, []))
        self.stamp('mm')
        self.run(wr(1))
        a.wait(lg='all')
        a('s_barrier')
        self.run(rd(1))
        a.wait(lg='all')
        self.run(fin(1, True))
        self.stamp('zdone')

    def pf(self, srd, start, nbytes, parts, idx, rot=True, fl='', stride=1):
        a = self.a
        per = -(-nbytes // parts // (128*stride)) * 128*stride
        n = -(-per // (32768*stride))
        a(f's_mul_i32 {T0}, {idx}, {per}\ns_add_u32 {T0}, {T0}, {start}')
        if rot and n > 1:
            a(f's_lshr_b32 {T1}, {TEAM}, 1\ns_mul_i32 {T1}, {T1}, {n}\ns_lshr_b32 {T1}, {T1}, 3')
        else:
            a(f's_mov_b32 {T1}, 0')
        a(f's_mov_b32 {T3}, {n}')
        L = a.label('pf')
        a(f'{L}:')
        lg = stride.bit_length() - 1
        a(f's_lshl_b32 {T2}, {T1}, {15+lg}\nv_lshl_add_u32 v41, v40, {lg}, {T2}\nv_cmp_gt_u32 vcc, {per}, v41')
        a(f's_add_u32 {T1}, {T1}, 1\ns_cmp_ge_u32 {T1}, {n}\ns_cselect_b32 {T1}, 0, {T1}')
        a(f'v_cndmask_b32 v41, v42, v41, vcc')
        a.raw(f'buffer_load_dword v43, v41, {srd}, {T0} offen {fl}')
        a(f's_sub_u32 {T3}, {T3}, 1\ns_cmp_lg_u32 {T3}, 0\ns_cbranch_scc1 {L}')

    def helper_setup(self):
        a = self.a
        a(f'v_lshl_add_u32 v40, {WAVE}, 6, {LANE}\nv_lshlrev_b32 v40, 7, v40\nv_mov_b32 v42, {OOB}')
        a(f's_lshl_b32 {T5}, {TEAM}, 1\ns_add_u32 {T5}, {T5}, {MEM}\ns_sub_u32 {T5}, {T5}, 14\ns_and_b32 {T4}, {T5}, 3')
    def pf_w4(self, j0, j1):
        self.a(f's_mul_i32 {T6}, {T4}, {224*896}\ns_add_u32 {T6}, {T6}, {self.w4row(j0)*896}')
        self.pf(W4, T6, (j1 - j0)*32*896, 1, 0)
    def pf_w3(self, half):
        a = self.a
        a(f'v_lshrrev_b32 v41, 11, v40\nv_mul_u32_u24 v41, 3584, v41\nv_and_b32 v44, 0x780, v40\nv_add_u32 v41, v41, v44\nv_cmp_gt_u32 vcc, 0x700, v44')
        a(f's_mul_i32 {T0}, {T4}, {112*3584}\ns_add_u32 {T0}, {T0}, {1792*half}\nv_cndmask_b32 v41, v42, v41, vcc')
        for k in range(7):
            a.raw(f'buffer_load_dword v43, v41, {W3}, {T0} offen')
            a(f's_add_u32 {T0}, {T0}, {16*3584}')

    def helper_head(self):
        a = self.a
        pf = self.opt.get('pf', 1)
        self.run(self.late_loads())
        self.run(self.setup1())
        self.helper_setup()
        a.raw('s_waitcnt lgkmcnt(0)')
        if pf:
            self.pf(WO, 0, 448*896, 32, T5, rot=False)
            self.pf(WS, FLAGS, 7*65536, 32, T5, rot=False, fl='sc1', stride=2)
            hm = self.opt.get('hm', 3)
            if hm == 1:
                self.pf(W4, 0, 1792*896, 32, T5, rot=False)
                self.pf(W1, 0, 448*896, 32, T5, rot=False)
                self.pf(W2, 0, 448*896, 32, T5, rot=False)
                self.pf(W3, 0, 448*3584, 32, T5, rot=False)
            if hm == 3:
                a(f's_mul_i32 {T6}, {T4}, {224*896}\ns_lshr_b32 {T7}, {TEAM}, 1')
                self.pf(W4, T6, 192*896, 8, T7, rot=False)
                self.pf(W1, 0, 448*896, 32, T5, rot=False)
                self.pf(W2, 0, 448*896, 32, T5, rot=False)
                self.pf(WO, 0, 448*896, 4, T4)
            if hm == 2:
                self.pf(WO, 0, 448*896, 4, T4)
                self.pf_w4(0, 3)
        self.run(self.p2_setup() + self.setup2())
        self.run(self.get_tag())
        a(f's_lshl_b32 {T0}, {TEAM}, 1\ns_add_u32 {T0}, {T0}, {MEM}\ns_sub_u32 {T0}, {T0}, 14\ns_lshl_b32 {T0}, {T0}, 3\ns_add_u32 {T0}, {T0}, 7')
        self.flag(0, T0)()
        if self.opt.get('hsl', 0): a(f's_sleep {self.opt["hsl"]}')
        self.stamp('c')

    def helper_tail(self):
        a = self.a
        self.finish(1, SLOTB, fast=True)
        self.helper_setup()
        if self.opt.get('pf', 1):
            if self.opt.get('hm', 3) == 3:
                self.pf(W3, 0, 448*3584, 32, T5, rot=False)
                self.pf(W4, 896*896, 896*896, 32, T5, rot=False)
            if self.opt.get('pfg', 0): self.pf(WS, G_, 32*57344, 32, T5, rot=False, fl='sc1')
            self.pf_w3(0)
            self.stamp('d')
            self.pf_w4(6, 7); self.pf_w4(7, 9)
            self.stamp('e')
            self.pf_w3(1)
            self.stamp('f')
            self.pf_w4(9, 14)
            a.raw('s_waitcnt vmcnt(0)')
            self.stamp('g')
        if self.opt.get('fast', 1) and self.opt.get('wb', 0):
            Lw = a.label('nowb')
            a(f's_and_b32 {T2}, {SLOTB}, 31\ns_cmp_lg_u32 {T2}, 31\ns_cbranch_scc1 {Lw}')
            a(f's_sub_u32 {T2}, {SLOTB}, 31')
            self.poll(5, T2, '0x3fff3fff')
            a(f's_cmp_lg_u32 {WAVE}, 0\ns_cbranch_scc1 L_fin')
            a.raw('buffer_wbl2 sc1')
            a(f's_branch L_fin\n{Lw}:')
        a(f's_cmp_lg_u32 {SLOTB}, 15\ns_cbranch_scc1 L_fin')
        for q in range(4):
            a(f's_mov_b32 {T2}, {64*q}')
            self.poll(0, T2, '-1')
        a(f's_cmp_lg_u32 {WAVE}, 0\ns_cbranch_scc1 L_fin')
        a(f'v_mov_b32 v254, {TAG}\nv_mov_b32 v255, 0\ns_mov_b64 exec, 1')
        a.raw(f'buffer_store_dword v254, v255, {WS}, 0 offen sc1')
        a('s_mov_b64 exec, -1')
        a('s_branch L_fin')

    def build(self):
        a = self.a
        self.prologue()
        a('s_cbranch_scc0 L_p1')
        if self.opt.get('pf', 1):
            a(f's_lshl_b32 s68, {TEAM}, 1\ns_add_u32 s68, s68, {MEM}\ns_sub_u32 s68, s68, 14\ns_mul_i32 s68, s68, {294*128}')
            a.raw(f'buffer_load_dword v43, v40, {WQ}, s68 offen')
            a(f's_add_u32 s68, s68, {256*128}\nv_cmp_gt_u32 vcc, {38*128}, v40\ns_and_saveexec_b64 s[58:59], vcc\ns_cbranch_execz L_hx')
            a.raw(f'buffer_load_dword v43, v40, {WQ}, s68 offen')
            a('L_hx:\ns_mov_b64 exec, -1')
        a('s_branch L_hh')
        a('L_p1:')
        self.ph = 'p1'
        self.p1()
        a('L_att:')
        self.ph = 'p2'
        self.p2()
        a(f's_cmp_lt_u32 {MEM}, 14\ns_cbranch_scc1 L_p3')
        st = (list(a.vm), list(a.lg))
        self.ph = 'hh'
        self.helper_tail()
        a('L_hh:')
        a.vm, a.lg = [], []
        self.helper_head()
        a('s_branch L_att')
        a('L_p3:')
        a.vm, a.lg = st
        self.ph = 'p2'
        self.p2_finish()
        for n, f in enumerate((self.p3, self.p4, self.p5, self.p6, self.p7)):
            self.ph = f'p{n+3}'
            f()
        a('L_fin:')
        if self.stamps:
            a.raw('s_waitcnt vmcnt(0)')
            a('s_memrealtime s[60:61]\ns_memtime s[62:63]')
            a.raw('s_waitcnt lgkmcnt(0)')
            a(f's_cmp_lg_u32 {WAVE}, 0\ns_cbranch_scc1 L_end')
            a(f's_lshl_b32 {T0}, s2, 8\ns_add_u32 {T0}, {T0}, {STAMPS}\ns_mov_b64 exec, 1\nv_mov_b32 v255, 0')
            for i in range(self.nstamp):
                a(f'v_mov_b32 v254, s{100-2*i}')
                a.raw(f'buffer_store_dword v254, v255, {WS}, {T0} offen offset:{4*i}')
            for i, r in enumerate(('s101', 's60', 's62')):
                a(f'v_mov_b32 v254, {r}')
                a.raw(f'buffer_store_dword v254, v255, {WS}, {T0} offen offset:{240+4*i}')
        a('L_end:')
        a('s_endpgm')
        hdr = open('cdna_kernels/' + NAME + '.s.ref').read().split('; Override')[0]
        hdr += '; Generated by a hand-written generator script (persistent fused kernel, one workgroup per CU).\n'
        hdr += '; @launch grid=(256,1,1) block=(256,1,1) lds=163840\n'
        hdr += f'.amdgcn_target "amdgcn-amd-amdhsa--gfx950"\n.text\n.globl {NAME}_kernel\n.p2align 8\n.type {NAME}_kernel,@function\n{NAME}_kernel:\n'
        kd = f"""
.section .rodata,"a"
.p2align 6
.amdhsa_kernel {NAME}_kernel
  .amdhsa_next_free_vgpr 512
  .amdhsa_next_free_sgpr 102
  .amdhsa_accum_offset 256
  .amdhsa_group_segment_fixed_size 0
  .amdhsa_kernarg_size 88
  .amdhsa_user_sgpr_count 2
  .amdhsa_user_sgpr_kernarg_segment_ptr 1
  .amdhsa_system_sgpr_workgroup_id_x 1
.end_amdhsa_kernel
"""
        return hdr + a.text() + kd

if __name__ == '__main__':
    import argparse
    ap = argparse.ArgumentParser()
    ap.add_argument('-o', default='cdna_kernels/' + NAME + '.s')
    ap.add_argument('--stamps', default='')
    ap.add_argument('opts', nargs='*')
    args = ap.parse_args()
    g = Gen()
    g.stamps = bool(args.stamps)
    g.sel = args.stamps.split(',') if args.stamps != 'z' else [f'p{i}.z' for i in range(8)]
    g.opt = {k: int(v) for k, v in (o.split('=') for o in args.opts)}
    txt = g.build()
    open(args.o, 'w').write(txt)
    if args.stamps: open(args.o + '.stamps', 'w').write('\n'.join(g.stamp_names))
    print('instructions', len(g.a.ins), 'auto nops', g.a.nops, file=sys.stderr)
```

```python
import sys, struct, math
sys.path.insert(0, 'gen')
from asm import Asm, vr

NAME = 'sequential_preLN__sliding_block__mixer_s_mlp__prompt'
def f2u(x): return struct.unpack('<I', struct.pack('<f', x))[0]
def hx(x): return '0x%08x' % (x & 0xffffffff)
def hf(x): return hx(f2u(x))

FLAGS = 0x10000
QKV, O_, H_, G_, X1_, U_ = 0x100000, 0x700000, 0x900000, 0xB00000, 0x900000, 0xF00000
STH, STX = 0x80000, 0x80000
STAMPS = 0x2000000
OOB = 0x40000000
S0, S1, S2 = 0, 57344, 114688
KP = 3104
KB, VB = S1, S1 + 8 * KP
CS = S2 + 49152 - 1024
XP = 912
WSL = 64 * XP
RSD = WSL + 12 * 8192
WS, XS, WQ, WO, W1, W2, W3, W4, OUT = 's[4:7]', 's[8:11]', 's[12:15]', 's[16:19]', 's[20:23]', 's[24:27]', 's[28:31]', 's[32:35]', 's[36:39]'
TEAM, MEM, RB, CG, WAVE, TAG, RH, SLOTA, SLOTB = 's40', 's41', 's42', 's43', 's44', 's45', 's46', 's47', 's3'
ONES, LO1, HI1, FL0 = 's48', 's49', 's50', 's51'
T0, T1, T2, T3, T4, T5, T6, T7 = 's52', 's53', 's54', 's55', 's56', 's57', 's58', 's59'
D0, D1 = 's64', 's65'
FAST, XCC, PC0, PC1 = 's60', 's61', 's62', 's63'
FSC = S1 + 16 * KP
WV14, WV12, IMG9, W4O, IMG3, TB16, STO, RB57 = 's66', 's67', 's68', 's69', 's70', 's71', 's72', 's73'
NSTAMP = 14
VO = 248
aA0, aB0, aVA, aVB, aVC = 'a248', 'a249', 'a250', 'a251', 'a252'
NBIG = f2u(-1e30)
EPS = 1e-5
QSCALE = (28 ** -0.5) * math.log2(math.e)
K1 = -2 * math.sqrt(2 / math.pi) * math.log2(math.e)
K2 = K1 * 0.044715
LANE, VA16, V32 = 'v1', 'v2', 'v3'
HPK = 8
RES = 16

def S(text): return [l.strip() for l in text.split('\n') if l.strip()]
def flat(G): return [x for g in G for x in g]
def cost(it):
    if callable(it): return 4
    t = it[0] if isinstance(it, tuple) else it
    if '\n' in t: return sum(cost(x) for x in t.split('\n'))
    if t.startswith('v_mfma'): return 18 if '32x32' in t else 6
    if t.startswith(('v_exp', 'v_rcp', 'v_rsq')): return 8
    if t.startswith('ds_read_b128'): return 16
    if t.startswith('ds_write_b128'): return 28
    if t.startswith('ds_'): return 8
    if t.startswith('buffer_'): return 22
    return 4.5
def weave(main, units, gap=64, first=0):
    out = []; acc = gap - first; units = list(units)
    for it in main:
        if units and acc >= gap:
            u = units.pop(0); out += u; acc = sum(cost(x) for x in u)
        out.append(it); acc += cost(it)
    return out, units

class Gen:
    def __init__(self):
        self.a = Asm()
        self.stamps = False
        self.nstamp = 0
        self.stamp_names = []
        self.ph = 'p0'
        self.sel = []
        self.opt = {}

    def stamp(self, name):
        name = self.ph + '.' + name
        if not self.stamps: return
        if name != 'p0.start' and not any(name.startswith(p) for p in self.sel): return
        i = self.nstamp; self.nstamp += 1
        assert i < NSTAMP
        self.stamp_names.append(name)
        self.a(f's_memtime s[{100-2*i}:{101-2*i}]')
    def ST(self, name): return lambda: self.stamp(name)

    def run(self, items):
        for it in items:
            if callable(it): it()
            elif isinstance(it, tuple): self.a(it[0], it[1])
            else: self.a(it)

    def zipper(self, main, fill):
        n = len(main); out = []; k = 0
        for i, g in enumerate(main):
            out += g
            upto = (len(fill) * (i + 1)) // n
            out += fill[k:upto]; k = upto
        return out

    def W(self, vm=None, lg=None): return lambda: self.a.wait(vm=vm, lg=lg)

    def WR(self, rnd):
        def f():
            assert self.a.cnt.get('w4r', 0) == 8 * sum(len(t) for t in self.W4R[:rnd]), ('w4r', rnd, self.a.cnt.get('w4r', 0))
            self.a.wait(lg='w4r')
        return f
    def WN(self, tag, n, lg=None):
        def f():
            assert self.a.cnt.get(tag, 0) == n, (tag, self.a.cnt.get(tag, 0), n)
            self.a.wait(vm=tag, lg=lg)
        return f

    def finish(self, phase, slot, work=[], units=[], split=800, post=[], fast=False):
        a = self.a
        self.stamp('st')
        if work or units:
            a.wait(lg='all')
            a('s_barrier')
        L, left = weave(work, units)
        L += flat(left)
        acc = 0; cut = len(L); nd = 0
        for i, it in enumerate(L):
            t = it[0] if isinstance(it, tuple) else (it if isinstance(it, str) else '')
            if t.startswith('buffer_load'): nd += 1
            acc += cost(it)
            if acc >= split or nd > 9: cut = i; break
        self.run(L[:cut])
        self.stamp('bg1')
        a(f's_lshl_b32 {FL0}, {slot}, 8\ns_add_u32 {FL0}, {FL0}, {FLAGS + phase * 65536}')
        a(f'v_mov_b32 v254, {TAG}\nv_lshlrev_b32 v255, 2, {LANE}')
        if phase == 0: a(f'v_or_b32 v254, {XCC}, v254')
        a.wait(vm='st', lg=(None if (work or units) else 'all'))
        self.stamp('drain')
        a('s_barrier')
        self.stamp('zflag')
        Lb = a.label('sig')
        a(f's_cmp_lg_u32 {WAVE}, 0\ns_cbranch_scc1 {Lb}')
        a('s_mov_b32 exec_hi, 0')
        if fast: self.fstore([f'buffer_store_dword v254, v255, {WS}, {FL0} offen'], None)
        else: a.raw(f'buffer_store_dword v254, v255, {WS}, {FL0} offen sc1')
        a('s_mov_b32 exec_hi, -1')
        a(f'{Lb}:')
        self.run(L[cut:])
        self.run(post)
        self.stamp('bg2')

    def fstore(self, stores, tag='st'):
        a = self.a
        if not self.opt.get('fast', 1):
            for t in stores: (a(t + ' sc1', tag) if tag else a.raw(t + ' sc1'))
            return
        Lf = a.label('fs'); Le = a.label('fe')
        a(f's_cmp_lg_u32 {FAST}, 0\ns_cbranch_scc0 {Lf}')
        for t in stores: (a(t, tag) if tag else a.raw(t))
        a(f's_branch {Le}\n{Lf}:')
        for t in stores: a.raw(t + ' sc1')
        a(f'{Le}:')

    def flag(self, phase, slot):
        def f():
            a = self.a
            Lb = a.label('sig')
            a(f's_cmp_lg_u32 {WAVE}, 0\ns_cbranch_scc1 {Lb}')
            a(f's_lshl_b32 {FL0}, {slot}, 8\ns_add_u32 {FL0}, {FL0}, {FLAGS + phase * 65536}')
            a(f'v_mov_b32 v242, {TAG}\nv_lshlrev_b32 v243, 2, {LANE}\ns_mov_b32 exec_hi, 0')
            a.raw(f'buffer_store_dword v242, v243, {WS}, {FL0} offen sc1')
            a('s_mov_b32 exec_hi, -1')
            a(f'{Lb}:')
        return f
    def wpoll_issue(self, phase, mask):
        return [f's_mov_b32 {PC1}, {FLAGS + phase * 65536}', f's_mov_b64 exec, {mask}', (f'buffer_load_dword v255, v254, {WS}, {PC1} offen sc1', 'pl'), 's_mov_b64 exec, -1']
    def wpoll_check(self, mask):
        def f():
            a = self.a
            P = a.label('wp'); K = a.label('wpok')
            a(f's_mov_b32 {PC0}, 300000\ns_mov_b64 exec, {mask}')
            a.wait(vm='pl')
            a(f'{P}:')
            a(f'v_cmp_ne_u32 vcc, {TAG}, v255\ns_sub_u32 {PC0}, {PC0}, 1\ns_cbranch_vccz {K}')
            a.raw(f'buffer_load_dword v255, v254, {WS}, {PC1} offen sc1')
            a.raw('s_waitcnt vmcnt(0)')
            a(f's_cmp_gt_i32 {PC0}, 0\ns_cbranch_scc1 {P}')
            a(f'{K}:')
            a('s_mov_b64 exec, -1')
        return f

    def hop(self, phase, slot, work, units, base, mask, after=[], t=(380, 800, 1100)):
        a = self.a
        self.stamp('st')
        if units:
            a.wait(lg='all')
            a('s_barrier')
        L, left = weave(work, units)
        L += flat(left)
        acc = [0]
        def upto(lim):
            while L and acc[0] < lim:
                it = L.pop(0); acc[0] += cost(it); self.run([it])
        upto(t[0] if not after else 1e9)
        acc[0] = max(acc[0], t[0])
        L += after
        a(f's_lshl_b32 {FL0}, {slot}, 8\ns_add_u32 {FL0}, {FL0}, {FLAGS + phase * 65536}')
        a(f'v_mov_b32 v254, {TAG}\nv_lshlrev_b32 v255, 2, {LANE}')
        a.wait(vm='st')
        self.stamp('drain')
        a('s_barrier')
        self.stamp('zflag')
        Lb = a.label('sig')
        a(f's_cmp_lg_u32 {WAVE}, 0\ns_cbranch_scc1 {Lb}')
        a('s_mov_b32 exec_hi, 0')
        self.fstore([f'buffer_store_dword v254, v255, {WS}, {FL0} offen'], None)
        a('s_mov_b32 exec_hi, -1')
        a(f'{Lb}:')
        upto(t[1])
        a(f's_lshl_b32 {PC0}, {base[0]}, {base[1]}\nv_add_lshl_u32 v254, {PC0}, {LANE}, 8')
        self.run(self.wpoll_issue(phase, mask))
        upto(t[2])
        self.stamp('chk')
        self.run([self.wpoll_check(mask)])
        self.stamp('zpoll')
        return L

    def poll(self, phase, base, mask, first=None):
        a = self.a
        self.stamp('prepoll')
        L = a.label('pskip'); P = a.label('poll'); K = a.label('pok')
        a(f's_cmp_lg_u32 {WAVE}, 0\ns_cbranch_scc1 {L}')
        a(f'v_add_u32 v254, {base}, {LANE}\nv_and_b32 v254, 255, v254\nv_lshlrev_b32 v254, 8, v254')
        a(f's_mov_b32 {T0}, {FLAGS + phase * 65536}\ns_mov_b32 {T1}, 300000')
        if self.opt.get(f'dl{phase}', 0): a(f's_sleep {self.opt[f"dl{phase}"]}')
        for m in ([first] if first else []) + [mask]:
            P = a.label('poll'); K = a.label('pok')
            if phase == 0 and m is first: a(f's_cmp_lt_u32 {MEM}, 14\ns_cbranch_scc1 {K}')
            if isinstance(m, tuple): a(f's_mov_b32 exec_lo, {m[0]}\ns_mov_b32 exec_hi, {m[1]}')
            else: a(f's_mov_b64 exec, {m}')
            a(f'{P}:')
            a.raw(f'buffer_load_dword v255, v254, {WS}, {T0} offen sc1')
            a.raw('s_waitcnt vmcnt(0)')
            if phase == 0: a(f'v_xor_b32 v255, {TAG}, v255\nv_cmp_lt_u32 vcc, 15, v255')
            else: a(f'v_cmp_ne_u32 vcc, {TAG}, v255')
            a(f's_sub_u32 {T1}, {T1}, 1')
            a(f's_cbranch_vccz {K}')
            if self.opt.get(f'sl{phase}', 0): a(f's_sleep {self.opt[f"sl{phase}"]}')
            a(f's_cmp_gt_i32 {T1}, 0\ns_cbranch_scc1 {P}')
            a(f'{K}:')
        if phase == 0 and first:
            a(f's_mov_b32 exec_lo, 0\nv_cmp_ne_u32 vcc, {XCC}, v255\nv_mov_b32 v253, {FSC}\ns_cmp_eq_u64 vcc, 0\ns_cselect_b32 {FAST}, 1, 0\nv_mov_b32 v252, {FAST}')
            a.raw('ds_write_b32 v253, v252')
            a.raw('s_waitcnt lgkmcnt(0)')
        a('s_mov_b64 exec, -1')
        a(f'{L}:')
        a('s_barrier')
        self.stamp('zpoll')

    def voff_calc(self, v, pitch, typ):
        L = [f'v_lshrrev_b32 v252, 3, {LANE}', f'v_mul_u32_u24 {v}, {pitch}, v252']
        if typ == 'A': L += [f'v_lshrrev_b32 v252, 4, {LANE}', 'v_lshlrev_b32 v252, 1, v252']
        else: L += [f'v_bfe_u32 v252, {LANE}, 4, 1', 'v_lshlrev_b32 v252, 2, v252']
        L += [f'v_and_b32 v253, 7, {LANE}', 'v_xor_b32 v252, v252, v253', f'v_lshl_add_u32 {v}, v252, 4, {v}']
        return L
    def dma_units(self, srd, pitch, stash, src, srcadd, dst, dstadd, n, tag, pre=[]):
        if not isinstance(srcadd, list): srcadd = [srcadd + g*32*pitch for g in range((n + 3)//4)]
        U = []
        for i in range(n):
            u = []
            if i == 0:
                u += pre + [f'v_accvgpr_read_b32 v{VO}, {stash}']
                u += [f'v_add_u32 v{VO+k}, {k*(8*pitch-1024)}, v{VO}' for k in range(1, 4)]
            if i % 4 == 0:
                u.append(f's_add_u32 m0, {dst}, {dstadd + i*1024}')
                u.append(f's_add_u32 {D0}, {src}, {srcadd[i//4]}')
            u.append((f'buffer_load_dwordx4 v{VO+(i&3)}, {srd}, {D0} offen offset:{(i&3)*1024} lds', tag))
            U.append(u)
        return U
    def img9(self, srd, base, tag): return self.dma_units(srd, 896, aVA, IMG9, 0, WV14, base, 14, tag)
    def img3(self, col, base, tag): return self.dma_units(W3, 3584, aVC, IMG3, col, WV14, base, 14, tag)
    W4R = [(0, 1, 2), (3, 4, 5), (6, 7, 8), (9, 10), (11, 12, 13)]
    def w4_units(self, rnd):
        t = self.W4R[rnd]
        return self.dma_units(W4, 896, aVB, W4O, [self.w4row(j)*896 for j in t], WV12, 0, 4*len(t), f'w4_{rnd}', pre=[self.WR(rnd)])
    def w4row(self, j): return 32*j if j < 7 else 896 + 32*(j - 7)
    def w4_read(self, rnd):
        L = [f'v_accvgpr_read_b32 v253, {aB0}', f'v_add_u32 v253, {WV12}, v253', 'v_xor_b32 v252, 64, v253', self.WN(f'w4_{rnd}', 4*len(self.W4R[rnd]))]
        for n, t in enumerate(self.W4R[rnd]):
            for p in range(2):
                for tn in range(2):
                    b = ((2*t + p) * 2 + tn) * 4
                    off = n*4096 + p*2048
                    L.append((f'ds_read_b64_tr_b16 a[{b}:{b+1}], v{253-tn} offset:{off}', 'w4r'))
                    L.append((f'ds_read_b64_tr_b16 a[{b+2}:{b+3}], v{253-tn} offset:{off+1024}', 'w4r'))
        return L

    def prologue(self):
        a = self.a
        a('s_load_dwordx2 s[8:9], s[0:1], 0\ns_load_dwordx2 s[12:13], s[0:1], 8\ns_load_dwordx2 s[4:5], s[0:1], 80')
        a('s_cmp_ge_u32 s2, 256\ns_cbranch_scc1 L_end')
        self.stamp('start')
        if self.stamps: a('s_memrealtime vcc')
        a(f's_getpc_b64 s[60:61]\nL_pc:\ns_sub_u32 s60, s60, L_pc-{NAME}_kernel\ns_subb_u32 s61, s61, 0')
        a(f's_mov_b32 s62, L_end-{NAME}_kernel\ns_mov_b32 s63, 0x20000\ns_lshr_b32 s59, s2, 3\ns_lshl_b32 s59, s59, 7')
        a('v_lshlrev_b32 v41, 8, v0\nv_and_b32 v41, 0xf000, v41')
        a('buffer_load_dword v41, v41, s[60:63], s59 offen', 'code')
        a(f'v_and_b32 {LANE}, 63, v0\nv_lshlrev_b32 v40, 7, v0\nv_lshrrev_b32 v0, 6, v0')
        a(f's_and_b32 {TEAM}, s2, 7\ns_lshl_b32 {TEAM}, {TEAM}, 1\ns_lshr_b32 {MEM}, s2, 7\ns_add_u32 {TEAM}, {TEAM}, {MEM}')
        a(f's_bfe_u32 {MEM}, s2, 0x40003')
        a(f'v_readfirstlane_b32 {WAVE}, v0')
        a(f's_cmp_ge_u32 {MEM}, 7\ns_cselect_b32 {RH}, 1, 0\ns_mul_i32 {CG}, {RH}, 7\ns_sub_u32 {CG}, {MEM}, {CG}')
        a(f's_lshl_b32 {RB}, {TEAM}, 1\ns_add_u32 {RB}, {RB}, {RH}')
        a(f'v_lshrrev_b32 v250, 3, {LANE}\nv_and_b32 v251, 7, {LANE}\nv_mul_u32_u24 v239, 896, v250\nv_lshl_add_u32 v239, v251, 4, v239')
        a(f's_lshl_b32 {D0}, {RB}, 2\ns_add_u32 {D0}, {D0}, {WAVE}\ns_mul_i32 {D0}, {D0}, {16*896}\ns_add_u32 {D1}, {D0}, {8*896}')
        a(f's_lshl_b32 s66, {CG}, 7\ns_add_u32 s67, s66, {D1}\ns_add_u32 s66, s66, {D0}')
        a(f's_mov_b32 s10, {2048*896}\ns_mov_b32 s11, s63\ns_mov_b32 s14, {448*2688}\ns_mov_b32 s15, s63')
        a(f's_cmp_ge_u32 {MEM}, 14')
        a.raw('s_waitcnt lgkmcnt(0)')
        if self.stamps: a('s_mov_b32 s101, vcc_lo')

    def late_loads(self):
        return S("""s_load_dwordx2 s[16:17], s[0:1], 16
            s_load_dwordx2 s[20:21], s[0:1], 32
            s_load_dwordx2 s[24:25], s[0:1], 40
            s_load_dwordx2 s[28:29], s[0:1], 48
            s_load_dwordx2 s[32:33], s[0:1], 56
            s_load_dwordx2 s[36:37], s[0:1], 64
            s_mov_b32 s6, 0x10000000
            s_mov_b32 s7, 0x20000
            v_mov_b32 v255, 0""") + [(f'buffer_load_dword v4, v255, {WS}, 0 offen sc1', 'epoch')]

    def setup1(self):
        L = []
        for base, size in [(16, 448*896), (20, 448*896), (24, 448*896), (28, 448*3584), (32, 1792*896), (36, 2048*896)]:
            L += S(f's_mov_b32 s{base+2}, {size}\ns_mov_b32 s{base+3}, 0x20000')
        L += S(f"""s_lshl_b32 {SLOTA}, {RB}, 3
            s_add_u32 {SLOTA}, {SLOTA}, {CG}
            s_lshl_b32 {SLOTB}, {TEAM}, 4
            s_add_u32 {SLOTB}, {SLOTB}, {MEM}
            s_mul_i32 {WV14}, {WAVE}, 14336
            s_mul_i32 {WV12}, {WAVE}, 12288
            s_add_u32 {WV12}, {WV12}, {S2}
            s_lshl_b32 {T0}, {CG}, 7""")
        L.append(f's_cmp_ge_u32 {MEM}, 14\ns_cselect_b32 {T0}, {OOB}, {T0}')
        L += S(f"""s_mul_i32 {IMG9}, {WAVE}, {112*896}
            s_add_u32 {IMG9}, {IMG9}, {T0}
            s_mul_i32 {W4O}, {WAVE}, {224*896}
            s_add_u32 {W4O}, {W4O}, {T0}""")
        L += self.voff_calc('v251', 896, 'A') + [f'v_accvgpr_write_b32 {aVA}, v251']
        L += self.voff_calc('v251', 896, 'B') + [f'v_accvgpr_write_b32 {aVB}, v251']
        return L

    def trB_calc(self, v, hrows):
        return S(f"""v_lshrrev_b32 v252, 5, {LANE}
            v_mul_u32_u24 {v}, {hrows*128}, v252
            v_bfe_u32 v252, {LANE}, 2, 2
            v_lshl_add_u32 {v}, v252, 7, {v}
            v_bfe_u32 v252, {LANE}, 4, 1
            v_lshl_add_u32 {v}, v252, 5, {v}
            v_and_b32 v252, 3, {LANE}
            v_lshl_add_u32 {v}, v252, 3, {v}
            v_bfe_u32 v252, {LANE}, 3, 1
            v_lshl_add_u32 {v}, v252, 6, {v}""")

    def setup2(self):
        L = S(f"""s_mul_i32 {IMG3}, {WAVE}, {112*3584}
            s_lshl_b32 {T0}, {MEM}, 7
            s_add_u32 {IMG3}, {IMG3}, {T0}
            s_mul_i32 {RB57}, {RB}, 57344
            s_lshl_b32 {TB16}, {CG}, 13
            s_add_u32 {TB16}, {TB16}, {RB57}
            s_lshl_b32 {STO}, {SLOTA}, 9
            s_lshl_b32 {T0}, {WAVE}, 7
            s_add_u32 {STO}, {STO}, {T0}
            s_mov_b32 {ONES}, 0x3f803f80
            v_lshrrev_b32 v110, 4, {LANE}
            v_and_b32 v111, 15, {LANE}
            v_lshlrev_b32 v111, 4, v111
            v_lshl_add_u32 {VA16}, v110, 10, v111
            v_lshl_add_u32 {VA16}, v0, 8, {VA16}
            v_lshrrev_b32 v110, 5, {LANE}
            v_and_b32 v111, 31, {LANE}
            v_lshlrev_b32 v111, 4, v111
            v_lshl_add_u32 {V32}, v110, 10, v111
            v_lshrrev_b32 v110, 2, {LANE}
            v_lshlrev_b32 v111, 7, v110
            v_and_b32 v110, 6, v110
            v_lshl_add_u32 v111, v110, 4, v111
            v_and_b32 v110, 3, {LANE}
            v_lshl_add_u32 v111, v110, 3, v111
            v_accvgpr_write_b32 {aA0}, v111""")
        L += self.trB_calc('v111', 4) + [f'v_accvgpr_write_b32 {aB0}, v111']
        for st, pitch, typ in ((aVC, 3584, 'B'),):
            L += self.voff_calc('v111', pitch, typ) + [f'v_accvgpr_write_b32 {st}, v111']
        return L + self.gaddr_setup()

    def gaddr_setup(self):
        L = S(f"""v_and_b32 v104, 15, {LANE}
            s_lshl_b32 {T0}, {RB}, 6
            s_lshl_b32 {T1}, {WAVE}, 4
            s_add_u32 {T0}, {T0}, {T1}
            v_add_u32 v104, {T0}, v104
            v_and_b32 v105, 48, {LANE}
            v_lshlrev_b32 v105, 2, v105""")
        for j in range(4):
            mixcg = 5 if j < 2 else 1
            L.append(f's_lshl_b32 {T0}, {CG}, 2\ns_add_u32 {T0}, {T0}, {j}\ns_cmp_ge_u32 {T0}, 7\ns_cselect_b32 {T1}, -1, 1\ns_cmp_ge_u32 {T0}, 14\ns_cselect_b32 {T1}, 2, {T1}\n'
                     f's_cmp_ge_u32 {T0}, 21\ns_cselect_b32 {T1}, -2, {T1}\ns_cmp_eq_u32 {CG}, {mixcg}\ns_cselect_b32 {T0}, 3, 4')
            L += S(f"""v_add_u32 v106, {T1}, v104
                v_bfe_i32 v108, v106, 11, 1
                v_bfe_u32 v107, v106, 6, 5
                v_mul_u32_u24 v107, 57344, v107
                v_and_or_b32 v106, v106, 63, v105
                v_lshl_add_u32 v106, v106, {T0}, v107
                v_not_b32 v108, v108
                v_accvgpr_write_b32 a{240+j}, v106
                v_accvgpr_write_b32 a{244+j}, v108""")
        return L

    def burst(self, srd, start, k, idx, wstride, vreg):
        def f():
            a = self.a
            a(f's_mul_i32 {T0}, {idx}, {k*128 * (4 if wstride is None else 1)}\ns_mul_i32 {T1}, {WAVE}, {k*128 if wstride is None else wstride}\ns_add_u32 {T0}, {T0}, {T1}')
            if start: a(f's_add_u32 {T0}, {T0}, {start}')
            a(f'v_lshlrev_b32 v{vreg}, 7, {LANE}\ns_mov_b64 exec, {hx((1 << k) - 1)}')
            a(f'buffer_load_dword v{vreg}, v{vreg}, {srd}, {T0} offen', 'pf')
            a('s_mov_b64 exec, -1')
        return f

    def get_tag(self):
        return [self.W(vm='epoch'), f'v_readfirstlane_b32 {TAG}, v4', f's_getreg_b32 {XCC}, hwreg(HW_REG_XCC_ID, 0, 4)', f's_lshr_b32 {TAG}, {TAG}, 4',
                f's_mul_i32 {TAG}, {TAG}, 0x9E3779B1', f's_add_u32 {TAG}, {TAG}, 0x7F4A7C15', f's_lshl_b32 {TAG}, {TAG}, 4']

    def p1(self):
        a = self.a
        ACC, XR, XF, PK = 32, 128, 128, 80
        WA, XW, XA = 240, 246, 247
        XNT = 'nt' if self.opt.get('xnt', 1) else ''
        XL = [[(f'buffer_load_dwordx4 v[184:187], v239, {XS}, s66 offen {XNT}', 'xt')], [(f'buffer_load_dwordx4 v[188:191], v239, {XS}, s67 offen {XNT}', 'xt')]]
        XL += [[(f'buffer_load_dwordx4 {vr(128+4*n,4)}, v239, {XS}, {D1 if n >= 7 else D0} offen offset:{128*(n%7)} {XNT}', f'x{n}')] for n in range(14)]
        def wunits(g):
            U = []
            for k in range(2*g, min(2*g + 2, 21)):
                U.append([f's_add_u32 m0, {D1}, {WSL + (k % 12)*8192}', f's_add_u32 {T7}, {D0}, {64*(k%7)*2688 + (k//7)*128}', (f'buffer_load_dwordx4 v{VO}, {WQ}, {T7} offen lds', f'wq{g}')])
                U.append([(f'buffer_load_dwordx4 v{VO+1}, {WQ}, {T7} offen offset:1024 lds', f'wq{g}')])
            return U
        NX = self.opt.get('p1nx', 10)
        self.run(flat(XL[:NX]))
        self.run(self.late_loads())
        self.run(self.voff_calc(f'v{VO}', 2688, 'B') + [f'v_add_u32 v{VO+1}, {8*2688-1024}, v{VO}'])
        a(f's_mov_b32 {ONES}, 0x3f803f80\ns_mov_b32 {LO1}, 0x00003f80\ns_mov_b32 {HI1}, 0x3f800000')
        a(f's_and_b32 {T4}, {WAVE}, 1\ns_lshr_b32 {T5}, {WAVE}, 1')
        a(f's_mul_i32 {T0}, {WAVE}, {16*XP}\nv_mul_u32_u24 v{XW}, {XP}, v250')
        a(f'v_lshl_add_u32 v{XW}, v251, 4, v{XW}\nv_add_u32 v{XW}, {T0}, v{XW}')
        a(f's_lshl_b32 {T1}, {WAVE}, 6\ns_add_u32 {T1}, {T1}, {RSD}\nv_lshl_add_u32 v92, v250, 2, {T1}')
        a(f'v_and_b32 v250, 15, {LANE}\nv_lshrrev_b32 v251, 4, {LANE}\nv_mul_u32_u24 v93, {XP}, v250\nv_lshl_add_u32 v93, v251, 3, v93\nv_add_u32 v93, {T0}, v93')
        a(f's_mul_i32 {T0}, {T4}, {32*XP}\nv_and_b32 v250, 31, {LANE}\nv_lshrrev_b32 v251, 5, {LANE}\nv_mul_u32_u24 v{XA}, {XP}, v250')
        a(f'v_lshl_add_u32 v{XA}, v251, 4, v{XA}\nv_add_u32 v{XA}, {T0}, v{XA}')
        a(f's_lshl_b32 {T1}, {T4}, 7\ns_add_u32 {T1}, {T1}, {RSD}\nv_lshl_add_u32 v94, v250, 2, {T1}')
        a(f'v_lshlrev_b32 v95, 3, v250\nv_lshl_add_u32 v95, v251, 10, v95')
        self.run(self.trB_calc('v250', 8))
        a(f's_lshl_b32 {T2}, {T5}, 6\nv_xor_b32 v250, {T2}, v250\nv_add_u32 v{WA}, {WSL}, v250\nv_add_u32 v{WA+1}, {WSL + 6*8192}, v250')
        for i in range(8): a(f'v_mov_b32 v{96+i}, 0')
        a.raw('s_waitcnt lgkmcnt(0)')
        self.stamp('setup')
        self.run(flat(XL[NX:]))
        a(f's_mul_i32 {D0}, {WAVE}, {16*2688}\ns_mul_i32 {D1}, {CG}, 384\ns_add_u32 {D0}, {D0}, {D1}\ns_lshl_b32 {D1}, {WAVE}, 11')
        fill = S(f"""s_mul_i32 {T6}, {CG}, 6
            s_add_u32 {T6}, {T6}, {T5}
            s_mul_i32 {T3}, {TEAM}, {336*1024}
            s_lshl_b32 {T2}, {T6}, 13
            s_add_u32 {T3}, {T3}, {T2}
            s_lshl_b32 {T2}, {RH}, 9
            s_add_u32 {T3}, {T3}, {T2}
            s_lshl_b32 {T2}, {T4}, 8
            s_add_u32 {T3}, {T3}, {T2}
            s_add_u32 {T3}, {T3}, {QKV}""")
        for i in range(3):
            fill += [f's_cmp_lt_u32 {T6}, {14 - 2*i}\ns_cselect_b32 {T2}, {hf(QSCALE)}, 1.0', f'v_mul_f32 v{96+2*i}, {T2}, v123']
        WU = flat([wunits(g) for g in range(6)])
        M = [self.W(vm='xt'), self.ST('x0'), (f'ds_write_b128 v{XW}, v[184:187]', 'xw'), (f'ds_write_b128 v{XW}, v[188:191] offset:{8*XP}', 'xw'), self.W(lg='xw')]
        M += [(f'ds_read_b64 {vr(HPK+2*j,2)}, v93 offset:{32*j}', 'xtr') for j in range(4)]
        for n in range(14):
            e = n // 7
            M.append(self.W(vm=f'x{n}'))
            for d in range(4):
                M.append(f'v_dot2c_f32_bf16 v{96+4*e+(d&1)}, {ONES}, v{XR+4*n+d}')
                M.append(f'v_dot2c_f32_bf16 v{98+4*e+(d&1)}, v{XR+4*n+d}, v{XR+4*n+d}')
        M.append(self.ST('x_in'))
        M += [f'v_add_f32 v{96+2*k}, v{96+2*k}, v{97+2*k}' for k in range(4)]
        for dpp in ('quad_perm:[1,0,3,2]', 'quad_perm:[2,3,0,1]', 'row_half_mirror'):
            M += [f'v_add_f32_dpp v{96+2*k}, v{96+2*k}, v{96+2*k} {dpp} row_mask:0xf bank_mask:0xf' for k in range(4)]
        for e in range(2):
            s_, q_ = 96 + 4*e, 98 + 4*e
            M += [f'v_mul_f32 v{s_}, {hf(-1/448)}, v{s_}', f'v_mul_f32 v{q_}, {hf(1/448)}, v{q_}', f'v_fma_f32 v{q_}, -v{s_}, v{s_}, v{q_}', f'v_max_f32 v{q_}, 0, v{q_}',
                  f'v_add_f32 v{q_}, {hf(EPS)}, v{q_}', f'v_rsq_f32 v{q_}, v{q_}']
        M.append(self.W(lg='xtr'))
        for n in range(14):
            e, i = n // 7, n % 7
            for d in range(4):
                M.append(f'v_dot2_f32_bf16 v{112+2*d}, v{XR+4*n+d}, {LO1}, v{96+4*e}')
                M.append(f'v_dot2_f32_bf16 v{113+2*d}, v{XR+4*n+d}, {HI1}, v{96+4*e}')
            M += [f'v_cvt_pk_bf16_f32 v{XR+4*n+d}, v{112+2*d}, v{113+2*d}' for d in range(4)]
            M.append((f'ds_write_b128 v{XW}, {vr(XR+4*n,4)} offset:{e*8*XP + 128*i}', 'xw'))
        M += [('ds_write_b32 v92, v98', 'xw'), ('ds_write_b32 v92, v102 offset:32', 'xw')]
        NW = self.opt.get('p1nw', 16)
        L, left = weave(M, WU[:NW], gap=self.opt.get('p1gap', 90), first=self.opt.get('p1first', 30))
        self.run(L)
        pend = left + WU[NW:]
        self.stamp('norm')
        NB, AH = 8, 4
        def sync(n): return [self.WN(f'wq{n>>3}', 4 if n < 80 else 2), 's_barrier'] if n & 7 == 0 else []
        def reads(n):
            k = n >> 2; sl = k % 12
            ar, off = (WA, sl * 8192) if sl < 6 else (WA + 1, (sl - 6) * 8192)
            off += (n & 3) * 2048
            r0 = (n % NB) * 4
            L = [(f'ds_read_b64_tr_b16 a[{r0}:{r0+1}], v{ar} offset:{off}', f'wf{n}'), (f'ds_read_b64_tr_b16 a[{r0+2}:{r0+3}], v{ar} offset:{off + 512}', f'wf{n}')]
            if n < 28: L.append((f'ds_read_b128 {vr(XF+4*n,4)}, v{XA} offset:{32*n}', f'wf{n}'))
            return L
        def epi(i, pk):
            c = ACC + 16 * i; L = []
            for q in range(4):
                if pk: L += [f'v_pk_mul_f32 {vr(c+4*q+2*k,2)}, {vr(c+4*q+2*k,2)}, {vr(96+2*i,2)} op_sel_hi:[1,0]' for k in range(2)]
                else: L += [f'v_mul_f32 v{c+4*q+k}, v{c+4*q+k}, v{96+2*i}' for k in range(4)]
                L += [f'v_cvt_pk_bf16_f32 v{PK+2*q+k}, v{c+4*q+2*k}, v{c+4*q+2*k+1}' for k in range(2)]
                if q % 2 == 0: L.append(f's_add_u32 {T2}, {T3}, {i*16384 + q*2048}')
                L.append((f'buffer_store_dwordx2 {vr(PK+2*q,2)}, v95, {WS}, {T2} offen offset:{(q%2)*2048} sc1', 'st'))
            return L
        a.wait(lg='all')
        self.run(sync(0))
        a('ds_read_b32 v123, v94', 'rs')
        for q in range(AH): self.run(reads(q))
        for n in range(84):
            img, s = n // 28, n % 28
            if n + AH < 84 and (n + AH) & 7 == 0:
                g = (n + AH) >> 3
                while pend and pend[0][-1][1] <= f'wq{g}' and len(pend[0][-1][1]) <= len(f'wq{g}'): self.run(pend.pop(0))
                self.run(sync(n + AH))
                if 2 <= g <= 6: pend += wunits(g + 4)
            if n % 2 == 0: a.wait(lg=f'wf{n+1}')
            c = ACC + 16 * img; r0 = (n % NB) * 4
            a(f'v_mfma_f32_32x32x16_bf16 {vr(c,16)}, a[{r0}:{r0+3}], {vr(XF+4*s,4)}, {vr(c,16) if s else 0}')
            if n + AH < 84: self.run(reads(n + AH))
            if n in (13, 28, 42, 56, 70): self.stamp(f'n{n}')
            if n == 24: fill += self.setup1() + self.get_tag()
            if n == self.opt.get('e0n', 30): fill += epi(0, False)
            if n == self.opt.get('e1n', 58): fill += epi(1, False)
            if n == self.opt.get('b1n', 58):
                if self.opt.get('b1', 0):
                    fill += [f's_and_b32 {T4}, {RB}, 3', f's_mul_i32 {T4}, {T4}, 7', f's_add_u32 {T4}, {T4}, {CG}', self.burst(WO, 0, 28, T4, None, 104), self.burst(W4, 0, 24, T4, 224*896, 105)]
            if pend and n % 2 == 1: self.run(pend.pop(0))
            elif fill:
                k = 1 if n < 24 else 3
                self.run(fill[:k]); fill = fill[k:]
        self.stamp('mm')
        self.run(fill)
        if self.opt.get('e0n', 30) > 83: self.run(epi(0, True))
        if self.opt.get('e1n', 58) > 83: self.run(epi(1, True))
        self.run(epi(2, True))
        self.finish(0, SLOTA, self.p2_setup() + self.setup2(), self.img9(WO, S0, 'wo') + self.w4_units(0), split=self.opt.get('sp0', 520))

    def p2_setup(self):
        MD, MO = 176, 192
        a = self.a
        L = S(f'''v_lshl_add_u32 v240, {WAVE}, 6, {LANE}
            s_sub_u32 {T5}, 2, {TEAM}
            s_max_i32 {T5}, {T5}, 0
            s_cmp_lt_u32 {WAVE}, {T5}
            s_cselect_b32 {T1}, {hx(NBIG >> 16)}, 0''')
        L = ['\n'.join(L)]
        L += S(f'''v_mov_b32 v244, {T1}
            v_mov_b32 v245, 0
            v_mov_b32 v246, {T1}
            v_mov_b32 v247, 0
            v_mov_b32 v236, 0x3f80
            v_mov_b32 v237, 0
            v_mov_b32 v238, 0x3f80
            v_mov_b32 v239, 0
            v_lshlrev_b32 v240, 4, v240
            v_add_u32 v240, {KB + 7*KP}, v240''')
        def cr():
            Lb = a.label('cr')
            a(f's_cmp_ge_u32 {WAVE}, 3\ns_cbranch_scc1 {Lb}')
            a.raw(f'ds_write_b128 v240, v[244:247]\nds_write_b128 v240, v[236:239] offset:{8*KP}')
            a(f'{Lb}:')
        L.append(cr)
        L += S(f'''v_and_b32 v240, 31, {LANE}
            v_lshrrev_b32 v241, 5, {LANE}
            v_lshlrev_b32 v242, 2, v241
            v_sub_u32 v240, v240, v242
            v_mov_b32 v242, {hx(NBIG)}''')
        for r in range(16):
            kk = 8*(r >> 2) + (r & 3)
            L += [f'v_subrev_u32 v243, {kk}, v240', 'v_ashrrev_i32 v243, 31, v243', f'v_and_b32 v{MD+r}, v242, v243', f'v_xor_b32 v{MO+r}, v242, v{MD+r}']
        L += S(f'''v_and_b32 v240, 31, {LANE}
            v_lshlrev_b32 v240, 3, v240
            v_mul_u32_u24 v232, {KP}, v241
            v_add_u32 v232, v232, v240
            v_lshl_add_u32 v234, v241, 10, v240
            s_lshl_b32 {T1}, {WAVE}, 8
            s_add_u32 {T2}, {T1}, {KB}
            v_add_u32 v232, {T2}, v232
            v_bfe_u32 v240, {LANE}, 4, 1
            v_and_b32 v242, 3, {LANE}
            v_lshl_add_u32 v240, v240, 2, v242
            v_mul_u32_u24 v233, {KP}, v240
            v_lshl_add_u32 v233, v241, 5, v233
            v_bfe_u32 v240, {LANE}, 2, 2
            v_lshl_add_u32 v233, v240, 3, v233
            s_add_u32 {T2}, {T1}, {VB}
            v_add_u32 v233, {T2}, v233
            v_lshlrev_b32 v235, 4, {LANE}
            s_mul_i32 {T3}, {TEAM}, {336*1024}
            s_mul_i32 {T2}, {MEM}, 7168
            s_add_u32 {T3}, {T3}, {T2}
            s_add_u32 {T3}, {T3}, {QKV}
            s_sub_u32 {T4}, 2, {WAVE}
            s_mul_i32 {T4}, {T4}, {336*1024}
            s_sub_u32 {T4}, {T3}, {T4}''')
        L.append(f's_cmp_lt_u32 {WAVE}, {T5}\ns_cselect_b32 {T4}, {OOB}, {T4}')
        L += S(f'''s_add_u32 {T3}, {T3}, {T1}
            s_mov_b32 {T6}, 0x7f7f7f7f
            s_mov_b32 {T7}, 0x7f7f
            s_lshl_b32 {T1}, {T5}, 4
            s_lshr_b64 s[58:59], s[58:59], {T1}
            s_lshl_b64 s[58:59], s[58:59], {T1}
            s_lshl_b32 {T2}, {TEAM}, 4
            s_sub_u32 {T2}, {T2}, 32''')
        return L

    def p2(self):
        a = self.a
        S_, MD, MO, Q, OA = 32, 176, 192, 208, 216
        KA, VA = 'v232', 'v233'
        FB = 200
        a.raw('s_waitcnt lgkmcnt(0)')
        self.poll(0, T2, 's[58:59]', first=(0, '0x7f7f'))
        a.wait(vm='w4_0')
        a(f's_add_u32 {T2}, {T3}, 4096')
        for q in range(4):
            a(f'buffer_load_dwordx2 {vr(Q+2*q,2)}, v234, {WS}, {T3 if q < 2 else T2} offen offset:{(q%2)*2048} sc1', 'q')
        L = a.label('kv')
        a(f's_cmp_ge_u32 {WAVE}, 3\ns_cbranch_scc1 {L}')
        a(f's_lshl_b32 {T2}, {WAVE}, 10')
        for part, lb in ((1, KB), (2, VB)):
            for q in range(7):
                if q % 4 == 0: a(f's_add_u32 {T3}, {T4}, {part*112*1024 + q*1024}')
                a(f's_add_u32 m0, {T2}, {lb + q*KP - (q%4)*1024}')
                a.raw(f'buffer_load_dwordx4 v235, {WS}, {T3} offen offset:{(q%4)*1024} sc1 lds')
        a(f'{L}:')
        a(f'v_mov_b32 v240, {FSC}')
        a('ds_read_b32 v240, v240', 'fs')
        self.run(self.w4_read(0))
        a.wait(lg='fs')
        a(f'v_readfirstlane_b32 {FAST}, v240')
        nw = 0
        if self.opt.get('fast', 1):
            a(f's_lshl_b32 {T0}, {TEAM}, 1\ns_lshr_b32 {T1}, {WAVE}, 1\ns_add_u32 {T0}, {T0}, {T1}\ns_lshl_b32 {T0}, {T0}, 16\ns_lshl_b32 {T1}, {MEM}, 12\ns_add_u32 {T0}, {T0}, {T1}')
            a(f's_and_b32 {T1}, {WAVE}, 1\ns_lshl_b32 {T1}, {T1}, 11\ns_add_u32 {T0}, {T0}, {T1}\ns_add_u32 {T0}, {T0}, {O_}')
            a(f's_lshl_b32 {T1}, {WAVE}, 11\ns_add_u32 {T1}, {T1}, {TB16}\ns_add_u32 {T1}, {T1}, {H_ - 2048}')
            a(f'v_lshlrev_b32 v240, 7, {LANE}\nv_mov_b32 v241, {T0}\nv_mov_b32 v242, {T1}\nv_cmp_gt_u32 vcc, 16, {LANE}')
            a(f's_add_u32 {T0}, {STO}, {STH}\ns_cmp_eq_u32 {WAVE}, 0\ns_cselect_b32 {T1}, {SLOTB}, {SLOTA}\ns_lshl_b32 {T1}, {T1}, 8')
            a(f'v_cndmask_b32 v241, v242, v241, vcc\nv_add_u32 v240, v240, v241')
            a(f's_lshl_b32 {T2}, 0x10000, {WAVE}\ns_add_u32 {T1}, {T1}, {T2}\ns_add_u32 {T1}, {T1}, {FLAGS}')
            a(f'v_writelane_b32 v240, {T0}, 32\nv_writelane_b32 v240, {T1}, 33')
        a(f's_lshl_b32 {T4}, {TEAM}, 1\ns_lshr_b32 {T1}, {WAVE}, 1\ns_add_u32 {T4}, {T4}, {T1}\ns_lshl_b32 {T4}, {T4}, 16')
        a(f's_lshl_b32 {T1}, {MEM}, 12\ns_add_u32 {T4}, {T4}, {T1}\ns_and_b32 {T1}, {WAVE}, 1\ns_lshl_b32 {T1}, {T1}, 9\ns_add_u32 {T4}, {T4}, {T1}\ns_add_u32 {T4}, {T4}, {O_}')
        a(f's_and_b32 {T5}, {SLOTB}, 31\ns_lshl_b32 {T5}, {T5}, 2\ns_add_u32 {T5}, {T5}, {WAVE}\ns_mul_i32 {T5}, {T5}, {25*128}\nv_lshlrev_b32 v241, 7, {LANE}')
        a.raw(f's_waitcnt vmcnt({7 + nw})')
        L = a.label('kv2')
        a(f's_cmp_lt_u32 {WAVE}, 3\ns_cbranch_scc1 {L}')
        a.raw(f's_waitcnt vmcnt({nw})')
        a(f'{L}:')
        a('s_barrier')
        self.stamp('k')
        def kread(i):
            b = FB + (i % 3) * 8
            return [(f'ds_read_b64 a[{b+4*p+2*s}:{b+4*p+2*s+1}], {KA} offset:{(4*p+2*s)*KP + 256*i}', f'k{i}') for p in range(2) for s in range(2)]
        self.run(kread(0)); self.run(kread(1))
        a(f's_mov_b32 exec_lo, 0\nv_mov_b32 v{Q+6}, 0x3f80\nv_mov_b32 v{Q+7}, 0\ns_mov_b32 exec_lo, -1')
        MX = 236
        def maxes(i):
            L = []
            r = S_ + 16*i
            for k in range(8):
                if i == 0 and k < 2: L.append(f'v_max_f32 v{MX+k}, v{r+2*k}, v{r+2*k+1}')
                else: L.append(f'v_max3_f32 v{MX+(k&1)}, v{r+2*k}, v{r+2*k+1}, v{MX+(k&1)}')
            return L
        for i in range(9):
            a.wait(lg=f'k{i}')
            b = FB + (i % 3) * 8
            c0 = vr(MO, 16) if i == 0 else (vr(MD, 16) if i == 8 else '0')
            kr = kread(i + 2) if i + 2 < 9 else []
            mx = maxes(i - 2) if i >= 2 else []
            a(f'v_mfma_f32_32x32x16_bf16 {vr(S_+16*i,16)}, a[{b}:{b+3}], {vr(Q,4)}, {c0}')
            self.run(kr[:2] + mx[:4])
            a(f'v_mfma_f32_32x32x16_bf16 {vr(S_+16*i,16)}, a[{b+4}:{b+7}], {vr(Q+4,4)}, {vr(S_+16*i,16)}')
            self.run(kr[2:] + mx[4:])
        self.stamp('qk')
        self.run(maxes(7)); self.run(maxes(8))
        a(f'v_max_f32 v{MX}, v{MX}, v{MX+1}\nv_mov_b32 v{MX+1}, v{MX}\nv_permlane32_swap_b32 v{MX}, v{MX+1}\nv_max_f32 v{MX}, v{MX}, v{MX+1}')
        def vread(i):
            b = FB + (i % 3) * 8
            return [(f'ds_read_b64_tr_b16 a[{b+4*m+2*e}:{b+4*m+2*e+1}], {VA} offset:{256*i + 128*m + 64*e}', f'v{i}') for m in range(2) for e in range(2)]
        def sub(i):
            r = S_ + 16*i
            return [f'v_pk_add_f32 {vr(r+2*k,2)}, {vr(r+2*k,2)}, {vr(MX,2)} op_sel_hi:[1,0] neg_lo:[0,1] neg_hi:[0,1]' for k in range(8)]
        def ex(i):
            r = S_ + 16*i
            return [f'v_exp_f32 v{r+k}, v{r+k}' for k in range(16)] + [f'v_cvt_pk_bf16_f32 v{r+k}, v{r+2*k}, v{r+2*k+1}' for k in range(8)]
        self.stamp('max')
        self.run(sub(0) + ex(0)[:16])
        a.raw(f's_waitcnt vmcnt(0)'); a.vm = []
        a('s_barrier')
        self.run(vread(0)); self.run(vread(1))
        if self.opt.get('fast', 1):
            a('s_mov_b32 exec_hi, 3')
            a(f'buffer_load_dword v240, v240, {WS}, 0 offen sc1', 'pf')
        if self.opt.get('b2', 1):
            a('s_mov_b64 exec, 0x1ffffff')
            a(f'buffer_load_dword v242, v241, {W1}, {T5} offen', 'pf')
            a(f'buffer_load_dword v243, v241, {W2}, {T5} offen', 'pf')
        a('s_mov_b64 exec, -1')
        self.run(ex(0)[16:])
        U = []
        A1 = 0
        for i in range(9):
            if i + 1 < 9: self.run(sub(i + 1))
            a.wait(lg=f'v{i}')
            b = FB + (i % 3) * 8
            r = S_ + 16*i
            e = ex(i + 1) if i + 1 < 9 else []
            a(f'v_mfma_f32_32x32x16_bf16 {vr(OA,16)}, a[{b}:{b+3}], {vr(r,4)}, {vr(OA,16) if i else 0}')
            if i + 2 < 9: self.run(vread(i + 2))
            self.run(e[:1])
            a(f'v_mfma_f32_32x32x16_bf16 {vr(OA,16)}, a[{b+4}:{b+7}], {vr(r+4,4)}, {vr(OA,16)}')
            if U and i >= A1: self.run(U.pop(0))
            self.run(e[1:8])
            if U and i >= A1: self.run(U.pop(0))
            self.run(e[8:16])
            if U and i >= A1: self.run(U.pop(0))
            self.run(e[16:])
        assert not U
        a(f'v_mov_b32 v{MX}, v{OA+12}\nv_mov_b32 v{MX+1}, v{OA+12}\nv_permlane32_swap_b32 v{MX}, v{MX+1}\nv_rcp_f32 v{MX}, v{MX+1}')
        for p in range(2):
            for k in range(4*p, 4*p+4):
                a(f'v_pk_mul_f32 {vr(OA+2*k,2)}, {vr(OA+2*k,2)}, {vr(MX,2)} op_sel_hi:[1,0]')
            for k in range(4*p, 4*p+4):
                a(f'v_cvt_pk_bf16_f32 v{S_+k}, v{OA+2*k}, v{OA+2*k+1}')
            if p: a(f's_mov_b32 exec_lo, 0\nv_mov_b32 v{S_+6}, 0\nv_mov_b32 v{S_+7}, 0\ns_mov_b32 exec_lo, -1')
        self.fstore([f'buffer_store_dwordx4 {vr(S_+4*p,4)}, {V32}, {WS}, {T4} offen offset:{p*2048}' for p in range(2)])

    def trA(self, base, omap):
        L = [f'v_accvgpr_read_b32 v4, {aA0}']
        if omap: L += [f'v_and_b32 v5, 1024, {V32}', 'v_add_u32 v4, v4, v5']
        if base: L.append(f'v_add_u32 v4, {base}, v4')
        L += [f'v_xor_b32 v{4+j}, {32*j}, v4' for j in range(1, 4)]
        return L
    def breg(self, s, j, abase):
        return ('v', 112 + 16*s + 4*j) if s < 8 else ('a', abase + 16*(s - 8) + 4*j)
    def breads(self, s, omap, abase, cs=False):
        L = []
        for j in range(4):
            if omap: ar = 4 + (j ^ (2 if s & 1 else 0)); off = 28 * s * 128; d2 = 8 * 128
            else: ar = 4 + j; off = 32 * s * 128; d2 = 16 * 128
            k, b = self.breg(s, j, abase)
            L.append((f'ds_read_b64_tr_b16 {vr(b,2,k)}, v{ar} offset:{off}', f'b{s}'))
            L.append((f'ds_read_b64_tr_b16 {vr(b+2,2,k)}, v{ar} offset:{off+d2}', f'b{s}'))
        return L
    def bstream(self, steps, omap, abase, cs_from=None, cs_upto=None):
        L = []
        def csm(s):
            out = [self.W(lg=f'b{s}')]
            for j in range(4):
                k, b = self.breg(s, j, abase)
                out.append(f'v_mfma_f32_16x16x32_bf16 {vr(RES+4*j,4)}, {vr(b,4,k)}, v[88:91], {vr(RES+4*j,4) if s else 0}')
            return out
        c = cs_from
        for s in steps:
            br = self.breads(s, omap, abase)
            if c is not None and c <= s - 2 and c < cs_upto:
                m = csm(c); c += 1
                L.append(m[0])
                for j in range(4): L += [m[1+j]] + br[2*j:2*j+2]
            else: L += br
        while c is not None and c < cs_upto:
            L += csm(c); c += 1
        return L

    def small_gemm(self, nsteps, abase_g, ACC, pollargs, post, abase, pre=[], bg=[], split8=(), cinit=True, fill=[], mid=[], npre=11):
        a = self.a
        AF = 32
        if pollargs: self.poll(*pollargs)
        self.run(pre)
        def aload(s):
            u = [f's_add_u32 {T3}, {T3}, 4096'] if s else []
            if s in split8:
                u += [(f'buffer_load_dwordx2 {vr(AF+4*s+2*h,2)}, v96, {WS}, {T3} offen offset:{2048*h} sc1', f'a{s}') for h in range(2)]
            else:
                u.append((f'buffer_load_dwordx4 {vr(AF+4*s,4)}, {VA16}, {WS}, {T3} offen sc1', f'a{s}'))
            return u
        U = [aload(s) for s in range(nsteps)]
        L, left = weave(post, U, gap=self.opt.get('sggap', 64))
        self.run(L)
        NPRE = max(npre, nsteps - len(left))
        self.run(flat(U[nsteps - len(left):NPRE]))
        self.run(mid)
        self.stamp('issued')
        fill = list(fill)
        U = U[NPRE:]
        for s in range(nsteps):
            if s == (5 if fill else 0) or (s == 5 and bg): U = U + list(bg); bg = []
            a.wait(vm=f'a{s}', lg=f'b{s}')
            if s == 0: self.stamp('a0')
            if s == nsteps - 1: self.stamp('alast')
            for j in range(4):
                k, b = self.breg(s, j, abase)
                a(f'v_mfma_f32_16x16x32_bf16 {vr(ACC+4*j,4)}, {vr(b,4,k)}, {vr(AF+4*s,4)}, {vr(ACC+4*j,4) if (s or cinit) else 0}')
                if U and (j == 0 or (j == 2 and s >= 6 and len(U) >= nsteps - s)): self.run(U.pop(0))
                elif fill: self.run(fill[:2]); fill = fill[2:]
        self.run(fill)
        return U

    def unpack(self, dst, src, n):
        return flat([[f'v_lshlrev_b32 v{dst+2*k}, 16, v{src+k}', f'v_and_b32 v{dst+2*k+1}, 0xffff0000, v{src+k}'] for k in range(n)])

    def tile_out(self, acc, pk, base, stbase):
        a = self.a
        a(f's_add_u32 {T4}, {TB16}, {base}\ns_add_u32 {T5}, {TB16}, {base + 4096}\ns_add_u32 {T6}, {STO}, {stbase}\nv_lshlrev_b32 v244, 3, {LANE}')
        for p in range(2):
            for k in range(4*p, 4*p+4): a(f'v_cvt_pk_bf16_f32 v{pk+k}, v{acc+2*k}, v{acc+2*k+1}')
        self.fstore([f'buffer_store_dwordx4 {vr(pk+4*p,4)}, {VA16}, {WS}, {T5 if p else T4} offen' for p in range(2)])
        a(f'v_pk_add_f32 v[240:241], {vr(acc,2)}, {vr(acc+2,2)}\nv_pk_mul_f32 v[242:243], {vr(acc,2)}, {vr(acc,2)}')
        a(f'v_pk_fma_f32 v[242:243], {vr(acc+2,2)}, {vr(acc+2,2)}, v[242:243]')
        for k in range(2, 8):
            a(f'v_pk_add_f32 v[240:241], v[240:241], {vr(acc+2*k,2)}\nv_pk_fma_f32 v[242:243], {vr(acc+2*k,2)}, {vr(acc+2*k,2)}, v[242:243]')
        a('v_add_f32 v240, v240, v241\nv_add_f32 v241, v242, v243')
        for sw in ('16', '32'):
            a('v_mov_b32 v242, v240\nv_mov_b32 v243, v241')
            a(f'v_permlane{sw}_swap_b32 v240, v242\nv_permlane{sw}_swap_b32 v241, v243')
            a('v_pk_add_f32 v[240:241], v[240:241], v[242:243]')
        a('s_mov_b64 exec, 0xffff')
        self.fstore([f'buffer_store_dwordx2 v[240:241], v244, {WS}, {T6} offen'])
        a('s_mov_b64 exec, -1')

    def fin_stats(self, sws):
        L = []
        for sw in sws:
            L += ['v_mov_b32 v242, v240', 'v_mov_b32 v243, v241', f'v_permlane{sw}_swap_b32 v240, v242', f'v_permlane{sw}_swap_b32 v241, v243',
                  'v_add_f32 v240, v240, v242', 'v_add_f32 v241, v241, v243']
        L += [f'v_mul_f32 v240, {hf(-1/448)}, v240', f'v_mul_f32 v242, {hf(1/448)}, v241', 'v_fma_f32 v242, -v240, v240, v242', 'v_max_f32 v242, 0, v242']
        return L
    def gelu_consts(self, s):
        return [f'v_mul_f32 v244, {hf(K1)}, v{s}', f'v_mul_f32 v245, v{s}, v{s}', f'v_mul_f32 v245, v245, v{s}', f'v_mul_f32 v245, {hf(K2)}, v245', f'v_rcp_f32 v246, v{s}']
    def gelu_pk(self, acc, n, dst, tmp):
        L = []
        ks = range(n)
        for k in ks: L.append(f'v_pk_mul_f32 {vr(tmp+2*k,2)}, {vr(acc+2*k,2)}, {vr(acc+2*k,2)}')
        for k in ks: L.append(f'v_pk_fma_f32 {vr(tmp+2*k,2)}, {vr(tmp+2*k,2)}, v[244:245], v[244:245] op_sel:[0,1,0] op_sel_hi:[1,1,0]')
        for k in ks: L.append(f'v_pk_mul_f32 {vr(tmp+2*k,2)}, {vr(tmp+2*k,2)}, {vr(acc+2*k,2)}')
        for k in range(2*n): L.append(f'v_exp_f32 v{tmp+k}, v{tmp+k}')
        for k in ks: L.append(f'v_pk_fma_f32 {vr(tmp+2*k,2)}, {vr(tmp+2*k,2)}, v[246:247], v[246:247] op_sel_hi:[1,0,0]')
        for k in range(2*n): L.append(f'v_rcp_f32 v{tmp+k}, v{tmp+k}')
        for k in ks: L.append(f'v_pk_mul_f32 {vr(acc+2*k,2)}, {vr(acc+2*k,2)}, {vr(tmp+2*k,2)}')
        for k in ks: L.append(f'v_cvt_pk_bf16_f32 v{dst+k}, v{acc+2*k}, v{acc+2*k+1}')
        return L
    def gelu_sc(self, acc, n, dst, tmp):
        L = []
        ks = range(2*n)
        for k in ks: L.append(f'v_mul_f32 v{tmp+k}, v{acc+k}, v{acc+k}')
        for k in ks: L.append(f'v_fma_f32 v{tmp+k}, v{tmp+k}, v245, v244')
        for k in ks: L.append(f'v_mul_f32 v{tmp+k}, v{tmp+k}, v{acc+k}')
        for k in ks: L.append(f'v_exp_f32 v{tmp+k}, v{tmp+k}')
        for k in ks: L.append(f'v_fma_f32 v{tmp+k}, v{tmp+k}, v246, v246')
        for k in ks: L.append(f'v_rcp_f32 v{tmp+k}, v{tmp+k}')
        for k in ks: L.append(f'v_mul_f32 v{acc+k}, v{acc+k}, v{tmp+k}')
        for k in range(n): L.append(f'v_cvt_pk_bf16_f32 v{dst+k}, v{acc+2*k}, v{acc+2*k+1}')
        return L

    def HT(self): return (self.opt.get('t1', 380), self.opt.get('t2', 800), self.opt.get('t3', 1100))
    def p2_finish(self):
        work = [f's_lshl_b32 {T3}, {RB}, 16', f's_add_u32 {T3}, {T3}, {O_}'] + self.trA(S0, True) + self.unpack(96, HPK, 8) + self.bstream(range(16), True, 96)
        self.rest = self.hop(1, SLOTB, work, self.img9(W1, S1, 'w1'), (TEAM, 4), '0xffff', t=self.HT())

    def p3(self):
        a = self.a
        ACC = 96
        left = self.small_gemm(16, O_, ACC, None, self.rest, 96, npre=self.opt.get('fpre', 6))
        self.tile_out(ACC, HPK, H_, STH)
        work = S(f"""v_lshrrev_b32 v244, 1, {VA16}
            v_add_u32 v245, 2048, v244
            v_lshrrev_b32 v242, 4, {LANE}
            v_add_u32 v242, 1, v242
            v_lshrrev_b32 v242, 2, v242
            v_lshl_add_u32 v245, v242, 30, v245
            s_lshl_b32 {T6}, {RB}, 12
            s_add_u32 {T6}, {T6}, {STH}
            s_add_u32 {T3}, {RB57}, {H_}""")
        work += self.trA(S1, False) + [f'v_mov_b32 v{88+d}, {ONES}' for d in range(4)] + self.bstream(range(14), False, 144, 0, 14)
        self.rest = self.hop(2, SLOTA, work, left + self.img9(W2, S0, 'w2'), (RB, 3), '0x7f', t=self.HT())

    def p4(self):
        a = self.a
        ACC = 96
        pre = [(f'buffer_load_dwordx2 v[240:241], v244, {WS}, {T6} offen sc1', 'sl'), (f'buffer_load_dwordx2 v[242:243], v245, {WS}, {T6} offen sc1', 'sl')]
        post = ['v_add_f32 v240, v240, v242', 'v_add_f32 v241, v241, v243'] + self.fin_stats(['16', '32'])
        post += [f'v_add_f32 v243, {hf(EPS)}, v242', 'v_rsq_f32 v241, v243', 'v_mul_f32 v243, v241, v241', f'v_mov_b32 v247, {hf(EPS)}', 'v_fmac_f32 v247, v243, v242',
                 'v_rsq_f32 v247, v247', 'v_mul_f32 v247, v247, v241'] + self.gelu_consts(247)
        post += [f's_lshl_b32 {T4}, {CG}, 13', f's_add_u32 {T4}, {T4}, {G_}', f's_add_u32 {T5}, {T4}, 4096']
        post += [f'v_accvgpr_read_b32 v{88+j}, a{244+j}' for j in range(4)] + [f'v_accvgpr_read_b32 v{92+j}, a{240+j}' for j in range(4)]
        left = self.small_gemm(14, H_, ACC, None, self.rest, 144, pre=pre, bg=self.w4_units(1), cinit=False, fill=post, npre=self.opt.get('fpre', 6))
        for pp in range(2):
            for k in range(4*pp, 4*pp+4):
                a(f'v_pk_fma_f32 {vr(ACC+2*k,2)}, {vr(RES+2*k,2)}, v[240:241], {vr(ACC+2*k,2)} op_sel_hi:[1,0,1]')
            self.run(self.gelu_pk(ACC + 8*pp, 4, 32 + 4*pp, 48))
            for q in range(4): a(f'v_and_b32 v{32+4*pp+q}, v{88+2*pp+(q>>1)}, v{32+4*pp+q}')
            Lm = a.label('mix'); Le = a.label('mixe')
            so = T5 if pp else T4
            a(f's_cmp_eq_u32 {CG}, {1 if pp else 5}\ns_cbranch_scc1 {Lm}')
            a(f'buffer_store_dwordx4 {vr(32+4*pp,4)}, v{92+2*pp}, {WS}, {so} offen sc1', 'st')
            a(f's_branch {Le}\n{Lm}:')
            a.raw(f'buffer_store_dwordx2 {vr(32+4*pp,2)}, v{92+2*pp}, {WS}, {so} offen sc1')
            a.raw(f'buffer_store_dwordx2 {vr(34+4*pp,2)}, v{93+2*pp}, {WS}, {so} offen offset:2048 sc1')
            a(f'{Le}:')
        work = self.trA(S0, False) + self.bstream(range(5), False, 144) + self.w4_read(1) + self.bstream(range(5, 14), False, 144) + self.unpack(RES, HPK, 8)
        for k in range(8):
            work += [f'v_pk_add_f32 {vr(RES+2*k,2)}, {vr(RES+2*k,2)}, v[240:241] op_sel_hi:[1,0]', f'v_pk_mul_f32 {vr(RES+2*k,2)}, {vr(RES+2*k,2)}, v[240:241] op_sel:[0,1] op_sel_hi:[1,1]']
        work += [f'v_lshrrev_b32 v96, 1, {VA16}', f's_add_u32 {T3}, {RB57}, {G_}', f's_lshl_b32 {T2}, {RB}, 3', f's_sub_u32 {T2}, {T2}, 8', self.W(lg='all')]
        self.finish(3, SLOTA, work, left + self.img3(0, S1, 'w3a') + self.w4_units(2), split=self.opt.get('sp3', 650))

    AF6, ACC6, CT6 = 32, 144, 208
    def woff(self, i): return (32 * (i >> 1) + 8 * (i & 1)) * 128
    def wread(self, t, i, slot, tag):
        b = 224 + 4 * slot; ar = [6, 7, 4, 5][t]
        return [(f'ds_read_b64_tr_b16 a[{b}:{b+1}], v{ar} offset:{self.woff(i)}', tag), (f'ds_read_b64_tr_b16 a[{b+2}:{b+3}], v{ar} offset:{self.woff(i)+2048}', tag)]
    def colsum6(self, ar, dst, tg):
        L = []
        rd = lambda i: [(f'ds_read_b64_tr_b16 {vr(176+4*(i%8),2)}, v{ar} offset:{self.woff(i)}', f'{tg}{i}'), (f'ds_read_b64_tr_b16 {vr(178+4*(i%8),2)}, v{ar} offset:{self.woff(i)+2048}', f'{tg}{i}')]
        G = []
        for i in range(5): L += rd(i)
        for i in range(28):
            g = [self.W(lg=f'{tg}{i}'), f'v_mfma_f32_32x32x16_bf16 {vr(dst,16)}, {vr(176+4*(i%8),4)}, v[12:15], {vr(dst,16) if i else 0}']
            if i + 5 < 28: g += rd(i + 5)
            G.append(g)
        return L, G

    def p5(self):
        a = self.a
        CT = self.CT6
        left = self.small_gemm(14, G_, RES, (3, T2, '0x7f7f7f', '0x7f00'), self.w4_read(2), 144, split8=(3, 10),
                               bg=self.img3(1792, S0, 'w3b'))
        self.run(flat(left))
        self.tile_out(RES, 32, X1_, STX)
        work = self.unpack(48, HPK, 8) + [f'v_pk_add_f32 {vr(RES+2*k,2)}, {vr(RES+2*k,2)}, {vr(48+2*k,2)}' for k in range(8)]
        work += self.w4_read(3)[:3]
        u4 = self.w4_units(3)
        self.u4 = u4
        setup4 = [x for x in u4[0] if not (isinstance(x, tuple) or (isinstance(x, str) and x.startswith('s_')))]
        u4[0] = [x for x in u4[0] if x not in setup4]
        work += setup4
        work += S(f"""v_accvgpr_read_b32 v4, {aB0}
            v_xor_b32 v5, 64, v4
            v_add_u32 v6, {S1}, v4
            v_add_u32 v7, {S1}, v5
            s_and_b32 {T5}, {WAVE}, 1
            s_lshl_b32 {T0}, {T5}, 6
            s_lshr_b32 {T4}, {WAVE}, 1
            s_xor_b32 {T1}, {T4}, 1
            s_mul_i32 {T1}, {T1}, {S1}
            v_xor_b32 v8, {T0}, v4
            v_add_u32 v8, {T1}, v8""")
        work += [f'v_mov_b32 v{12+d}, {ONES}' for d in range(4)]
        misc = S(f"""v_lshrrev_b32 v11, 5, {LANE}
            v_lshlrev_b32 v0, 6, v11
            v_add_u32 v0, {CS}, v0
            s_lshl_b32 {T0}, {WAVE}, 7
            v_add_u32 v9, {T0}, v0
            s_lshl_b32 {T0}, {TEAM}, 1
            s_add_u32 {T4}, {T4}, {T0}
            s_lshl_b32 {T5}, {T5}, 9
            s_mul_i32 {T3}, {T4}, 57344
            s_add_u32 {T3}, {T3}, {T5}
            s_add_u32 {T3}, {T3}, {X1_}
            s_lshl_b32 {T6}, {T4}, 12
            s_lshr_b32 {T7}, {T5}, 1
            s_add_u32 {T6}, {T6}, {T7}
            s_add_u32 {T6}, {T6}, {STX}
            s_mul_i32 {T4}, {T4}, {224*1024}
            s_add_u32 {T4}, {T4}, {T5}
            s_lshl_b32 {T1}, {MEM}, 13
            s_add_u32 {T4}, {T4}, {T1}
            s_add_u32 {T4}, {T4}, {U_}
            v_and_b32 v10, 31, {LANE}
            v_lshlrev_b32 v10, 3, v10
            v_lshl_add_u32 v10, v11, 11, v10
            v_lshl_add_u32 v11, v11, 30, v10
            s_lshl_b32 {T2}, {TEAM}, 4""")
        work += misc
        wr0 = []
        for i in range(4): wr0 += self.wread(0, i, 2*i, f'w{i}') + self.wread(1, i, 2*i+1, f'w{i}')
        L, G = self.colsum6(8, CT, 'c')
        self.rest = self.hop(4, SLOTA, work, [], (TEAM, 4), '0x7f7f', after=L + self.zipper(G, wr0), t=self.HT())

    def p6(self):
        a = self.a
        AF, ACC, CT, PK = self.AF6, self.ACC6, self.CT6, 8
        def aload(i):
            u = [f's_add_u32 {T3}, {T3}, 4096'] if i and i % 2 == 0 else []
            return u + [(f'buffer_load_dwordx4 {vr(AF+4*i,4)}, {V32}, {WS}, {T3} offen offset:{(i&1)*2048} sc1', f'a{i}')]
        U = [aload(i) for i in range(28)]
        SL = [[(f'buffer_load_dwordx2 {vr(240+2*q,2)}, v{10 if q < 3 else 11}, {WS}, {T6} offen offset:{512*q} sc1', 'sl')] for q in range(4)]
        U = U[:8] + SL + U[8:]
        L, left = weave(self.rest, U, gap=64)
        self.run(L)
        PRE = max(self.opt.get('p6pre', 7), len(U) - len(left))
        self.run(flat(U[len(U) - len(left):PRE]))
        U = U[PRE:] + self.u4
        self.stamp('init')
        p2 = [(2, i) for i in range(28)] + [(3, i) for i in range(28)]
        fill = [f'v_add_f32 v{240+k}, v{240+k}, v{242+k}' for k in range(2)] + [f'v_add_f32 v{244+k}, v{244+k}, v{246+k}' for k in range(2)] + [f'v_add_f32 v{240+k}, v{240+k}, v{244+k}' for k in range(2)]
        fill += self.fin_stats(['32']) + [f'v_add_f32 v243, {hf(EPS)}, v242', 'v_rsq_f32 v247, v243'] + self.gelu_consts(247)
        fill += [self.W(lg='ct')] + [f'v_mul_f32 v{ACC+32+k}, v{ACC+32+k}, v240' for k in range(32)]
        side = {1: ['s_mov_b32 exec_lo, 1', 's_mov_b32 exec_hi, 1'] + [(f'ds_write_b128 v9, {vr(CT+4*q,4)} offset:{16*q}', 'cs') for q in range(4)] + ['s_mov_b64 exec, -1'],
                3: [self.W(lg='cs'), 's_barrier']}
        for t in range(4):
            d = CT + 16*t if t < 2 else ACC + 16*t
            for hh in range(2): side[4 + 2*t + hh] = [(f'ds_read_b128 {vr(d+4*q,4)}, v0 offset:{t*128+16*q}', 'ct') for q in (2*hh, 2*hh+1)]
        for i in range(28):
            a.wait(vm=f'a{i}', lg=f'w{i}')
            sl = 2 * (i % 4)
            for t in range(2):
                a(f'v_mfma_f32_32x32x16_bf16 {vr(ACC+16*t,16)}, a[{224+4*(sl+t)}:{227+4*(sl+t)}], {vr(AF+4*i,4)}, {vr(ACC+16*t,16) if i else 0}')
                if i + 4 < 28: self.run(self.wread(t, i + 4, sl + t, f'w{i+4}'))
                else:
                    n = 2 * (i - 24) + t
                    self.run(self.wread(p2[n][0], p2[n][1], n % 8, f'y{n}'))
                if U and (t == 0 or i < 6 or len(U) >= 28 - i): self.run(U.pop(0))
                if t == 1:
                    self.run(side.get(i, []))
                    if i >= 9: self.run(fill[:3]); fill = fill[3:]
        assert not U and not fill, (len(U), len(fill))
        for k in range(16): a(f'v_pk_fma_f32 {vr(ACC+2*k,2)}, {vr(CT+2*k,2)}, v[240:241], {vr(ACC+2*k,2)} op_sel_hi:[1,0,1]')
        self.stamp('pass1')
        def half(t, p, f):
            L = [f's_add_u32 {T0}, {T4}, {(t>>1)*114688 + (t&1)*4096}'] if p == 0 else []
            return L + f(ACC + 16*t + 8*p, 4, PK + 4*p, CT) + [(f'buffer_store_dwordx4 {vr(PK+4*p,4)}, {V32}, {WS}, {T0} offen offset:{p*2048} sc1', 'st')]
        for t in range(2):
            for p in range(2): self.run(half(t, p, self.gelu_pk))
        self.stamp('early')
        mm = []
        for n, (t, i) in enumerate(p2):
            b = 224 + 4 * (n % 8)
            g = [self.W(lg=f'y{n+1}')] if n % 2 == 0 else []
            g += [f'v_mfma_f32_32x32x16_bf16 {vr(ACC+16*t,16)}, a[{b}:{b+3}], {vr(AF+4*i,4)}, {vr(ACC+16*t,16)}']
            if n + 8 < 56: g += self.wread(p2[n+8][0], p2[n+8][1], n % 8, f'y{n+8}')
            mm.append(g)
        r3 = self.w4_read(3)[3:]
        u5 = self.w4_units(4)
        u5[0] = [x for x in u5[0] if not (isinstance(x, str) and x.startswith('v_'))]
        for k in range(16): mm[k] += ([r3[0]] if k == 0 else []) + [r3[1+k]]
        mm[17] += [f's_lshl_b32 {T2}, {TEAM}, 4', f'v_add_u32 v254, {T2}, {LANE}', 'v_lshlrev_b32 v254, 8, v254']
        EF = self.opt.get('p6ef', 22)
        mm[EF] += [self.W(vm='st'), 's_barrier', self.flag(5, SLOTB)]
        for k in range(12): mm[EF + 2 + 2*k] += u5[k]
        self.run(flat(mm[:30]))
        self.run(self.zipper(mm[30:], half(2, 0, self.gelu_sc)))
        self.stamp('pass2')
        self.run(half(2, 1, self.gelu_pk))
        self.run(half(3, 0, self.gelu_pk))
        self.run(self.wpoll_issue(5, '0x3fff'))
        self.run(half(3, 1, self.gelu_pk))
        self.stamp('st')
        RP = 16 * 1040
        work = self.w4_read(4)[3:]
        work += S(f'''v_lshrrev_b32 v250, 4, {LANE}
            v_mul_u32_u24 v250, 1040, v250
            v_and_b32 v251, 15, {LANE}
            v_lshl_add_u32 v250, v251, 4, v250
            s_lshl_b32 {T0}, {WAVE}, 8
            s_add_u32 {T0}, {T0}, {4*RP}
            v_add_u32 v250, {T0}, v250''')
        work += [(f'ds_write_b128 v250, {vr(RES+4*j,4)} offset:{4*j*1040}', 'rs') for j in range(4)]
        work += S(f'''v_lshrrev_b32 v4, 5, {LANE}
            v_mul_u32_u24 v4, 1040, v4
            v_and_b32 v251, 31, {LANE}
            v_lshl_add_u32 v4, v251, 4, v4
            s_mul_i32 {T1}, {WAVE}, {RP}
            v_add_u32 v4, {T1}, v4
            v_and_b32 v251, 7, {LANE}
            v_mul_u32_u24 v5, 2080, v251
            v_lshrrev_b32 v7, 3, {LANE}
            v_lshl_add_u32 v5, v7, 4, v5
            s_lshl_b32 {T1}, {WAVE}, 7
            v_add_u32 v5, {T1}, v5
            v_add_u32 v6, {3*RP}, v5
            v_mul_u32_u24 v7, 896, v7
            v_lshl_add_u32 v7, v251, 4, v7
            s_mul_i32 {T6}, {RB}, {224*1024}
            s_mul_i32 {T1}, {WAVE}, 28672
            s_add_u32 {T6}, {T6}, {T1}
            s_add_u32 {T6}, {T6}, {U_}
            s_lshl_b32 {T4}, {RB}, 3
            s_add_u32 {T4}, {T4}, {WAVE}
            s_mul_i32 {T4}, {T4}, {8*896}
            s_lshl_b32 {T5}, {CG}, 7
            s_add_u32 {T4}, {T4}, {T5}
            s_add_u32 {T5}, {T4}, {32*896}
            s_lshl_b32 {T2}, {TEAM}, 4''')
        self.p7work = work

    def p7(self):
        a = self.a
        ACC, AF, NS, R = 32, 144, 24, 96
        RP = 16 * 1040
        seq = [(tm, 14*hf_ + k) for hf_ in range(2) for tm in range(2) for k in range(14)]
        def aload(n):
            tm, i = seq[n]
            u = []
            if n % 14 == 0: u.append(f's_add_u32 {T3}, {T6}, {512*tm + (114688 if i >= 14 else 0)}')
            elif i % 2 == 0: u.append(f's_add_u32 {T3}, {T3}, 4096')
            return u + [(f'buffer_load_dwordx4 {vr(AF+4*(n%NS),4)}, {V32}, {WS}, {T3} offen offset:{(i&1)*2048} sc1', f'a{n}')]
        def wr(tm): return [(f'ds_write_b128 v4, {vr(ACC+16*(2*tm+tn)+4*q,4)} offset:{(8*tn+2*q)*1040 + tm*512}', 'rd') for tn in range(2) for q in range(4)]
        def rd(tm):
            return [(f'ds_read_b128 {vr(R+(e*5+w)*4,4)}, {"v5" if w < 3 else "v6"} offset:{(w%3)*RP + e*1040 + tm*512}', 'rr') for e in range(2) for w in range(5)]
        def fin(tm, pk):
            L = []
            for e in range(2):
                b = R + e*20
                if pk:
                    for x, y in ((0, 4), (8, 12), (0, 16), (0, 8)):
                        L += [f'v_pk_add_f32 {vr(b+x+2*hh,2)}, {vr(b+x+2*hh,2)}, {vr(b+y+2*hh,2)}' for hh in range(2)]
                else:
                    for x, y in ((0, 4), (8, 12), (0, 16), (0, 8)):
                        L += [f'v_add_f32 v{b+x+d}, v{b+x+d}, v{b+y+d}' for d in range(4)]
                L += [f'v_cvt_pk_bf16_f32 v{8+4*tm+2*e+hh}, v{b+2*hh}, v{b+2*hh+1}' for hh in range(2)]
            L.append((f'buffer_store_dwordx4 {vr(8+4*tm,4)}, v7, {OUT}, {T5 if tm else T4} offen sc1', 'st'))
            return L
        PRE = self.opt.get('p7pre', 11)
        work = self.p7work
        k = next(i for i, x in enumerate(work) if isinstance(x, str) and x.startswith(f's_mul_i32 {T6}'))
        self.run(work[k:k+4]); work = work[:k] + work[k+4:]
        self.run([self.wpoll_check('0x3fff')])
        self.stamp('zpoll')
        L, left = weave(['s_barrier'] + work, [aload(n) for n in range(PRE)], gap=40)
        self.run(L); self.run(flat(left))
        a.wait(vm='st')
        a('s_barrier')
        self.flag(6, SLOTB)()
        a.wait(lg='all')
        self.stamp('zgo')
        side = {}
        w0 = wr(0); r0 = rd(0); f0 = [self.W(lg='rr')] + fin(0, False)
        for k in range(4): side[43 + k] = w0[2*k:2*k+2]
        side[48] = [self.W(lg='rd'), 's_barrier'] + r0[:5]
        side[49] = r0[5:]
        for k in range(5): side[51 + k] = f0[(len(f0)*k)//5:(len(f0)*(k+1))//5]
        PI, PC = self.opt.get('p7pi', 13), self.opt.get('p7pc', 22)
        nxt = PRE
        for n in range(56):
            tm, i = seq[n]
            a.wait(vm=f'a{n}')
            for tn in range(2):
                b = (i * 2 + tn) * 4; c = ACC + 16 * (2*tm + tn)
                a(f'v_mfma_f32_32x32x16_bf16 {vr(c,16)}, a[{b}:{b+3}], {vr(AF+4*(n%NS),4)}, {vr(c,16) if i else 0}')
                if n == PI and tn == 0: self.run(self.wpoll_issue(6, '0x3fff'))
                if n == PC and tn == 0: self.run([self.wpoll_check('0x3fff'), self.ST('zlate')])
                lim = 56 if n >= PC else 28
                if nxt < min(lim, n + PRE + 1) : self.run(aload(nxt)); nxt += 1
            self.run(side.get(n, []))
        self.stamp('mm')
        self.run(wr(1))
        a.wait(lg='all')
        a('s_barrier')
        self.run(rd(1))
        a.wait(lg='all')
        self.run(fin(1, True))
        self.stamp('zdone')

    def pf(self, srd, start, nbytes, parts, idx, rot=True, fl='', stride=1):
        a = self.a
        per = -(-nbytes // parts // (128*stride)) * 128*stride
        n = -(-per // (32768*stride))
        a(f's_mul_i32 {T0}, {idx}, {per}\ns_add_u32 {T0}, {T0}, {start}')
        if rot and n > 1:
            a(f's_lshr_b32 {T1}, {TEAM}, 1\ns_mul_i32 {T1}, {T1}, {n}\ns_lshr_b32 {T1}, {T1}, 3')
        else:
            a(f's_mov_b32 {T1}, 0')
        a(f's_mov_b32 {T3}, {n}')
        L = a.label('pf')
        a(f'{L}:')
        lg = stride.bit_length() - 1
        a(f's_lshl_b32 {T2}, {T1}, {15+lg}\nv_lshl_add_u32 v41, v40, {lg}, {T2}\nv_cmp_gt_u32 vcc, {per}, v41')
        a(f's_add_u32 {T1}, {T1}, 1\ns_cmp_ge_u32 {T1}, {n}\ns_cselect_b32 {T1}, 0, {T1}')
        a(f'v_cndmask_b32 v41, v42, v41, vcc')
        a.raw(f'buffer_load_dword v43, v41, {srd}, {T0} offen {fl}')
        a(f's_sub_u32 {T3}, {T3}, 1\ns_cmp_lg_u32 {T3}, 0\ns_cbranch_scc1 {L}')

    def helper_setup(self):
        a = self.a
        a(f'v_lshl_add_u32 v40, {WAVE}, 6, {LANE}\nv_lshlrev_b32 v40, 7, v40\nv_mov_b32 v42, {OOB}')
        a(f's_lshl_b32 {T5}, {TEAM}, 1\ns_add_u32 {T5}, {T5}, {MEM}\ns_sub_u32 {T5}, {T5}, 14\ns_and_b32 {T4}, {T5}, 3')
    def pf_w4(self, j0, j1):
        self.a(f's_mul_i32 {T6}, {T4}, {224*896}\ns_add_u32 {T6}, {T6}, {self.w4row(j0)*896}')
        self.pf(W4, T6, (j1 - j0)*32*896, 1, 0)
    def pf_w3(self, half):
        a = self.a
        a(f'v_lshrrev_b32 v41, 11, v40\nv_mul_u32_u24 v41, 3584, v41\nv_and_b32 v44, 0x780, v40\nv_add_u32 v41, v41, v44\nv_cmp_gt_u32 vcc, 0x700, v44')
        a(f's_mul_i32 {T0}, {T4}, {112*3584}\ns_add_u32 {T0}, {T0}, {1792*half}\nv_cndmask_b32 v41, v42, v41, vcc')
        for k in range(7):
            a.raw(f'buffer_load_dword v43, v41, {W3}, {T0} offen')
            a(f's_add_u32 {T0}, {T0}, {16*3584}')

    def helper_head(self):
        a = self.a
        pf = self.opt.get('pf', 1)
        self.run(self.late_loads())
        self.run(self.setup1())
        self.helper_setup()
        a.raw('s_waitcnt lgkmcnt(0)')
        if pf:
            self.pf(WO, 0, 448*896, 32, T5, rot=False)
            self.pf(WS, FLAGS, 7*65536, 32, T5, rot=False, fl='sc1', stride=2)
            hm = self.opt.get('hm', 3)
            if hm == 1:
                self.pf(W4, 0, 1792*896, 32, T5, rot=False)
                self.pf(W1, 0, 448*896, 32, T5, rot=False)
                self.pf(W2, 0, 448*896, 32, T5, rot=False)
                self.pf(W3, 0, 448*3584, 32, T5, rot=False)
            if hm == 3:
                a(f's_mul_i32 {T6}, {T4}, {224*896}\ns_lshr_b32 {T7}, {TEAM}, 1')
                self.pf(W4, T6, 192*896, 8, T7, rot=False)
                self.pf(W1, 0, 448*896, 32, T5, rot=False)
                self.pf(W2, 0, 448*896, 32, T5, rot=False)
                self.pf(WO, 0, 448*896, 4, T4)
            if hm == 2:
                self.pf(WO, 0, 448*896, 4, T4)
                self.pf_w4(0, 3)
        self.run(self.p2_setup() + self.setup2())
        self.run(self.get_tag())
        a(f's_lshl_b32 {T0}, {TEAM}, 1\ns_add_u32 {T0}, {T0}, {MEM}\ns_sub_u32 {T0}, {T0}, 14\ns_lshl_b32 {T0}, {T0}, 3\ns_add_u32 {T0}, {T0}, 7')
        self.flag(0, T0)()
        if self.opt.get('hsl', 0): a(f's_sleep {self.opt["hsl"]}')
        self.stamp('c')

    def helper_tail(self):
        a = self.a
        self.finish(1, SLOTB, fast=True)
        self.helper_setup()
        if self.opt.get('pf', 1):
            if self.opt.get('hm', 3) == 3:
                self.pf(W3, 0, 448*3584, 32, T5, rot=False)
                self.pf(W4, 896*896, 896*896, 32, T5, rot=False)
            if self.opt.get('pfg', 0): self.pf(WS, G_, 32*57344, 32, T5, rot=False, fl='sc1')
            self.pf_w3(0)
            self.stamp('d')
            self.pf_w4(6, 7); self.pf_w4(7, 9)
            self.stamp('e')
            self.pf_w3(1)
            self.stamp('f')
            self.pf_w4(9, 14)
            a.raw('s_waitcnt vmcnt(0)')
            self.stamp('g')
        if self.opt.get('fast', 1) and self.opt.get('wb', 0):
            Lw = a.label('nowb')
            a(f's_and_b32 {T2}, {SLOTB}, 31\ns_cmp_lg_u32 {T2}, 31\ns_cbranch_scc1 {Lw}')
            a(f's_sub_u32 {T2}, {SLOTB}, 31')
            self.poll(5, T2, '0x3fff3fff')
            a(f's_cmp_lg_u32 {WAVE}, 0\ns_cbranch_scc1 L_fin')
            a.raw('buffer_wbl2 sc1')
            a(f's_branch L_fin\n{Lw}:')
        a(f's_cmp_lg_u32 {SLOTB}, 15\ns_cbranch_scc1 L_fin')
        for q in range(4):
            a(f's_mov_b32 {T2}, {64*q}')
            self.poll(0, T2, '-1')
        a(f's_cmp_lg_u32 {WAVE}, 0\ns_cbranch_scc1 L_fin')
        a(f'v_mov_b32 v254, {TAG}\nv_mov_b32 v255, 0\ns_mov_b64 exec, 1')
        a.raw(f'buffer_store_dword v254, v255, {WS}, 0 offen sc1')
        a('s_mov_b64 exec, -1')
        a('s_branch L_fin')

    def build(self):
        a = self.a
        self.prologue()
        a('s_cbranch_scc0 L_p1')
        if self.opt.get('pf', 1):
            a(f's_lshl_b32 s68, {TEAM}, 1\ns_add_u32 s68, s68, {MEM}\ns_sub_u32 s68, s68, 14\ns_mul_i32 s68, s68, {294*128}')
            a.raw(f'buffer_load_dword v43, v40, {WQ}, s68 offen')
            a(f's_add_u32 s68, s68, {256*128}\nv_cmp_gt_u32 vcc, {38*128}, v40\ns_and_saveexec_b64 s[58:59], vcc\ns_cbranch_execz L_hx')
            a.raw(f'buffer_load_dword v43, v40, {WQ}, s68 offen')
            a('L_hx:\ns_mov_b64 exec, -1')
        a('s_branch L_hh')
        a('L_p1:')
        self.ph = 'p1'
        self.p1()
        a('L_att:')
        self.ph = 'p2'
        self.p2()
        a(f's_cmp_lt_u32 {MEM}, 14\ns_cbranch_scc1 L_p3')
        st = (list(a.vm), list(a.lg))
        self.ph = 'hh'
        self.helper_tail()
        a('L_hh:')
        a.vm, a.lg = [], []
        self.helper_head()
        a('s_branch L_att')
        a('L_p3:')
        a.vm, a.lg = st
        self.ph = 'p2'
        self.p2_finish()
        for n, f in enumerate((self.p3, self.p4, self.p5, self.p6, self.p7)):
            self.ph = f'p{n+3}'
            f()
        a('L_fin:')
        if self.stamps:
            a.raw('s_waitcnt vmcnt(0)')
            a('s_memrealtime s[60:61]\ns_memtime s[62:63]')
            a.raw('s_waitcnt lgkmcnt(0)')
            a(f's_cmp_lg_u32 {WAVE}, 0\ns_cbranch_scc1 L_end')
            a(f's_lshl_b32 {T0}, s2, 8\ns_add_u32 {T0}, {T0}, {STAMPS}\ns_mov_b64 exec, 1\nv_mov_b32 v255, 0')
            for i in range(self.nstamp):
                a(f'v_mov_b32 v254, s{100-2*i}')
                a.raw(f'buffer_store_dword v254, v255, {WS}, {T0} offen offset:{4*i}')
            for i, r in enumerate(('s101', 's60', 's62')):
                a(f'v_mov_b32 v254, {r}')
                a.raw(f'buffer_store_dword v254, v255, {WS}, {T0} offen offset:{240+4*i}')
            if self.opt.get('dbg', 0):
                a(f's_cmp_lg_u32 s2, {self.opt["dbg"]}\ns_cbranch_scc1 L_end')
                a('s_load_dwordx2 s[8:9], s[0:1], 72\ns_mov_b32 s10, 256')
                a.raw('s_waitcnt lgkmcnt(0)')
                for i in range(1, self.nstamp):
                    a(f's_sub_u32 {T1}, s{100-2*i}, s100\nv_mov_b32 v254, {T1}')
                    a.raw(f'buffer_store_dword v254, v255, s[8:11], 0 offen offset:{4*(i-1)}')
                a(f's_sub_u32 {T1}, s60, s101\nv_mov_b32 v254, {T1}')
                a.raw(f'buffer_store_dword v254, v255, s[8:11], 0 offen offset:60')
        a('L_end:')
        a('s_endpgm')
        hdr = open('cdna_kernels/' + NAME + '.s.ref').read().split('; Override')[0]
        hdr += '; Generated by a hand-written generator script (persistent fused kernel, one workgroup per CU).\n'
        hdr += '; @launch grid=(256,1,1) block=(256,1,1) lds=163840\n'
        hdr += f'.amdgcn_target "amdgcn-amd-amdhsa--gfx950"\n.text\n.globl {NAME}_kernel\n.p2align 8\n.type {NAME}_kernel,@function\n{NAME}_kernel:\n'
        kd = f"""
.section .rodata,"a"
.p2align 6
.amdhsa_kernel {NAME}_kernel
  .amdhsa_next_free_vgpr 512
  .amdhsa_next_free_sgpr 102
  .amdhsa_accum_offset 256
  .amdhsa_group_segment_fixed_size 0
  .amdhsa_kernarg_size 88
  .amdhsa_user_sgpr_count 2
  .amdhsa_user_sgpr_kernarg_segment_ptr 1
  .amdhsa_system_sgpr_workgroup_id_x 1
.end_amdhsa_kernel
"""
        return hdr + a.text() + kd

if __name__ == '__main__':
    import argparse
    ap = argparse.ArgumentParser()
    ap.add_argument('-o', default='cdna_kernels/' + NAME + '.s')
    ap.add_argument('--stamps', default='')
    ap.add_argument('opts', nargs='*')
    args = ap.parse_args()
    g = Gen()
    g.stamps = bool(args.stamps)
    g.sel = args.stamps.split(',') if args.stamps != 'z' else [f'p{i}.z' for i in range(8)]
    g.opt = {k: int(v) for k, v in (o.split('=') for o in args.opts)}
    txt = g.build()
    open(args.o, 'w').write(txt)
    if args.stamps: open(args.o + '.stamps', 'w').write('\n'.join(g.stamp_names))
    print('instructions', len(g.a.ins), 'auto nops', g.a.nops, file=sys.stderr)
```
